```python
import torch

def _softmax(x, axis=-1):
    return torch.softmax(x, dim=axis)
def _gelu(x):
    return torch.nn.functional.gelu(x, approximate="tanh")
def _silu(x):
    return torch.nn.functional.silu(x)
def _sigmoid(x):
    return torch.sigmoid(x)
def _layernorm(x, axis=-1, eps=1e-5):
    m = x.mean(dim=axis, keepdim=True)
    v = x.var(dim=axis, keepdim=True, unbiased=False)
    return (x - m) / torch.sqrt(v + eps)
def _scatter_add(tgt, idx, src, axis=0):
    return tgt.clone().index_add_(axis, idx, src)
def _segment_sum(src, seg, n):
    out = torch.zeros((n,) + src.shape[1:], dtype=src.dtype)
    return out.index_add_(0, seg, src)
def _pad(x, pw):
    flat = tuple(v for pair in reversed(pw) for v in pair)
    return torch.nn.functional.pad(x, flat)

kernel_name = 'concat_heads__gqa_block_cached__sliding_block_cached__decode'

def setup_inputs():

    _w = (lambda a: (lambda t: t.to(torch.bfloat16) if t.is_floating_point() else t)(torch.as_tensor(a)))
    def _A_setup():
        B, Sq, D = 2, 1, 448
        Hq, Hkv, Sk, Dh = 16, 8, 8192, 256
        assert Hq % Hkv == 0, (Hq, Hkv)
        return {
            "x": _w((lambda *s: torch.randn(*s, dtype=torch.bfloat16) * 0.8)(B, Sq, D)),
            "k_cache": _w((lambda *s: torch.randn(*s, dtype=torch.bfloat16) * 1.6)(B, Hkv, Sk, Dh)),
            "v_cache": _w((lambda *s: torch.randn(*s, dtype=torch.bfloat16) * 0.2)(B, Hkv, Sk, Dh)),
            "wq": _w((lambda *s: torch.randn(*s, dtype=torch.bfloat16) * 1.6)(D, Hq * Dh) * (D ** -0.5)),
            "wo": _w((lambda *s: torch.randn(*s, dtype=torch.bfloat16) * 0.2)(Hq * Dh, D) * ((Hq * Dh) ** -0.5)),
        }
    _A_in = _A_setup()

    def _B_setup():
        B, Sq, D = 2, 1, 448
        Hq, Hkv, Sk, Dh = 16, 8, 8192, 256
        assert Hq % Hkv == 0, (Hq, Hkv)
        return {
            "x": _w((lambda *s: torch.randn(*s, dtype=torch.bfloat16) * 0.8)(B, Sq, D)),
            "k_cache": _w((lambda *s: torch.randn(*s, dtype=torch.bfloat16) * 1.6)(B, Hkv, Sk, Dh)),
            "v_cache": _w((lambda *s: torch.randn(*s, dtype=torch.bfloat16) * 0.2)(B, Hkv, Sk, Dh)),
            "wq": _w((lambda *s: torch.randn(*s, dtype=torch.bfloat16) * 1.6)(D, Hq * Dh) * (D ** -0.5)),
            "wo": _w((lambda *s: torch.randn(*s, dtype=torch.bfloat16) * 0.2)(Hq * Dh, D) * ((Hq * Dh) ** -0.5)),
        }
    _B_in = _B_setup()

    return {
        "A_x": _A_in["x"],
        "A_k_cache": _A_in["k_cache"],
        "A_v_cache": _A_in["v_cache"],
        "A_wq": _A_in["wq"],
        "A_wo": _A_in["wo"],
        "B_x": _B_in["x"],
        "B_k_cache": _B_in["k_cache"],
        "B_v_cache": _B_in["v_cache"],
        "B_wq": _B_in["wq"],
        "B_wo": _B_in["wo"],
    }

def reference(A_x, A_k_cache, A_v_cache, A_wq, A_wo, B_x, B_k_cache, B_v_cache, B_wq, B_wo):
    def _A_ref(x, k_cache, v_cache, wq, wo):
        B, Sq, D = x.shape
        Hq, Dh = 16, 256
        Hkv = k_cache.shape[1]
        rep = Hq // Hkv
        q = (lambda x, *d: x.permute(*d))((x @ wq).reshape(B, Sq, Hq, Dh), 0, 2, 1, 3)
        k = (lambda x, n, axis: torch.repeat_interleave(x, n, dim=axis))(k_cache, rep, axis=1)
        v = (lambda x, n, axis: torch.repeat_interleave(x, n, dim=axis))(v_cache, rep, axis=1)
        scores = torch.einsum("bhqd,bhkd->bhqk", q, k) * (Dh ** -0.5)
        p = _softmax(scores, axis=-1)
        o = torch.einsum("bhqk,bhkd->bhqd", p, v)
        return (lambda x, *d: x.permute(*d))(o, 0, 2, 1, 3).reshape(B, Sq, Hq * Dh) @ wo

    def _B_ref(x, k_cache, v_cache, wq, wo):
        B, Sq, D = x.shape
        Hq, Dh = 16, 256
        Hkv, Sk = k_cache.shape[1], k_cache.shape[2]
        W = min(4096, max(256, Sk // 4))
        rep = Hq // Hkv
        q = (lambda x, *d: x.permute(*d))((x @ wq).reshape(B, Sq, Hq, Dh), 0, 2, 1, 3)
        k = (lambda x, n, axis: torch.repeat_interleave(x, n, dim=axis))(k_cache[:, :, Sk - W:, :], rep, axis=1)
        v = (lambda x, n, axis: torch.repeat_interleave(x, n, dim=axis))(v_cache[:, :, Sk - W:, :], rep, axis=1)
        scores = torch.einsum("bhqd,bhkd->bhqk", q, k) * (Dh ** -0.5)
        p = _softmax(scores, axis=-1)
        o = torch.einsum("bhqk,bhkd->bhqd", p, v)
        return (lambda x, *d: x.permute(*d))(o, 0, 2, 1, 3).reshape(B, Sq, Hq * Dh) @ wo

    a = _A_ref(A_x, A_k_cache, A_v_cache, A_wq, A_wo)
    b = _B_ref(B_x, B_k_cache, B_v_cache, B_wq, B_wo)
    return torch.concatenate([a, b], axis=-1)
```

```python
import sys, math
NAME = "concat_heads__gqa_block_cached__sliding_block_cached__decode_kernel"
HDR = open("concat_heads__gqa_block_cached__sliding_block_cached__decode.s.ref").read().split("; Override launch")[0]

H0_OFF  = 0x1000
H1L_OFF = 0x60000
H1_OFF  = 0x80000
H2_OFF  = 0x200000
WS_SIZE = 0x400000
STAMP_OFF = 0x1000000
LDS_Q = 0; LDS_O = 2048; LDS_ST = 2048+16384; LDS_SIZE = LDS_ST+128
TAGC = 0x3B5D7F91
CEXP = math.log2(math.e)/16.0
def f2u(x):
    import struct; return struct.unpack("<I", struct.pack("<f", x))[0]

class P:
    R=39; T=8; order="AK,BK,AV,BV"; mp=1; stamps=0; spin=100000; T0=8; sleep0=1; sleep1=1; sleep2=1
    first_delay=0

def gen(p):
    L=[]; e=L.append
    def nop(n):
        if n>0: e(f"s_nop {n-1}")
    nst=[0]
    def stamp(i):
        if p.stamps: e(f"s_memrealtime s[{70+2*i}:{71+2*i}]")
    def srd(r, lo, hi, size):
        e(f"s_mov_b32 s{r}, s{lo}"); e(f"s_mov_b32 s{r+1}, s{hi}"); e(f"s_mov_b32 s{r+2}, {size:#x}"); e(f"s_mov_b32 s{r+3}, 0x20000")
    def write_stamps(n, slot0):
        if not p.stamps: return
        e("s_waitcnt lgkmcnt(0)")
        e(f"s_add_u32 s64, s28, {STAMP_OFF:#x}"); e("s_addc_u32 s65, s29, 0"); e("s_mov_b32 s66, 0x100000"); e("s_mov_b32 s67, 0x20000")
        e("s_lshl_b32 s68, s2, 7"); e(f"s_add_u32 s68, s68, {slot0*8}")
        e("s_mov_b64 exec, 1"); e("v_mov_b32 v1, 0")
        for i in range(n):
            e(f"v_mov_b32 v2, s{70+2*i}"); e(f"v_mov_b32 v3, s{71+2*i}")
            e(f"buffer_store_dwordx2 v[2:3], v1, s[64:67], s68 offen offset:{i*8}"); e("s_nop 1")
    stamp(0)
    e("s_cmp_ge_u32 s2, 256"); e("s_cbranch_scc1 L_end")
    e("s_load_dwordx16 s[4:19], s[0:1], 0")
    e("s_load_dwordx8 s[20:27], s[0:1], 64")
    e("s_load_dwordx2 s[28:29], s[0:1], 96")
    e("v_lshrrev_b32 v1, 6, v0")
    e("v_and_b32 v0, 63, v0")
    e("v_readfirstlane_b32 s3, v1")
    if p.mp==1:
        e("s_and_b32 s31, s2, 7"); e("s_bfe_u32 s32, s2, 0x10003"); e("s_lshr_b32 s33, s2, 4")
    else:
        e("s_bfe_u32 s31, s2, 0x30004"); e("s_lshr_b32 s32, s2, 7"); e("s_and_b32 s33, s2, 15")
    e("s_lshl_b32 s34, s32, 4"); e("s_add_u32 s34, s34, s33")
    e("v_and_b32 v2, 15, v0"); e("v_lshrrev_b32 v3, 4, v0")
    e("s_cmp_eq_u32 s3, 0"); e("s_cbranch_scc1 L_helper")

    def emit_masks(base):
        e("v_and_b32 v8, 1, v0"); e("v_lshlrev_b32 v8, 4, v8"); e("v_mov_b32 v9, 0xffff"); e("v_lshlrev_b32 v9, v8, v9")
        e("v_bfe_u32 v8, v0, 1, 2")
        for r in range(4):
            e(f"v_cmp_eq_u32 vcc, {r}, v8"); nop(2); e(f"v_cndmask_b32 v{base+r}, 0, v9, vcc")
    def emit_tagconsts():
        e(f"s_add_u32 s30, s30, {TAGC:#x}")
        for i in range(4): e(f"s_mov_b32 s{56+i}, {0x07060500+i:#x}")
        e("s_mov_b32 s60, 0x0c0c0400"); e("s_mov_b32 s61, 0x04000c0c")
    def tag_insert(r, vtag):
        for i in range(4): e(f"v_perm_b32 v{r+i}, v{r+i}, v{vtag}, s{56+i}")
    def tag_check(r, vtag, vbad, t0, t1, first):
        e(f"v_perm_b32 v{t0}, v{r+1}, v{r}, s60"); e(f"v_perm_b32 v{t1}, v{r+3}, v{r+2}, s61")
        if first: e(f"v_bitop3_b32 v{vbad}, v{t0}, v{t1}, v{vtag} bitop3:0x56")
        else:
            e(f"v_bitop3_b32 v{t0}, v{t0}, v{t1}, v{vtag} bitop3:0x56"); e(f"v_or_b32 v{vbad}, v{vbad}, v{t0}")
    def poll_tail(lbl, vbad, slp):
        e(f"v_cmp_ne_u32 vcc, 0, v{vbad}")
        e(f"s_cbranch_vccz {lbl}_done")
        e("s_sub_u32 s62, s62, 1"); e(f"s_cbranch_scc1 {lbl}_done")
        if slp: e(f"s_sleep {slp}")
        e(f"s_branch {lbl}")
        e(f"{lbl}_done:")
    def allred_rows(op, x, t):
        e(f"v_mov_b32 v{t}, v{x}"); nop(2); e(f"v_permlane16_swap_b32 v{x}, v{t}"); nop(1); e(f"{op} v{x}, v{x}, v{t}")
        e(f"v_mov_b32 v{t}, v{x}"); nop(2); e(f"v_permlane32_swap_b32 v{x}, v{t}"); nop(1); e(f"{op} v{x}, v{x}, v{t}")

    VK,VV,VW=4,5,6; VTAG=7; MK=10
    Q=14
    Q=16
    S=32
    DT=52
    AO=68
    ACC=76
    MX=92
    LS=94
    TM=96
    RING=100
    R=p.R; assert RING+4*R<=256
    e("s_sub_u32 s3, s3, 1")
    e("v_lshrrev_b32 v8, 2, v2"); e(f"v_lshlrev_b32 v{VK}, 11, v8"); e(f"v_lshl_add_u32 v{VK}, v3, 6, v{VK}")
    e("v_and_b32 v8, 3, v0"); e(f"v_lshl_add_u32 v{VK}, v8, 4, v{VK}")
    e(f"v_lshlrev_b32 v{VV}, 11, v3"); e(f"v_lshl_add_u32 v{VV}, v2, 4, v{VV}")
    e("s_lshl_b32 s35, s32, 3"); e("s_add_u32 s35, s35, s31"); e("s_lshl_b32 s35, s35, 22")
    e("s_lshl_b32 s54, s3, 13"); e("s_add_u32 s35, s35, s54")
    e("s_lshl_b32 s52, s33, 18"); e("s_add_u32 s52, s52, s35")
    e("s_lshl_b32 s53, s33, 16"); e("s_add_u32 s53, s53, s35"); e(f"s_add_u32 s53, s53, {6144*512:#x}")
    e("s_waitcnt lgkmcnt(0)")
    SRD={"AK":40,"AV":44,"BK":48,"BV":36}
    SRD={"AK":40,"AV":44,"BK":48,"BV":88}
    order=p.order.split(",")
    ptr={"AK":6,"AV":8,"BK":16,"BV":18}
    srd(SRD[order[0]], ptr[order[0]], ptr[order[0]]+1, 0x4000000)
    loads=[]
    for ph in order:
        br=0 if ph[0]=="A" else 1
        nt=8 if br==0 else 2
        for t in range(nt):
            for r in range(4):
                for hf in range(2): loads.append((ph,br,t,r,hf))
    NKV=len(loads)
    for t in range(8): loads.append(("WO",0,t,0,0))
    N=len(loads)
    st={"issued":0,"cur":None}
    def slot(i): return RING+4*(i%R)
    def issue(throttle=None):
        i=st["issued"]
        if i>=N: return
        ph,br,t,r,hf=loads[i]
        if throttle is not None and i>=throttle: e(f"s_waitcnt vmcnt({throttle-1})")
        d=slot(i)
        if ph=="WO":
            key=("WO",t//4)
            if st["cur"]!=key:
                e(f"s_add_u32 s55, s63, {(t//4)*4*896}"); st["cur"]=key
            e(f"buffer_load_dwordx4 v[{d}:{d+3}], v{VW}, s[92:95], s55 offen offset:{(t%4)*896} nt")
        else:
            key=(br,t)
            if st["cur"]!=key:
                e(f"s_add_u32 s55, s{52+br}, {t*32768}"); st["cur"]=key
            vo=VK if ph[1]=="K" else VV
            e(f"buffer_load_dwordx4 v[{d}:{d+3}], v{vo}, s[{SRD[ph]}:{SRD[ph]+3}], s55 offen offset:{r*512+hf*256} nt")
        st["issued"]+=1
    for i in range(p.T0): issue()
    e("s_load_dword s30, s[28:29], 0")
    for ph in order[1:]: srd(SRD[ph], ptr[ph], ptr[ph]+1, 0x4000000)
    srd(36,28,29,WS_SIZE)
    e("s_cmp_ge_u32 s34, 16"); e("s_cselect_b32 s92, s22, s12"); e("s_cselect_b32 s93, s23, s13")
    e(f"s_mov_b32 s94, {4096*896:#x}"); e("s_mov_b32 s95, 0x20000")
    e("s_and_b32 s54, s34, 15"); e("s_lshl_b32 s54, s54, 5"); e("s_lshl_b32 s63, s31, 9"); e("s_add_u32 s63, s63, s54"); e("s_mul_i32 s63, s63, 896")
    e(f"v_mul_u32_u24 v{VW}, {8*896}, v3"); e(f"v_lshl_add_u32 v{VW}, v2, 4, v{VW}")
    e("s_lshl_b32 s54, s3, 8"); e(f"v_add_u32 v{VW}, s54, v{VW}")
    e("s_lshl_b32 s54, s3, 4"); e("v_add_u32 v8, s54, v2")
    e("v_mov_b32 v14, v8")
    e("v_cmp_gt_u32 vcc, 56, v8"); e("v_mov_b32 v9, 0x40000000"); nop(1); e(f"v_cndmask_b32 v{VW}, v9, v{VW}, vcc")
    emit_masks(MK)
    e("v_bfe_u32 v8, v0, 3, 1"); e("v_lshlrev_b32 v15, 9, v8"); e("v_lshl_add_u32 v15, v3, 6, v15")
    e("v_and_b32 v8, 3, v0"); e("v_lshl_add_u32 v15, v8, 4, v15")
    for br in range(2):
        e(f"v_mov_b32 v{MX+br}, 0xff800000"); e(f"v_mov_b32 v{LS+br}, 0")
    e(f"s_mov_b32 s96, {f2u(CEXP):#x}"); e("s_mov_b32 s97, 0xffff0000")
    while st["issued"]<R: issue(p.T)
    e("s_waitcnt lgkmcnt(0)")
    emit_tagconsts()
    e(f"v_mov_b32 v{VTAG}, s30")
    stamp(1)
    e("s_barrier")
    stamp(2)
    for br in range(2):
        for hf in range(2):
            q=Q+br*8+hf*4
            e(f"ds_read_b128 v[{q}:{q+3}], v15 offset:{LDS_Q+br*1024+hf*256}")
    e("s_waitcnt lgkmcnt(0)")
    groups=[loads[i] for i in range(0,NKV,2)]
    NG=len(groups)
    def sreg(br,t,r): return S+(0 if br==0 else 16)+t*2+(r>>1)
    lastm={}
    def need(dist, idx):
        n=dist-(len(L)-idx-1)
        if n>0: nop(n)
    def k_post(gi):
        ph,br,t,r,_=groups[gi]; d0=DT+4*((gi-1)%4); d1=DT+4*(gi%4)
        def qp(c): return f"quad_perm:[{c},{c},{c},{c}] row_mask:0xf bank_mask:0xf"
        need(8,lastm[gi-1])
        e(f"v_mov_b32_dpp v{TM}, v{d0} {qp(0)}"); e(f"v_mov_b32_dpp v{TM+1}, v{d0+2} {qp(2)}")
        need(8,lastm[gi])
        e(f"v_mov_b32_dpp v{TM+2}, v{d1} {qp(0)}"); e(f"v_mov_b32_dpp v{TM+3}, v{d1+2} {qp(2)}")
        e(f"v_add_f32_dpp v{TM}, v{d0+1}, v{TM} {qp(1)}"); e(f"v_add_f32_dpp v{TM+1}, v{d0+3}, v{TM+1} {qp(3)}")
        e(f"v_add_f32_dpp v{TM+2}, v{d1+1}, v{TM+2} {qp(1)}"); e(f"v_add_f32_dpp v{TM+3}, v{d1+3}, v{TM+3} {qp(3)}")
        e(f"v_add_f32 v{TM}, v{TM}, v{TM+1}"); e(f"v_add_f32 v{TM+2}, v{TM+2}, v{TM+3}")
        s=sreg(br,t,r)
        e(f"v_cvt_pk_bf16_f32 v{s}, v{TM}, v{TM+2}")
        e(f"v_lshlrev_b32 v{TM}, 16, v{s}"); e(f"v_and_b32 v{TM+1}, s97, v{s}")
        e(f"v_max3_f32 v{MX+br}, v{TM}, v{TM+1}, v{MX+br}")
    def v_pre(gi):
        ph,br,t,r,_=groups[gi]; s=sreg(br,t,r); a=AO+4*(gi%2)
        if r&1: e(f"v_and_b32 v{TM}, s97, v{s}")
        else: e(f"v_lshlrev_b32 v{TM}, 16, v{s}")
        e(f"v_fma_f32 v{TM}, v{TM}, s96, -v{MX+br}")
        e(f"v_exp_f32 v{TM}, v{TM}"); nop(1)
        e(f"v_cvt_pk_bf16_f32 v{TM+1}, v{TM}, v{TM}")
        for c in range(4): e(f"v_and_b32 v{a+c}, v{MK+c}, v{TM+1}")
        e(f"v_add_f32 v{LS+br}, v{LS+br}, v{TM}")
    def fin_max(br):
        allred_rows("v_max_f32", MX+br, TM)
        e(f"v_mul_f32 v{MX+br}, s96, v{MX+br}")
    def fin_branch(br):
        allred_rows("v_add_f32", LS+br, TM)
        e(f"v_lshrrev_b32 v{TM}, 5, v0"); e(f"v_lshlrev_b32 v{TM}, 10, v{TM}"); e(f"v_lshl_add_u32 v{TM}, v2, 5, v{TM}")
        e(f"v_and_b32 v{TM+1}, 1, v3"); e(f"v_lshl_add_u32 v{TM}, v{TM+1}, 4, v{TM}")
        e("s_lshl_b32 s54, s3, 12"); e(f"v_add_u32 v{TM}, s54, v{TM}")
        for hf in range(2):
            a=ACC+br*8+hf*4
            e(f"ds_write_b128 v{TM}, v[{a}:{a+3}] offset:{LDS_O+br*2048+hf*512}")
        e(f"v_bfe_u32 v{TM}, v0, 3, 1"); e(f"v_lshlrev_b32 v{TM}, 5, v{TM}"); e("s_lshl_b32 s54, s3, 3"); e(f"v_add_u32 v{TM}, s54, v{TM}")
        e(f"v_mov_b32 v{TM+2}, v{MX+br}"); e(f"v_mov_b32 v{TM+3}, v{LS+br}")
        e(f"ds_write_b64 v{TM}, v[{TM+2}:{TM+3}] offset:{LDS_ST+br*64}")
    pend_k=[]
    maxdone=set(); predone=set(); pend_fin=[]
    def flush_k(keep):
        while len(pend_k)>keep: k_post(pend_k.pop(0))
    for gi in range(NG):
        ph,br,t,r,_=groups[gi]
        i0=2*gi
        if ph[1]=="V" and gi not in predone:
            if br not in maxdone:
                if any(groups[x][1]==br for x in pend_k):
                    flush_k(0)
                fin_max(br); maxdone.add(br)
            v_pre(gi); predone.add(gi); nop(2)
        for hf in range(2):
            i=i0+hf
            e(f"s_waitcnt vmcnt({st['issued']-i-1})")
            d=slot(i)
            if ph[1]=="K":
                D=DT+4*(gi%4); q=Q+br*8+hf*4
                c="0" if hf==0 else f"v[{D}:{D+3}]"
                e(f"v_mfma_f32_16x16x32_bf16 v[{D}:{D+3}], v[{d}:{d+3}], v[{q}:{q+3}], {c}")
            else:
                a=AO+4*(gi%2); D=ACC+br*8+hf*4
                c="0" if (t==0 and r==0) else f"v[{D}:{D+3}]"
                e(f"v_mfma_f32_16x16x32_bf16 v[{D}:{D+3}], v[{a}:{a+3}], v[{d}:{d+3}], {c}")
        lastm[gi]=len(L)-1
        consumed=i0+2
        lag=st["issued"]-consumed
        if lag>=p.T: issue(p.T)
        else:
            while st["issued"]-consumed<p.T and st["issued"]<N: issue()
        flush_k(0)
        if ph[1]=="K" and (r&1): pend_k.append(gi)
        if pend_fin and pend_fin[0][1]<gi:
            fin_branch(pend_fin.pop(0)[0])
        if ph[1]=="V" and (gi+1==NG or groups[gi+1][0]!=ph): pend_fin.append((br,gi))
        if gi+1<NG:
            nph,nbr,_,_,_=groups[gi+1]
            if nph[1]=="V" and (nbr in maxdone or not any(groups[x][1]==nbr for x in pend_k)):
                if nbr not in maxdone: fin_max(nbr); maxdone.add(nbr)
                v_pre(gi+1); predone.add(gi+1)
    while st["issued"]<N: issue()
    stamp(3)
    while pend_fin: fin_branch(pend_fin.pop(0)[0])
    e("s_waitcnt lgkmcnt(0)")
    e("s_barrier")
    stamp(4)
    G=16
    e(f"v_lshlrev_b32 v8, 4, v0"); e("s_lshl_b32 s54, s3, 10"); e("v_add_u32 v8, s54, v8")
    e("s_lshl_b32 s54, s3, 5"); e("v_mov_b32 v9, s54")
    e(f"ds_read_b128 v[{G}:{G+3}], v9 offset:{LDS_ST}"); e(f"ds_read_b128 v[{G+4}:{G+7}], v9 offset:{LDS_ST+16}")
    for w in range(4): e(f"ds_read_b128 v[{G+8+4*w}:{G+11+4*w}], v8 offset:{LDS_O+w*4096}")
    e("v_lshrrev_b32 v8, 3, v0"); e("v_lshlrev_b32 v8, 12, v8"); e("v_and_b32 v9, 7, v0"); e("v_lshl_add_u32 v8, v9, 4, v8")
    e("s_lshl_b32 s54, s31, 2"); e("s_add_u32 s54, s54, s3")
    e("s_lshl_b32 s55, s54, 15"); e("s_lshl_b32 s98, s34, 7"); e("s_add_u32 s55, s55, s98"); e(f"s_add_u32 s55, s55, {H1_OFF:#x}")
    e("s_lshl_b32 s54, s54, 8"); e("s_lshl_b32 s98, s34, 3"); e("s_add_u32 s54, s54, s98"); e(f"s_add_u32 s54, s54, {H1L_OFF:#x}")
    e("s_waitcnt lgkmcnt(0)" if p.stamps else "s_waitcnt lgkmcnt(4)")
    M=G+24
    e(f"v_max3_f32 v{M}, v{G}, v{G+2}, v{G+4}"); e(f"v_max_f32 v{M}, v{M}, v{G+6}")
    for w in range(4): e(f"v_sub_f32 v{G+2*w}, v{G+2*w}, v{M}")
    for w in range(4): e(f"v_exp_f32 v{G+2*w}, v{G+2*w}")
    nop(1)
    e(f"v_mul_f32 v{M+1}, v{G}, v{G+1}")
    for w in range(1,4): e(f"v_fmac_f32 v{M+1}, v{G+2*w}, v{G+2*w+1}")
    e(f"v_rcp_f32 v{M+2}, v{M+1}"); e(f"v_log_f32 v{M+3}, v{M+1}"); nop(1)
    for w in range(4): e(f"v_mul_f32 v{G+2*w}, v{G+2*w}, v{M+2}")
    e(f"v_add_f32 v{M+4}, v{M}, v{M+3}"); e(f"v_mov_b32 v{M+5}, v{VTAG}")
    e("s_waitcnt lgkmcnt(0)")
    O=M+8
    for c in range(4): e(f"v_mul_f32 v{O+c}, v{G}, v{G+8+c}")
    for w in range(1,4):
        for c in range(4): e(f"v_fmac_f32 v{O+c}, v{G+2*w}, v{G+8+4*w+c}")
    tag_insert(O,VTAG)
    e(f"buffer_store_dwordx4 v[{O}:{O+3}], v8, s[36:39], s55 offen sc1")
    e("v_mov_b32 v9, 0"); e("s_mov_b64 exec, 1")
    e(f"buffer_store_dwordx2 v[{M+4}:{M+5}], v9, s[36:39], s54 offen sc1")
    e("s_mov_b64 exec, -1")
    stamp(5)
    e("v_lshlrev_b32 v8, 8, v2"); e("v_lshl_add_u32 v8, v3, 5, v8")
    e("v_lshlrev_b32 v9, 4, v2")
    e("s_lshl_b32 s55, s31, 5"); e("s_add_u32 s55, s55, s34"); e("s_lshl_b32 s55, s55, 12"); e(f"s_add_u32 s55, s55, {H1_OFF:#x}")
    e("s_lshr_b32 s98, s34, 3"); e("s_lshl_b32 s54, s31, 2"); e("s_add_u32 s54, s54, s98"); e("s_lshl_b32 s54, s54, 8"); e(f"s_add_u32 s54, s54, {H1L_OFF:#x}")
    e(f"s_mov_b32 s62, {p.spin}")
    A0=16; A1=24; LL=32; BAD=36; T0=37; T1=38
    e("L_h1:")
    e(f"buffer_load_dwordx4 v[{LL}:{LL+3}], v9, s[36:39], s54 offen sc1")
    e(f"buffer_load_dwordx4 v[{A0}:{A0+3}], v8, s[36:39], s55 offen sc1")
    e(f"buffer_load_dwordx4 v[{A0+4}:{A0+7}], v8, s[36:39], s55 offen offset:16 sc1")
    e(f"buffer_load_dwordx4 v[{A1}:{A1+3}], v8, s[36:39], s55 offen offset:128 sc1")
    e(f"buffer_load_dwordx4 v[{A1+4}:{A1+7}], v8, s[36:39], s55 offen offset:144 sc1")
    e("s_waitcnt vmcnt(0)")
    for k,r in enumerate([A0,A0+4,A1,A1+4]): tag_check(r,VTAG,BAD,T0,T1,k==0)
    e(f"v_xor_b32 v{T0}, v{LL+1}, v{VTAG}"); e(f"v_xor_b32 v{T1}, v{LL+3}, v{VTAG}"); e(f"v_or3_b32 v{BAD}, v{BAD}, v{T0}, v{T1}")
    poll_tail("L_h1",BAD,p.sleep1)
    stamp(6)
    def red8(op,x):
        out=[]
        for dp in ["quad_perm:[1,0,3,2]","quad_perm:[2,3,0,1]","row_half_mirror"]:
            out.append(f"{op}_dpp v{x}, v{x}, v{x} {dp} row_mask:0xf bank_mask:0xf")
        return out
    MXX=40
    e(f"v_max_f32 v{MXX}, v{LL}, v{LL+2}")
    for ins in red8("v_max_f32",MXX): nop(2); e(ins)
    e(f"v_sub_f32 v{LL}, v{LL}, v{MXX}"); e(f"v_sub_f32 v{LL+2}, v{LL+2}, v{MXX}")
    e(f"v_exp_f32 v{LL}, v{LL}"); e(f"v_exp_f32 v{LL+2}, v{LL+2}"); nop(1)
    W=41
    e(f"v_add_f32 v{W}, v{LL}, v{LL+2}")
    for c in range(8): e(f"v_mul_f32 v{A0+c}, v{LL}, v{A0+c}")
    for c in range(8): e(f"v_fmac_f32 v{A0+c}, v{LL+2}, v{A1+c}")
    regs=[W]+[A0+c for c in range(8)]
    for stp in range(3):
        for x in regs: e(red8("v_add_f32",x)[stp])
    e(f"v_rcp_f32 v{W}, v{W}"); nop(1)
    for c in range(8): e(f"v_mul_f32 v{A0+c}, v{W}, v{A0+c}")
    for c in range(8): e(f"v_cvt_pk_bf16_f32 v{A0+c}, v{A0+c}, v{A0+c}")
    DO=44
    AB=48
    for t in range(8):
        for c in range(4): e(f"v_and_b32 v{AB+4*t+c}, v{MK+c}, v{A0+t}")
    e("v_lshrrev_b32 v8, 5, v0"); e("v_mul_u32_u24 v8, 56, v8"); e("v_add_u32 v8, v8, v14"); e("v_lshlrev_b32 v8, 12, v8")
    for t in range(8):
        d=slot(NKV+t); c="0" if t==0 else f"v[{DO}:{DO+3}]"
        e(f"v_mfma_f32_16x16x32_bf16 v[{DO}:{DO+3}], v[{AB+4*t}:{AB+4*t+3}], v[{d}:{d+3}], {c}")
    e("v_and_b32 v9, 1, v3"); e("v_lshl_add_u32 v8, v9, 4, v8")
    e("v_cmp_gt_u32 vcc, 56, v14"); e("v_mov_b32 v9, 0x40000000")
    e("s_lshr_b32 s54, s34, 4"); e(f"s_mul_i32 s54, s54, {112*4096}"); e("v_cndmask_b32 v8, v9, v8, vcc")
    e("s_and_b32 s55, s34, 15"); e("s_lshl_b32 s98, s31, 4"); e("s_add_u32 s55, s55, s98"); e("s_lshl_b32 s55, s55, 5")
    e("s_add_u32 s54, s54, s55"); e(f"s_add_u32 s54, s54, {H2_OFF:#x}")
    nop(2)
    tag_insert(DO,VTAG)
    e(f"buffer_store_dwordx4 v[{DO}:{DO+3}], v8, s[36:39], s54 offen sc1")
    stamp(7)
    if p.stamps:
        e("s_cmp_lg_u32 s3, 0"); e("s_cbranch_scc1 L_end")
        write_stamps(8,0)
    e("s_endpgm")

    e("L_helper:")
    e("s_setprio 3")
    X=16
    WQ=64
    e("v_bfe_u32 v8, v0, 3, 1"); e("v_mul_u32_u24 v4, 896, v8"); e("v_mul_u32_u24 v8, 56, v3"); e("v_add_u32 v4, v4, v8")
    e(f"v_mul_u32_u24 v5, {28*8192}, v3"); e("v_lshl_add_u32 v5, v2, 4, v5")
    e("s_and_b32 s35, s34, 3"); e("s_mul_i32 s52, s35, 224")
    e(f"s_mul_i32 s53, s35, {112*8192}"); e("s_lshl_b32 s54, s31, 10"); e("s_add_u32 s53, s53, s54")
    e("s_bfe_u32 s54, s34, 0x20002"); e("s_lshl_b32 s54, s54, 8"); e("s_add_u32 s53, s53, s54")
    e("s_cmp_ge_u32 s34, 16")
    e("s_waitcnt lgkmcnt(0)")
    e("s_cselect_b32 s40, s14, s4"); e("s_cselect_b32 s41, s15, s5"); e("s_mov_b32 s42, 1792"); e("s_mov_b32 s43, 0x20000")
    e("s_cselect_b32 s44, s20, s10"); e("s_cselect_b32 s45, s21, s11"); e(f"s_mov_b32 s46, {448*8192:#x}"); e("s_mov_b32 s47, 0x20000")
    e(f"buffer_load_dwordx4 v[{X}:{X+3}], v4, s[40:43], s52 offen")
    e(f"buffer_load_dwordx4 v[{X+4}:{X+7}], v4, s[40:43], s52 offen offset:16")
    e(f"buffer_load_dwordx4 v[{X+8}:{X+11}], v4, s[40:43], s52 offen offset:32")
    e(f"buffer_load_dwordx2 v[{X+12}:{X+13}], v4, s[40:43], s52 offen offset:48")
    for t in range(28):
        e(f"buffer_load_dwordx4 v[{WQ+4*t}:{WQ+4*t+3}], v5, s[44:47], s53 offen nt")
        if t<27: e("s_add_u32 s53, s53, 8192")
    e("s_load_dword s30, s[28:29], 0")
    srd(36,28,29,WS_SIZE)
    emit_masks(MK)
    e("s_mov_b32 s48, 0x01000100"); e("s_mov_b32 s49, 0x03020302")
    e("v_lshrrev_b32 v8, 5, v0"); e("v_lshlrev_b32 v6, 14, v8"); e("v_lshl_add_u32 v6, v2, 5, v6"); e("v_and_b32 v9, 1, v3"); e("v_lshl_add_u32 v6, v9, 4, v6")
    e("s_lshl_b32 s50, s31, 15"); e("s_lshl_b32 s54, s34, 9"); e("s_add_u32 s50, s50, s54"); e(f"s_add_u32 s50, s50, {H0_OFF:#x}")
    e("v_lshlrev_b32 v14, 11, v8"); e("v_and_b32 v9, 31, v0"); e("v_lshl_add_u32 v14, v9, 4, v14")
    e("s_lshl_b32 s51, s31, 1"); e("s_add_u32 s51, s51, s32"); e("s_lshl_b32 s51, s51, 14"); e(f"s_add_u32 s51, s51, {H0_OFF:#x}")
    e("v_lshlrev_b32 v15, 3, v0")
    e("s_waitcnt lgkmcnt(0)")
    emit_tagconsts()
    e(f"v_mov_b32 v{VTAG}, s30")
    e("s_waitcnt vmcnt(28)")
    stamp(1)
    DQ=32; AQ=36
    def aq(t):
        a=AQ+4*(t%2)
        e(f"v_perm_b32 v8, v{X+t//2}, v{X+t//2}, s{48+(t&1)}")
        for c in range(4): e(f"v_and_b32 v{a+c}, v{MK+c}, v8")
    aq(0)
    for t in range(28):
        if t+1<28: aq(t+1)
        else: nop(2)
        e(f"s_waitcnt vmcnt({27-t})")
        a=AQ+4*(t%2); c="0" if t==0 else f"v[{DQ}:{DQ+3}]"
        e(f"v_mfma_f32_16x16x32_bf16 v[{DQ}:{DQ+3}], v[{a}:{a+3}], v[{WQ+4*t}:{WQ+4*t+3}], {c}")
    nop(8)
    tag_insert(DQ,VTAG)
    e(f"buffer_store_dwordx4 v[{DQ}:{DQ+3}], v6, s[36:39], s50 offen sc1")
    stamp(2)
    e(f"s_mov_b32 s62, {p.spin}")
    if p.first_delay: e(f"s_sleep {p.first_delay}")
    GQ=64; BAD=44; T0=45; T1=46
    e("L_h0:")
    for pi in range(4):
        e(f"s_add_u32 s54, s51, {pi*4096}")
        for kq in range(4):
            r=GQ+16*pi+4*kq
            e(f"buffer_load_dwordx4 v[{r}:{r+3}], v14, s[36:39], s54 offen offset:{kq*512} sc1")
    e("s_waitcnt vmcnt(0)")
    for k in range(16): tag_check(GQ+4*k,VTAG,BAD,T0,T1,k==0)
    poll_tail("L_h0",BAD,p.sleep0)
    stamp(3)
    for pi in range(4):
        r=GQ+16*pi
        for c in range(4):
            e(f"v_add_f32 v{r+c}, v{r+c}, v{r+4+c}"); e(f"v_add_f32 v{r+8+c}, v{r+8+c}, v{r+12+c}")
        for c in range(4): e(f"v_add_f32 v{r+c}, v{r+c}, v{r+8+c}")
        e(f"v_cvt_pk_bf16_f32 v{r}, v{r}, v{r+1}"); e(f"v_cvt_pk_bf16_f32 v{r+1}, v{r+2}, v{r+3}")
        e(f"ds_write_b64 v15, v[{r}:{r+1}] offset:{LDS_Q+pi*512}")
    e("s_waitcnt lgkmcnt(0)")
    e("s_barrier")
    stamp(4)
    e("s_cmp_ge_u32 s2, 224"); e("s_cbranch_scc1 L_hend")
    e("v_lshlrev_b32 v4, 4, v0")
    e("s_lshl_b32 s51, s2, 12"); e(f"s_add_u32 s51, s51, {H2_OFF:#x}")
    e("s_mul_i32 s52, s2, 1171"); e("s_lshr_b32 s52, s52, 16")
    e("s_mul_i32 s53, s52, 56"); e("s_sub_u32 s53, s2, s53")
    e("s_lshl_b32 s53, s53, 4")
    e("s_and_b32 s54, s52, 1"); e("s_mul_i32 s54, s54, 1792"); e("s_add_u32 s53, s53, s54")
    e("s_lshr_b32 s54, s52, 1"); e("s_mul_i32 s54, s54, 896"); e("s_add_u32 s53, s53, s54")
    srd(40,24,25,3584)
    e(f"s_mov_b32 s62, {p.spin}")
    e("s_barrier")
    stamp(5)
    e("L_h2:")
    for i in range(4): e(f"buffer_load_dwordx4 v[{GQ+4*i}:{GQ+4*i+3}], v4, s[36:39], s51 offen offset:{i*1024} sc1")
    e("s_waitcnt vmcnt(0)")
    for k in range(4): tag_check(GQ+4*k,VTAG,BAD,T0,T1,k==0)
    poll_tail("L_h2",BAD,p.sleep2)
    stamp(6)
    for c in range(4):
        e(f"v_add_f32 v{GQ+c}, v{GQ+c}, v{GQ+4+c}"); e(f"v_add_f32 v{GQ+8+c}, v{GQ+8+c}, v{GQ+12+c}")
    for c in range(4): e(f"v_add_f32 v{GQ+c}, v{GQ+c}, v{GQ+8+c}")
    for rr in (2,4,8):
        if rr==2: nop(1)
        for c in range(4): e(f"v_add_f32_dpp v{GQ+c}, v{GQ+c}, v{GQ+c} row_ror:{rr} row_mask:0xf bank_mask:0xf")
    for sw in ("v_permlane16_swap_b32","v_permlane32_swap_b32"):
        for c in range(4): e(f"v_mov_b32 v{GQ+4+c}, v{GQ+c}")
        nop(1)
        for c in range(4): e(f"{sw} v{GQ+c}, v{GQ+4+c}")
        nop(1)
        for c in range(4): e(f"v_add_f32 v{GQ+c}, v{GQ+c}, v{GQ+4+c}")
    e(f"v_cvt_pk_bf16_f32 v{GQ}, v{GQ}, v{GQ+1}"); e(f"v_cvt_pk_bf16_f32 v{GQ+1}, v{GQ+2}, v{GQ+3}")
    e("s_mov_b64 exec, 3")
    e(f"buffer_store_dwordx2 v[{GQ}:{GQ+1}], v15, s[40:43], s53 offen")
    e("s_cmp_lg_u32 s2, 0"); e("s_cbranch_scc1 L_hend")
    e("s_mov_b64 exec, 1")
    e(f"buffer_store_dword v{VTAG}, v15, s[36:39], 0 offen sc1")
    e("L_hend:")
    stamp(7)
    write_stamps(8,8)
    e("L_end:")
    e("s_endpgm")
    body="\n".join("    "+x if not x.endswith(":") else x for x in L)
    txt = HDR + f"""; Generated by gen/gen.py (hand-designed schedule). One workgroup per CU: wave 0 = helper, waves 1-4 = streamers.
; @launch grid=(256,1,1) block=(320,1,1) lds={LDS_SIZE}
.amdgcn_target "amdgcn-amd-amdhsa--gfx950"
.text
.globl {NAME}
.p2align 8
.type {NAME},@function
{NAME}:
{body}
.section .rodata,"a"
.p2align 6
.amdhsa_kernel {NAME}
  .amdhsa_next_free_vgpr 256
  .amdhsa_next_free_sgpr 102
  .amdhsa_accum_offset 256
  .amdhsa_group_segment_fixed_size 0
  .amdhsa_kernarg_size 104
  .amdhsa_user_sgpr_count 2
  .amdhsa_user_sgpr_kernarg_segment_ptr 1
  .amdhsa_system_sgpr_workgroup_id_x 1
.end_amdhsa_kernel
"""
    return txt

if __name__=="__main__":
    p=P()
    out=sys.argv[1]
    for kv in sys.argv[2:]:
        k,v=kv.split("=")
        setattr(p,k, v if k=="order" else int(v))
    open(out,"w").write(gen(p))
```

```python
import sys, math
NAME = "concat_heads__gqa_block_cached__sliding_block_cached__decode_kernel"
HDR = open("concat_heads__gqa_block_cached__sliding_block_cached__decode.s.ref").read().split("; Override launch")[0]

H0_OFF  = 0x1000
H1L_OFF = 0x60000
H1_OFF  = 0x80000
H2_OFF  = 0x200000
WS_SIZE = 0x400000
STAMP_OFF = 0x1000000
LDS_Q = 0; LDS_O = 2048; LDS_ST = 2048+16384; LDS_SIZE = LDS_ST+128
TAGC = 0x3B5D7F91
CEXP = math.log2(math.e)/16.0
def f2u(x):
    import struct; return struct.unpack("<I", struct.pack("<f", x))[0]

class P:
    R=39; T=8; order="AK,BK,AV,BV"; mp=1; stamps=0; spin=100000; T0=8; sleep0=1; sleep1=1; sleep2=1
    first_delay=0; pol='nt'; polw='nt'

def POL(x): return '' if x=='none' else x.replace('+',' ')
def gen(p):
    L=[]; e=L.append
    def nop(n):
        if n>0: e(f"s_nop {n-1}")
    nst=[0]
    def stamp(i):
        if p.stamps: e(f"s_memrealtime s[{70+2*i}:{71+2*i}]")
    def srd(r, lo, hi, size):
        e(f"s_mov_b32 s{r}, s{lo}"); e(f"s_mov_b32 s{r+1}, s{hi}"); e(f"s_mov_b32 s{r+2}, {size:#x}"); e(f"s_mov_b32 s{r+3}, 0x20000")
    def write_stamps(n, slot0):
        if not p.stamps: return
        e("s_waitcnt lgkmcnt(0)")
        e(f"s_add_u32 s64, s28, {STAMP_OFF:#x}"); e("s_addc_u32 s65, s29, 0"); e("s_mov_b32 s66, 0x100000"); e("s_mov_b32 s67, 0x20000")
        e("s_lshl_b32 s68, s2, 7"); e(f"s_add_u32 s68, s68, {slot0*8}")
        e("s_mov_b64 exec, 1"); e("v_mov_b32 v1, 0")
        for i in range(n):
            e(f"v_mov_b32 v2, s{70+2*i}"); e(f"v_mov_b32 v3, s{71+2*i}")
            e(f"buffer_store_dwordx2 v[2:3], v1, s[64:67], s68 offen offset:{i*8}"); e("s_nop 1")
    stamp(0)
    e("s_cmp_ge_u32 s2, 256"); e("s_cbranch_scc1 L_end")
    e("s_load_dwordx16 s[4:19], s[0:1], 0")
    e("s_load_dwordx8 s[20:27], s[0:1], 64")
    e("s_load_dwordx2 s[28:29], s[0:1], 96")
    e("v_lshrrev_b32 v1, 6, v0")
    e("v_and_b32 v0, 63, v0")
    e("v_readfirstlane_b32 s3, v1")
    if p.mp==1:
        e("s_and_b32 s31, s2, 7"); e("s_bfe_u32 s32, s2, 0x10003"); e("s_lshr_b32 s33, s2, 4")
    else:
        e("s_bfe_u32 s31, s2, 0x30004"); e("s_lshr_b32 s32, s2, 7"); e("s_and_b32 s33, s2, 15")
    e("s_lshl_b32 s34, s32, 4"); e("s_add_u32 s34, s34, s33")
    e("v_and_b32 v2, 15, v0"); e("v_lshrrev_b32 v3, 4, v0")
    e("s_cmp_eq_u32 s3, 0"); e("s_cbranch_scc1 L_helper")

    def emit_masks(base):
        e("v_and_b32 v8, 1, v0"); e("v_lshlrev_b32 v8, 4, v8"); e("v_mov_b32 v9, 0xffff"); e("v_lshlrev_b32 v9, v8, v9")
        e("v_bfe_u32 v8, v0, 1, 2")
        for r in range(4):
            e(f"v_cmp_eq_u32 vcc, {r}, v8"); nop(2); e(f"v_cndmask_b32 v{base+r}, 0, v9, vcc")
    def emit_tagconsts():
        e(f"s_add_u32 s30, s30, {TAGC:#x}")
        for i in range(4): e(f"s_mov_b32 s{56+i}, {0x07060500+i:#x}")
        e("s_mov_b32 s60, 0x0c0c0400"); e("s_mov_b32 s61, 0x04000c0c")
    def tag_insert(r, vtag):
        for i in range(4): e(f"v_perm_b32 v{r+i}, v{r+i}, v{vtag}, s{56+i}")
    def tag_check(r, vtag, vbad, t0, t1, first):
        e(f"v_perm_b32 v{t0}, v{r+1}, v{r}, s60"); e(f"v_perm_b32 v{t1}, v{r+3}, v{r+2}, s61")
        if first: e(f"v_bitop3_b32 v{vbad}, v{t0}, v{t1}, v{vtag} bitop3:0x56")
        else:
            e(f"v_bitop3_b32 v{t0}, v{t0}, v{t1}, v{vtag} bitop3:0x56"); e(f"v_or_b32 v{vbad}, v{vbad}, v{t0}")
    def poll_tail(lbl, vbad, slp):
        e(f"v_cmp_ne_u32 vcc, 0, v{vbad}")
        e(f"s_cbranch_vccz {lbl}_done")
        e("s_sub_u32 s62, s62, 1"); e(f"s_cbranch_scc1 {lbl}_done")
        if slp: e(f"s_sleep {slp}")
        e(f"s_branch {lbl}")
        e(f"{lbl}_done:")
    def allred_rows(op, x, t):
        e(f"v_mov_b32 v{t}, v{x}"); nop(2); e(f"v_permlane16_swap_b32 v{x}, v{t}"); nop(1); e(f"{op} v{x}, v{x}, v{t}")
        e(f"v_mov_b32 v{t}, v{x}"); nop(2); e(f"v_permlane32_swap_b32 v{x}, v{t}"); nop(1); e(f"{op} v{x}, v{x}, v{t}")

    VK,VV,VW=4,5,6; VTAG=7; MK=10
    Q=14
    Q=16
    S=32
    DT=52
    AO=68
    ACC=76
    MX=92
    LS=94
    TM=96
    RING=100
    R=p.R; assert RING+4*R<=256
    e("s_sub_u32 s3, s3, 1")
    e("v_lshrrev_b32 v8, 2, v2"); e(f"v_lshlrev_b32 v{VK}, 11, v8"); e(f"v_lshl_add_u32 v{VK}, v3, 6, v{VK}")
    e("v_and_b32 v8, 3, v0"); e(f"v_lshl_add_u32 v{VK}, v8, 4, v{VK}")
    e(f"v_lshlrev_b32 v{VV}, 11, v3"); e(f"v_lshl_add_u32 v{VV}, v2, 4, v{VV}")
    e("s_lshl_b32 s35, s32, 3"); e("s_add_u32 s35, s35, s31"); e("s_lshl_b32 s35, s35, 22")
    e("s_lshl_b32 s54, s3, 13"); e("s_add_u32 s35, s35, s54")
    e("s_lshl_b32 s52, s33, 18"); e("s_add_u32 s52, s52, s35")
    e("s_lshl_b32 s53, s33, 16"); e("s_add_u32 s53, s53, s35"); e(f"s_add_u32 s53, s53, {6144*512:#x}")
    e("s_waitcnt lgkmcnt(0)")
    SRD={"AK":40,"AV":44,"BK":48,"BV":36}
    SRD={"AK":40,"AV":44,"BK":48,"BV":88}
    order=p.order.split(",")
    ptr={"AK":6,"AV":8,"BK":16,"BV":18}
    srd(SRD[order[0]], ptr[order[0]], ptr[order[0]]+1, 0x4000000)
    loads=[]
    for ph in order:
        br=0 if ph[0]=="A" else 1
        nt=8 if br==0 else 2
        for t in range(nt):
            for r in range(4):
                for hf in range(2): loads.append((ph,br,t,r,hf))
    NKV=len(loads)
    for t in range(8): loads.append(("WO",0,t,0,0))
    N=len(loads)
    st={"issued":0,"cur":None}
    def slot(i): return RING+4*(i%R)
    def issue(throttle=None):
        i=st["issued"]
        if i>=N: return
        ph,br,t,r,hf=loads[i]
        if throttle is not None and i>=throttle: e(f"s_waitcnt vmcnt({throttle-1})")
        d=slot(i)
        if ph=="WO":
            key=("WO",t//4)
            if st["cur"]!=key:
                e(f"s_add_u32 s55, s63, {(t//4)*4*896}"); st["cur"]=key
            e(f"buffer_load_dwordx4 v[{d}:{d+3}], v{VW}, s[92:95], s55 offen offset:{(t%4)*896} {POL(p.polw)}")
        else:
            key=(br,t)
            if st["cur"]!=key:
                e(f"s_add_u32 s55, s{52+br}, {t*32768}"); st["cur"]=key
            vo=VK if ph[1]=="K" else VV
            e(f"buffer_load_dwordx4 v[{d}:{d+3}], v{vo}, s[{SRD[ph]}:{SRD[ph]+3}], s55 offen offset:{r*512+hf*256} {POL(p.pol)}")
        st["issued"]+=1
    for i in range(p.T0): issue()
    e("s_load_dword s30, s[28:29], 0")
    for ph in order[1:]: srd(SRD[ph], ptr[ph], ptr[ph]+1, 0x4000000)
    srd(36,28,29,WS_SIZE)
    e("s_cmp_ge_u32 s34, 16"); e("s_cselect_b32 s92, s22, s12"); e("s_cselect_b32 s93, s23, s13")
    e(f"s_mov_b32 s94, {4096*896:#x}"); e("s_mov_b32 s95, 0x20000")
    e("s_and_b32 s54, s34, 15"); e("s_lshl_b32 s54, s54, 5"); e("s_lshl_b32 s63, s31, 9"); e("s_add_u32 s63, s63, s54"); e("s_mul_i32 s63, s63, 896")
    e(f"v_mul_u32_u24 v{VW}, {8*896}, v3"); e(f"v_lshl_add_u32 v{VW}, v2, 4, v{VW}")
    e("s_lshl_b32 s54, s3, 8"); e(f"v_add_u32 v{VW}, s54, v{VW}")
    e("s_lshl_b32 s54, s3, 4"); e("v_add_u32 v8, s54, v2")
    e("v_mov_b32 v14, v8")
    e("v_cmp_gt_u32 vcc, 56, v8"); e("v_mov_b32 v9, 0x40000000"); nop(1); e(f"v_cndmask_b32 v{VW}, v9, v{VW}, vcc")
    emit_masks(MK)
    e("v_bfe_u32 v8, v0, 3, 1"); e("v_lshlrev_b32 v15, 9, v8"); e("v_lshl_add_u32 v15, v3, 6, v15")
    e("v_and_b32 v8, 3, v0"); e("v_lshl_add_u32 v15, v8, 4, v15")
    for br in range(2):
        e(f"v_mov_b32 v{MX+br}, 0xff800000"); e(f"v_mov_b32 v{LS+br}, 0")
    e(f"s_mov_b32 s96, {f2u(CEXP):#x}"); e("s_mov_b32 s97, 0xffff0000")
    while st["issued"]<R: issue(p.T)
    e("s_waitcnt lgkmcnt(0)")
    emit_tagconsts()
    e(f"v_mov_b32 v{VTAG}, s30")
    stamp(1)
    e("s_barrier")
    stamp(2)
    for br in range(2):
        for hf in range(2):
            q=Q+br*8+hf*4
            e(f"ds_read_b128 v[{q}:{q+3}], v15 offset:{LDS_Q+br*1024+hf*256}")
    e("s_waitcnt lgkmcnt(0)")
    groups=[loads[i] for i in range(0,NKV,2)]
    NG=len(groups)
    def sreg(br,t,r): return S+(0 if br==0 else 16)+t*2+(r>>1)
    lastm={}
    def need(dist, idx):
        n=dist-(len(L)-idx-1)
        if n>0: nop(n)
    def k_post(gi):
        ph,br,t,r,_=groups[gi]; d0=DT+4*((gi-1)%4); d1=DT+4*(gi%4)
        def qp(c): return f"quad_perm:[{c},{c},{c},{c}] row_mask:0xf bank_mask:0xf"
        need(8,lastm[gi-1])
        e(f"v_mov_b32_dpp v{TM}, v{d0} {qp(0)}"); e(f"v_mov_b32_dpp v{TM+1}, v{d0+2} {qp(2)}")
        need(8,lastm[gi])
        e(f"v_mov_b32_dpp v{TM+2}, v{d1} {qp(0)}"); e(f"v_mov_b32_dpp v{TM+3}, v{d1+2} {qp(2)}")
        e(f"v_add_f32_dpp v{TM}, v{d0+1}, v{TM} {qp(1)}"); e(f"v_add_f32_dpp v{TM+1}, v{d0+3}, v{TM+1} {qp(3)}")
        e(f"v_add_f32_dpp v{TM+2}, v{d1+1}, v{TM+2} {qp(1)}"); e(f"v_add_f32_dpp v{TM+3}, v{d1+3}, v{TM+3} {qp(3)}")
        e(f"v_add_f32 v{TM}, v{TM}, v{TM+1}"); e(f"v_add_f32 v{TM+2}, v{TM+2}, v{TM+3}")
        s=sreg(br,t,r)
        e(f"v_cvt_pk_bf16_f32 v{s}, v{TM}, v{TM+2}")
        e(f"v_lshlrev_b32 v{TM}, 16, v{s}"); e(f"v_and_b32 v{TM+1}, s97, v{s}")
        e(f"v_max3_f32 v{MX+br}, v{TM}, v{TM+1}, v{MX+br}")
    def v_pre(gi):
        ph,br,t,r,_=groups[gi]; s=sreg(br,t,r); a=AO+4*(gi%2)
        if r&1: e(f"v_and_b32 v{TM}, s97, v{s}")
        else: e(f"v_lshlrev_b32 v{TM}, 16, v{s}")
        e(f"v_fma_f32 v{TM}, v{TM}, s96, -v{MX+br}")
        e(f"v_exp_f32 v{TM}, v{TM}"); nop(1)
        e(f"v_cvt_pk_bf16_f32 v{TM+1}, v{TM}, v{TM}")
        for c in range(4): e(f"v_and_b32 v{a+c}, v{MK+c}, v{TM+1}")
        e(f"v_add_f32 v{LS+br}, v{LS+br}, v{TM}")
    def fin_max(br):
        allred_rows("v_max_f32", MX+br, TM)
        e(f"v_mul_f32 v{MX+br}, s96, v{MX+br}")
    def fin_branch(br):
        allred_rows("v_add_f32", LS+br, TM)
        e(f"v_lshrrev_b32 v{TM}, 5, v0"); e(f"v_lshlrev_b32 v{TM}, 10, v{TM}"); e(f"v_lshl_add_u32 v{TM}, v2, 5, v{TM}")
        e(f"v_and_b32 v{TM+1}, 1, v3"); e(f"v_lshl_add_u32 v{TM}, v{TM+1}, 4, v{TM}")
        e("s_lshl_b32 s54, s3, 12"); e(f"v_add_u32 v{TM}, s54, v{TM}")
        for hf in range(2):
            a=ACC+br*8+hf*4
            e(f"ds_write_b128 v{TM}, v[{a}:{a+3}] offset:{LDS_O+br*2048+hf*512}")
        e(f"v_bfe_u32 v{TM}, v0, 3, 1"); e(f"v_lshlrev_b32 v{TM}, 5, v{TM}"); e("s_lshl_b32 s54, s3, 3"); e(f"v_add_u32 v{TM}, s54, v{TM}")
        e(f"v_mov_b32 v{TM+2}, v{MX+br}"); e(f"v_mov_b32 v{TM+3}, v{LS+br}")
        e(f"ds_write_b64 v{TM}, v[{TM+2}:{TM+3}] offset:{LDS_ST+br*64}")
    pend_k=[]
    maxdone=set(); predone=set(); pend_fin=[]
    def flush_k(keep):
        while len(pend_k)>keep: k_post(pend_k.pop(0))
    for gi in range(NG):
        ph,br,t,r,_=groups[gi]
        i0=2*gi
        if ph[1]=="V" and gi not in predone:
            if br not in maxdone:
                if any(groups[x][1]==br for x in pend_k):
                    flush_k(0)
                fin_max(br); maxdone.add(br)
            v_pre(gi); predone.add(gi); nop(2)
        for hf in range(2):
            i=i0+hf
            e(f"s_waitcnt vmcnt({st['issued']-i-1})")
            d=slot(i)
            if ph[1]=="K":
                D=DT+4*(gi%4); q=Q+br*8+hf*4
                c="0" if hf==0 else f"v[{D}:{D+3}]"
                e(f"v_mfma_f32_16x16x32_bf16 v[{D}:{D+3}], v[{d}:{d+3}], v[{q}:{q+3}], {c}")
            else:
                a=AO+4*(gi%2); D=ACC+br*8+hf*4
                c="0" if (t==0 and r==0) else f"v[{D}:{D+3}]"
                e(f"v_mfma_f32_16x16x32_bf16 v[{D}:{D+3}], v[{a}:{a+3}], v[{d}:{d+3}], {c}")
        lastm[gi]=len(L)-1
        consumed=i0+2
        lag=st["issued"]-consumed
        if lag>=p.T: issue(p.T)
        else:
            while st["issued"]-consumed<p.T and st["issued"]<N: issue()
        flush_k(0)
        if ph[1]=="K" and (r&1): pend_k.append(gi)
        if pend_fin and pend_fin[0][1]<gi:
            fin_branch(pend_fin.pop(0)[0])
        if ph[1]=="V" and (gi+1==NG or groups[gi+1][0]!=ph): pend_fin.append((br,gi))
        if gi+1<NG:
            nph,nbr,_,_,_=groups[gi+1]
            if nph[1]=="V" and (nbr in maxdone or not any(groups[x][1]==nbr for x in pend_k)):
                if nbr not in maxdone: fin_max(nbr); maxdone.add(nbr)
                v_pre(gi+1); predone.add(gi+1)
    while st["issued"]<N: issue()
    stamp(3)
    while pend_fin: fin_branch(pend_fin.pop(0)[0])
    e("s_waitcnt lgkmcnt(0)")
    e("s_barrier")
    stamp(4)
    G=16
    e(f"v_lshlrev_b32 v8, 4, v0"); e("s_lshl_b32 s54, s3, 10"); e("v_add_u32 v8, s54, v8")
    e("s_lshl_b32 s54, s3, 5"); e("v_mov_b32 v9, s54")
    e(f"ds_read_b128 v[{G}:{G+3}], v9 offset:{LDS_ST}"); e(f"ds_read_b128 v[{G+4}:{G+7}], v9 offset:{LDS_ST+16}")
    for w in range(4): e(f"ds_read_b128 v[{G+8+4*w}:{G+11+4*w}], v8 offset:{LDS_O+w*4096}")
    e("v_lshrrev_b32 v8, 3, v0"); e("v_lshlrev_b32 v8, 12, v8"); e("v_and_b32 v9, 7, v0"); e("v_lshl_add_u32 v8, v9, 4, v8")
    e("s_lshl_b32 s54, s31, 2"); e("s_add_u32 s54, s54, s3")
    e("s_lshl_b32 s55, s54, 15"); e("s_lshl_b32 s98, s34, 7"); e("s_add_u32 s55, s55, s98"); e(f"s_add_u32 s55, s55, {H1_OFF:#x}")
    e("s_lshl_b32 s54, s54, 8"); e("s_lshl_b32 s98, s34, 3"); e("s_add_u32 s54, s54, s98"); e(f"s_add_u32 s54, s54, {H1L_OFF:#x}")
    e("s_waitcnt lgkmcnt(0)" if p.stamps else "s_waitcnt lgkmcnt(4)")
    M=G+24
    e(f"v_max3_f32 v{M}, v{G}, v{G+2}, v{G+4}"); e(f"v_max_f32 v{M}, v{M}, v{G+6}")
    for w in range(4): e(f"v_sub_f32 v{G+2*w}, v{G+2*w}, v{M}")
    for w in range(4): e(f"v_exp_f32 v{G+2*w}, v{G+2*w}")
    nop(1)
    e(f"v_mul_f32 v{M+1}, v{G}, v{G+1}")
    for w in range(1,4): e(f"v_fmac_f32 v{M+1}, v{G+2*w}, v{G+2*w+1}")
    e(f"v_rcp_f32 v{M+2}, v{M+1}"); e(f"v_log_f32 v{M+3}, v{M+1}"); nop(1)
    for w in range(4): e(f"v_mul_f32 v{G+2*w}, v{G+2*w}, v{M+2}")
    e(f"v_add_f32 v{M+4}, v{M}, v{M+3}"); e(f"v_mov_b32 v{M+5}, v{VTAG}")
    e("s_waitcnt lgkmcnt(0)")
    O=M+8
    for c in range(4): e(f"v_mul_f32 v{O+c}, v{G}, v{G+8+c}")
    for w in range(1,4):
        for c in range(4): e(f"v_fmac_f32 v{O+c}, v{G+2*w}, v{G+8+4*w+c}")
    tag_insert(O,VTAG)
    e(f"buffer_store_dwordx4 v[{O}:{O+3}], v8, s[36:39], s55 offen sc1")
    e("v_mov_b32 v9, 0"); e("s_mov_b64 exec, 1")
    e(f"buffer_store_dwordx2 v[{M+4}:{M+5}], v9, s[36:39], s54 offen sc1")
    e("s_mov_b64 exec, -1")
    stamp(5)
    e("v_lshlrev_b32 v8, 8, v2"); e("v_lshl_add_u32 v8, v3, 5, v8")
    e("v_lshlrev_b32 v9, 4, v2")
    e("s_lshl_b32 s55, s31, 5"); e("s_add_u32 s55, s55, s34"); e("s_lshl_b32 s55, s55, 12"); e(f"s_add_u32 s55, s55, {H1_OFF:#x}")
    e("s_lshr_b32 s98, s34, 3"); e("s_lshl_b32 s54, s31, 2"); e("s_add_u32 s54, s54, s98"); e("s_lshl_b32 s54, s54, 8"); e(f"s_add_u32 s54, s54, {H1L_OFF:#x}")
    e(f"s_mov_b32 s62, {p.spin}")
    A0=16; A1=24; LL=32; BAD=36; T0=37; T1=38
    e("L_h1:")
    e(f"buffer_load_dwordx4 v[{LL}:{LL+3}], v9, s[36:39], s54 offen sc1")
    e(f"buffer_load_dwordx4 v[{A0}:{A0+3}], v8, s[36:39], s55 offen sc1")
    e(f"buffer_load_dwordx4 v[{A0+4}:{A0+7}], v8, s[36:39], s55 offen offset:16 sc1")
    e(f"buffer_load_dwordx4 v[{A1}:{A1+3}], v8, s[36:39], s55 offen offset:128 sc1")
    e(f"buffer_load_dwordx4 v[{A1+4}:{A1+7}], v8, s[36:39], s55 offen offset:144 sc1")
    e("s_waitcnt vmcnt(0)")
    for k,r in enumerate([A0,A0+4,A1,A1+4]): tag_check(r,VTAG,BAD,T0,T1,k==0)
    e(f"v_xor_b32 v{T0}, v{LL+1}, v{VTAG}"); e(f"v_xor_b32 v{T1}, v{LL+3}, v{VTAG}"); e(f"v_or3_b32 v{BAD}, v{BAD}, v{T0}, v{T1}")
    poll_tail("L_h1",BAD,p.sleep1)
    stamp(6)
    def red8(op,x):
        out=[]
        for dp in ["quad_perm:[1,0,3,2]","quad_perm:[2,3,0,1]","row_half_mirror"]:
            out.append(f"{op}_dpp v{x}, v{x}, v{x} {dp} row_mask:0xf bank_mask:0xf")
        return out
    MXX=40
    e(f"v_max_f32 v{MXX}, v{LL}, v{LL+2}")
    for ins in red8("v_max_f32",MXX): nop(2); e(ins)
    e(f"v_sub_f32 v{LL}, v{LL}, v{MXX}"); e(f"v_sub_f32 v{LL+2}, v{LL+2}, v{MXX}")
    e(f"v_exp_f32 v{LL}, v{LL}"); e(f"v_exp_f32 v{LL+2}, v{LL+2}"); nop(1)
    W=41
    e(f"v_add_f32 v{W}, v{LL}, v{LL+2}")
    for c in range(8): e(f"v_mul_f32 v{A0+c}, v{LL}, v{A0+c}")
    for c in range(8): e(f"v_fmac_f32 v{A0+c}, v{LL+2}, v{A1+c}")
    regs=[W]+[A0+c for c in range(8)]
    for stp in range(3):
        for x in regs: e(red8("v_add_f32",x)[stp])
    e(f"v_rcp_f32 v{W}, v{W}"); nop(1)
    for c in range(8): e(f"v_mul_f32 v{A0+c}, v{W}, v{A0+c}")
    for c in range(8): e(f"v_cvt_pk_bf16_f32 v{A0+c}, v{A0+c}, v{A0+c}")
    DO=44
    AB=48
    for t in range(8):
        for c in range(4): e(f"v_and_b32 v{AB+4*t+c}, v{MK+c}, v{A0+t}")
    e("v_lshrrev_b32 v8, 5, v0"); e("v_mul_u32_u24 v8, 56, v8"); e("v_add_u32 v8, v8, v14"); e("v_lshlrev_b32 v8, 12, v8")
    for t in range(8):
        d=slot(NKV+t); c="0" if t==0 else f"v[{DO}:{DO+3}]"
        e(f"v_mfma_f32_16x16x32_bf16 v[{DO}:{DO+3}], v[{AB+4*t}:{AB+4*t+3}], v[{d}:{d+3}], {c}")
    e("v_and_b32 v9, 1, v3"); e("v_lshl_add_u32 v8, v9, 4, v8")
    e("v_cmp_gt_u32 vcc, 56, v14"); e("v_mov_b32 v9, 0x40000000")
    e("s_lshr_b32 s54, s34, 4"); e(f"s_mul_i32 s54, s54, {112*4096}"); e("v_cndmask_b32 v8, v9, v8, vcc")
    e("s_and_b32 s55, s34, 15"); e("s_lshl_b32 s98, s31, 4"); e("s_add_u32 s55, s55, s98"); e("s_lshl_b32 s55, s55, 5")
    e("s_add_u32 s54, s54, s55"); e(f"s_add_u32 s54, s54, {H2_OFF:#x}")
    nop(2)
    tag_insert(DO,VTAG)
    e(f"buffer_store_dwordx4 v[{DO}:{DO+3}], v8, s[36:39], s54 offen sc1")
    stamp(7)
    if p.stamps:
        e("s_cmp_lg_u32 s3, 0"); e("s_cbranch_scc1 L_end")
        write_stamps(8,0)
    e("s_endpgm")

    e("L_helper:")
    e("s_setprio 3")
    X=16
    WQ=64
    e("v_bfe_u32 v8, v0, 3, 1"); e("v_mul_u32_u24 v4, 896, v8"); e("v_mul_u32_u24 v8, 56, v3"); e("v_add_u32 v4, v4, v8")
    e(f"v_mul_u32_u24 v5, {28*8192}, v3"); e("v_lshl_add_u32 v5, v2, 4, v5")
    e("s_and_b32 s35, s34, 3"); e("s_mul_i32 s52, s35, 224")
    e(f"s_mul_i32 s53, s35, {112*8192}"); e("s_lshl_b32 s54, s31, 10"); e("s_add_u32 s53, s53, s54")
    e("s_bfe_u32 s54, s34, 0x20002"); e("s_lshl_b32 s54, s54, 8"); e("s_add_u32 s53, s53, s54")
    e("s_cmp_ge_u32 s34, 16")
    e("s_waitcnt lgkmcnt(0)")
    e("s_cselect_b32 s40, s14, s4"); e("s_cselect_b32 s41, s15, s5"); e("s_mov_b32 s42, 1792"); e("s_mov_b32 s43, 0x20000")
    e("s_cselect_b32 s44, s20, s10"); e("s_cselect_b32 s45, s21, s11"); e(f"s_mov_b32 s46, {448*8192:#x}"); e("s_mov_b32 s47, 0x20000")
    e(f"buffer_load_dwordx4 v[{X}:{X+3}], v4, s[40:43], s52 offen")
    e(f"buffer_load_dwordx4 v[{X+4}:{X+7}], v4, s[40:43], s52 offen offset:16")
    e(f"buffer_load_dwordx4 v[{X+8}:{X+11}], v4, s[40:43], s52 offen offset:32")
    e(f"buffer_load_dwordx2 v[{X+12}:{X+13}], v4, s[40:43], s52 offen offset:48")
    for t in range(28):
        e(f"buffer_load_dwordx4 v[{WQ+4*t}:{WQ+4*t+3}], v5, s[44:47], s53 offen {POL(p.polw)}")
        if t<27: e("s_add_u32 s53, s53, 8192")
    e("s_load_dword s30, s[28:29], 0")
    srd(36,28,29,WS_SIZE)
    emit_masks(MK)
    e("s_mov_b32 s48, 0x01000100"); e("s_mov_b32 s49, 0x03020302")
    e("v_lshrrev_b32 v8, 5, v0"); e("v_lshlrev_b32 v6, 14, v8"); e("v_lshl_add_u32 v6, v2, 5, v6"); e("v_and_b32 v9, 1, v3"); e("v_lshl_add_u32 v6, v9, 4, v6")
    e("s_lshl_b32 s50, s31, 15"); e("s_lshl_b32 s54, s34, 9"); e("s_add_u32 s50, s50, s54"); e(f"s_add_u32 s50, s50, {H0_OFF:#x}")
    e("v_lshlrev_b32 v14, 11, v8"); e("v_and_b32 v9, 31, v0"); e("v_lshl_add_u32 v14, v9, 4, v14")
    e("s_lshl_b32 s51, s31, 1"); e("s_add_u32 s51, s51, s32"); e("s_lshl_b32 s51, s51, 14"); e(f"s_add_u32 s51, s51, {H0_OFF:#x}")
    e("v_lshlrev_b32 v15, 3, v0")
    e("s_waitcnt lgkmcnt(0)")
    emit_tagconsts()
    e(f"v_mov_b32 v{VTAG}, s30")
    e("s_waitcnt vmcnt(28)")
    stamp(1)
    DQ=32; AQ=36
    def aq(t):
        a=AQ+4*(t%2)
        e(f"v_perm_b32 v8, v{X+t//2}, v{X+t//2}, s{48+(t&1)}")
        for c in range(4): e(f"v_and_b32 v{a+c}, v{MK+c}, v8")
    aq(0)
    for t in range(28):
        if t+1<28: aq(t+1)
        else: nop(2)
        e(f"s_waitcnt vmcnt({27-t})")
        a=AQ+4*(t%2); c="0" if t==0 else f"v[{DQ}:{DQ+3}]"
        e(f"v_mfma_f32_16x16x32_bf16 v[{DQ}:{DQ+3}], v[{a}:{a+3}], v[{WQ+4*t}:{WQ+4*t+3}], {c}")
    nop(8)
    tag_insert(DQ,VTAG)
    e(f"buffer_store_dwordx4 v[{DQ}:{DQ+3}], v6, s[36:39], s50 offen sc1")
    stamp(2)
    e(f"s_mov_b32 s62, {p.spin}")
    if p.first_delay: e(f"s_sleep {p.first_delay}")
    GQ=64; BAD=44; T0=45; T1=46
    e("L_h0:")
    for pi in range(4):
        e(f"s_add_u32 s54, s51, {pi*4096}")
        for kq in range(4):
            r=GQ+16*pi+4*kq
            e(f"buffer_load_dwordx4 v[{r}:{r+3}], v14, s[36:39], s54 offen offset:{kq*512} sc1")
    e("s_waitcnt vmcnt(0)")
    for k in range(16): tag_check(GQ+4*k,VTAG,BAD,T0,T1,k==0)
    poll_tail("L_h0",BAD,p.sleep0)
    stamp(3)
    for pi in range(4):
        r=GQ+16*pi
        for c in range(4):
            e(f"v_add_f32 v{r+c}, v{r+c}, v{r+4+c}"); e(f"v_add_f32 v{r+8+c}, v{r+8+c}, v{r+12+c}")
        for c in range(4): e(f"v_add_f32 v{r+c}, v{r+c}, v{r+8+c}")
        e(f"v_cvt_pk_bf16_f32 v{r}, v{r}, v{r+1}"); e(f"v_cvt_pk_bf16_f32 v{r+1}, v{r+2}, v{r+3}")
        e(f"ds_write_b64 v15, v[{r}:{r+1}] offset:{LDS_Q+pi*512}")
    e("s_waitcnt lgkmcnt(0)")
    e("s_barrier")
    stamp(4)
    e("s_cmp_ge_u32 s2, 224"); e("s_cbranch_scc1 L_hend")
    e("v_lshlrev_b32 v4, 4, v0")
    e("s_lshl_b32 s51, s2, 12"); e(f"s_add_u32 s51, s51, {H2_OFF:#x}")
    e("s_mul_i32 s52, s2, 1171"); e("s_lshr_b32 s52, s52, 16")
    e("s_mul_i32 s53, s52, 56"); e("s_sub_u32 s53, s2, s53")
    e("s_lshl_b32 s53, s53, 4")
    e("s_and_b32 s54, s52, 1"); e("s_mul_i32 s54, s54, 1792"); e("s_add_u32 s53, s53, s54")
    e("s_lshr_b32 s54, s52, 1"); e("s_mul_i32 s54, s54, 896"); e("s_add_u32 s53, s53, s54")
    srd(40,24,25,3584)
    e(f"s_mov_b32 s62, {p.spin}")
    e("s_barrier")
    stamp(5)
    e("L_h2:")
    for i in range(4): e(f"buffer_load_dwordx4 v[{GQ+4*i}:{GQ+4*i+3}], v4, s[36:39], s51 offen offset:{i*1024} sc1")
    e("s_waitcnt vmcnt(0)")
    for k in range(4): tag_check(GQ+4*k,VTAG,BAD,T0,T1,k==0)
    poll_tail("L_h2",BAD,p.sleep2)
    stamp(6)
    for c in range(4):
        e(f"v_add_f32 v{GQ+c}, v{GQ+c}, v{GQ+4+c}"); e(f"v_add_f32 v{GQ+8+c}, v{GQ+8+c}, v{GQ+12+c}")
    for c in range(4): e(f"v_add_f32 v{GQ+c}, v{GQ+c}, v{GQ+8+c}")
    for rr in (2,4,8):
        if rr==2: nop(1)
        for c in range(4): e(f"v_add_f32_dpp v{GQ+c}, v{GQ+c}, v{GQ+c} row_ror:{rr} row_mask:0xf bank_mask:0xf")
    for sw in ("v_permlane16_swap_b32","v_permlane32_swap_b32"):
        for c in range(4): e(f"v_mov_b32 v{GQ+4+c}, v{GQ+c}")
        nop(1)
        for c in range(4): e(f"{sw} v{GQ+c}, v{GQ+4+c}")
        nop(1)
        for c in range(4): e(f"v_add_f32 v{GQ+c}, v{GQ+c}, v{GQ+4+c}")
    e(f"v_cvt_pk_bf16_f32 v{GQ}, v{GQ}, v{GQ+1}"); e(f"v_cvt_pk_bf16_f32 v{GQ+1}, v{GQ+2}, v{GQ+3}")
    e("s_mov_b64 exec, 3")
    e(f"buffer_store_dwordx2 v[{GQ}:{GQ+1}], v15, s[40:43], s53 offen")
    e("s_cmp_lg_u32 s2, 0"); e("s_cbranch_scc1 L_hend")
    e("s_mov_b64 exec, 1")
    e(f"buffer_store_dword v{VTAG}, v15, s[36:39], 0 offen sc1")
    e("L_hend:")
    stamp(7)
    write_stamps(8,8)
    e("L_end:")
    e("s_endpgm")
    body="\n".join("    "+x if not x.endswith(":") else x for x in L)
    txt = HDR + f"""; Generated by gen/gen.py (hand-designed schedule). One workgroup per CU: wave 0 = helper, waves 1-4 = streamers.
; @launch grid=(256,1,1) block=(320,1,1) lds={LDS_SIZE}
.amdgcn_target "amdgcn-amd-amdhsa--gfx950"
.text
.globl {NAME}
.p2align 8
.type {NAME},@function
{NAME}:
{body}
.section .rodata,"a"
.p2align 6
.amdhsa_kernel {NAME}
  .amdhsa_next_free_vgpr 256
  .amdhsa_next_free_sgpr 102
  .amdhsa_accum_offset 256
  .amdhsa_group_segment_fixed_size 0
  .amdhsa_kernarg_size 104
  .amdhsa_user_sgpr_count 2
  .amdhsa_user_sgpr_kernarg_segment_ptr 1
  .amdhsa_system_sgpr_workgroup_id_x 1
.end_amdhsa_kernel
"""
    return txt

if __name__=="__main__":
    p=P()
    out=sys.argv[1]
    for kv in sys.argv[2:]:
        k,v=kv.split("=")
        setattr(p,k, v if k in ("order","pol","polw") else int(v))
    open(out,"w").write(gen(p))
```

```python
import sys, math
NAME = "concat_heads__gqa_block_cached__sliding_block_cached__decode_kernel"
HDR = open("concat_heads__gqa_block_cached__sliding_block_cached__decode.s.ref").read().split("; Override launch")[0]

H0_OFF  = 0x1000
H1L_OFF = 0x60000
H1_OFF  = 0x80000
H2_OFF  = 0x200000
WS_SIZE = 0x400000
STAMP_OFF = 0x1000000
LDS_Q = 0; LDS_O = 2048; LDS_ST = 2048+16384; LDS_OX = LDS_ST+128; LDS_FL = LDS_OX+256; LDS_SIZE = LDS_FL+16
TAGC = 0x3B5D7F91
CEXP = math.log2(math.e)/16.0
def f2u(x):
    import struct; return struct.unpack("<I", struct.pack("<f", x))[0]

class P:
    R=39; T=7; order="AK,BK,AV,BV"; mp=0; stamps=0; spin=100000; T0=5; sleep0=1; sleep1=1; sleep2=1
    first_delay=30; bk1=2; bk2=2; kpat=1; bar0=1; TI=5; pol='nt'; polw='nt'

def POL(x): return '' if x=='none' else x.replace('+',' ')
def gen(p):
    L=[]; e=L.append
    def nop(n):
        if n>0: e(f"s_nop {n-1}")
    nst=[0]
    def stamp(i):
        if p.stamps: e(f"s_memrealtime s[{70+2*i}:{71+2*i}]")
    def srd(r, lo, hi, size):
        e(f"s_mov_b32 s{r}, s{lo}"); e(f"s_mov_b32 s{r+1}, s{hi}"); e(f"s_mov_b32 s{r+2}, {size:#x}"); e(f"s_mov_b32 s{r+3}, 0x20000")
    def write_stamps(n, slot0):
        if not p.stamps: return
        e("s_waitcnt lgkmcnt(0)")
        e(f"s_add_u32 s64, s28, {STAMP_OFF:#x}"); e("s_addc_u32 s65, s29, 0"); e("s_mov_b32 s66, 0x100000"); e("s_mov_b32 s67, 0x20000")
        e("s_lshl_b32 s68, s2, 7"); e(f"s_add_u32 s68, s68, {slot0*8}")
        e("s_mov_b64 exec, 1"); e("v_mov_b32 v1, 0")
        for i in range(n):
            e(f"v_mov_b32 v2, s{70+2*i}"); e(f"v_mov_b32 v3, s{71+2*i}")
            e(f"buffer_store_dwordx2 v[2:3], v1, s[64:67], s68 offen offset:{i*8}"); e("s_nop 1")
    stamp(0)
    e("s_cmp_ge_u32 s2, 256"); e("s_cbranch_scc1 L_end")
    e("s_load_dwordx16 s[4:19], s[0:1], 0")
    e("s_load_dwordx8 s[20:27], s[0:1], 64")
    e("s_load_dwordx2 s[28:29], s[0:1], 96")
    e("v_lshrrev_b32 v1, 6, v0")
    e("v_and_b32 v0, 63, v0")
    e("v_readfirstlane_b32 s3, v1")
    if p.mp==1:
        e("s_and_b32 s31, s2, 7"); e("s_bfe_u32 s32, s2, 0x10003"); e("s_lshr_b32 s33, s2, 4")
    else:
        e("s_bfe_u32 s31, s2, 0x30004"); e("s_lshr_b32 s32, s2, 7"); e("s_and_b32 s33, s2, 15")
    e("s_lshl_b32 s34, s32, 4"); e("s_add_u32 s34, s34, s33")
    e("v_and_b32 v2, 15, v0"); e("v_lshrrev_b32 v3, 4, v0")
    e("s_cmp_eq_u32 s3, 0"); e("s_cbranch_scc1 L_helper")

    def emit_masks(base):
        e("v_and_b32 v8, 1, v0"); e("v_lshlrev_b32 v8, 4, v8"); e("v_mov_b32 v9, 0xffff"); e("v_lshlrev_b32 v9, v8, v9")
        e("v_bfe_u32 v8, v0, 1, 2")
        for r in range(4):
            e(f"v_cmp_eq_u32 vcc, {r}, v8"); nop(2); e(f"v_cndmask_b32 v{base+r}, 0, v9, vcc")
    def emit_tagconsts():
        e(f"s_add_u32 s30, s30, {TAGC:#x}")
        for i in range(4): e(f"s_mov_b32 s{56+i}, {0x07060500+i:#x}")
        e("s_mov_b32 s60, 0x0c0c0400"); e("s_mov_b32 s61, 0x04000c0c")
    def tag_insert(r, vtag):
        for i in range(4): e(f"v_perm_b32 v{r+i}, v{r+i}, v{vtag}, s{56+i}")
    def tag_check(r, vtag, vbad, t0, t1, first):
        e(f"v_perm_b32 v{t0}, v{r+1}, v{r}, s60"); e(f"v_perm_b32 v{t1}, v{r+3}, v{r+2}, s61")
        if first: e(f"v_bitop3_b32 v{vbad}, v{t0}, v{t1}, v{vtag} bitop3:0x56")
        else:
            e(f"v_bitop3_b32 v{t0}, v{t0}, v{t1}, v{vtag} bitop3:0x56"); e(f"v_or_b32 v{vbad}, v{vbad}, v{t0}")
    def poll_tail(lbl, vbad, slp):
        e(f"v_cmp_ne_u32 vcc, 0, v{vbad}")
        e(f"s_cbranch_vccz {lbl}_done")
        e("s_sub_u32 s62, s62, 1"); e(f"s_cbranch_scc1 {lbl}_done")
        if slp: e(f"s_sleep {slp}")
        e(f"s_branch {lbl}")
        e(f"{lbl}_done:")
    def poll_tail_masked(lbl, bk):
        e("s_and_b64 exec, exec, vcc")
        e(f"s_cbranch_scc0 {lbl}_done")
        e("s_sub_u32 s62, s62, 1"); e(f"s_cbranch_scc1 {lbl}_done")
        e("s_bcnt1_i32_b64 s99, exec"); e(f"s_lshr_b32 s99, s99, {bk}")
        e(f"{lbl}_slp:")
        e("s_sub_u32 s99, s99, 1"); e(f"s_cbranch_scc1 {lbl}")
        e("s_sleep 1"); e(f"s_branch {lbl}_slp")
        e(f"{lbl}_done:")
        e("s_mov_b64 exec, -1")
    def allred_rows(op, x, t):
        e(f"v_mov_b32 v{t}, v{x}"); nop(2); e(f"v_permlane16_swap_b32 v{x}, v{t}"); nop(1); e(f"{op} v{x}, v{x}, v{t}")
        e(f"v_mov_b32 v{t}, v{x}"); nop(2); e(f"v_permlane32_swap_b32 v{x}, v{t}"); nop(1); e(f"{op} v{x}, v{x}, v{t}")

    VK,VV,VW=4,5,6; VTAG=7; MK=10
    Q=14
    Q=16
    S=32
    DT=52
    AO=68
    ACC=76
    MX=92
    LS=94
    TM=96
    RING=100
    R=p.R; assert RING+4*R<=256
    e("s_sub_u32 s3, s3, 1")
    e("v_lshrrev_b32 v8, 2, v2"); e(f"v_lshlrev_b32 v{VK}, 11, v8"); e(f"v_lshl_add_u32 v{VK}, v3, 6, v{VK}")
    e("v_and_b32 v8, 3, v0"); e(f"v_lshl_add_u32 v{VK}, v8, 4, v{VK}")
    e(f"v_lshlrev_b32 v{VV}, 11, v3"); e(f"v_lshl_add_u32 v{VV}, v2, 4, v{VV}")
    e("s_lshl_b32 s35, s32, 3"); e("s_add_u32 s35, s35, s31"); e("s_lshl_b32 s35, s35, 22")
    e("s_lshl_b32 s54, s3, 13"); e("s_add_u32 s35, s35, s54")
    e("s_lshl_b32 s52, s33, 18"); e("s_add_u32 s52, s52, s35")
    e("s_lshl_b32 s53, s33, 16"); e("s_add_u32 s53, s53, s35"); e(f"s_add_u32 s53, s53, {6144*512:#x}")
    e("s_waitcnt lgkmcnt(0)")
    SRD={"AK":40,"AV":44,"BK":48,"BV":36}
    SRD={"AK":40,"AV":44,"BK":48,"BV":88}
    order=p.order.split(",")
    ptr={"AK":6,"AV":8,"BK":16,"BV":18}
    srd(SRD[order[0]], ptr[order[0]], ptr[order[0]]+1, 0x4000000)
    loads=[]
    for ph in order:
        br=0 if ph[0]=="A" else 1
        nt=8 if br==0 else 2
        for t in range(nt):
            for r in range(4):
                for hf in range(2): loads.append((ph,br,t,r,hf))
    NKV=len(loads)
    for t in range(8): loads.append(("WO",0,t,0,0))
    N=len(loads)
    st={"issued":0,"cur":None}
    def slot(i): return RING+4*(i%R)
    def issue(throttle=None):
        i=st["issued"]
        if i>=N: return
        ph,br,t,r,hf=loads[i]
        if throttle is not None and i>=throttle: e(f"s_waitcnt vmcnt({throttle-1})")
        d=slot(i)
        if ph=="WO":
            key=("WO",t//4)
            if st["cur"]!=key:
                e(f"s_add_u32 s55, s63, {(t//4)*4*896}"); st["cur"]=key
            e(f"buffer_load_dwordx4 v[{d}:{d+3}], v{VW}, s[92:95], s55 offen offset:{(t%4)*896} {POL(p.polw)}")
        else:
            key=(br,t)
            if st["cur"]!=key:
                e(f"s_add_u32 s55, s{52+br}, {t*32768}"); st["cur"]=key
            vo=VK if (ph[1]=="K" and p.kpat) else VV
            e(f"buffer_load_dwordx4 v[{d}:{d+3}], v{vo}, s[{SRD[ph]}:{SRD[ph]+3}], s55 offen offset:{r*512+hf*256} {POL(p.pol)}")
        st["issued"]+=1
    if p.bar0: e("s_barrier")
    for i in range(p.T0): issue()
    e("s_load_dword s30, s[28:29], 0")
    for ph in order[1:]: srd(SRD[ph], ptr[ph], ptr[ph]+1, 0x4000000)
    srd(36,28,29,WS_SIZE)
    e("s_cmp_ge_u32 s34, 16"); e("s_cselect_b32 s92, s22, s12"); e("s_cselect_b32 s93, s23, s13")
    e(f"s_mov_b32 s94, {4096*896:#x}"); e("s_mov_b32 s95, 0x20000")
    e("s_and_b32 s54, s34, 15"); e("s_lshl_b32 s54, s54, 5"); e("s_lshl_b32 s63, s31, 9"); e("s_add_u32 s63, s63, s54"); e("s_mul_i32 s63, s63, 896")
    e(f"v_mul_u32_u24 v{VW}, {8*896}, v3"); e(f"v_lshl_add_u32 v{VW}, v2, 4, v{VW}")
    e("s_lshl_b32 s54, s3, 8"); e(f"v_add_u32 v{VW}, s54, v{VW}")
    e("s_lshl_b32 s54, s3, 4"); e("v_add_u32 v8, s54, v2")
    e("v_mov_b32 v14, v8")
    e("v_cmp_gt_u32 vcc, 56, v8"); e("v_mov_b32 v9, 0x40000000"); nop(1); e(f"v_cndmask_b32 v{VW}, v9, v{VW}, vcc")
    emit_masks(MK)
    e("v_bfe_u32 v8, v0, 3, 1"); e("v_lshlrev_b32 v15, 9, v8"); e("v_lshl_add_u32 v15, v3, 6, v15")
    e("v_and_b32 v8, 3, v0"); e("v_lshl_add_u32 v15, v8, 4, v15")
    for br in range(2):
        e(f"v_mov_b32 v{MX+br}, 0xff800000"); e(f"v_mov_b32 v{LS+br}, 0")
    e(f"s_mov_b32 s96, {f2u(CEXP):#x}"); e("s_mov_b32 s97, 0xffff0000")
    while st["issued"]<R: issue(p.TI)
    e("s_waitcnt lgkmcnt(0)")
    emit_tagconsts()
    e(f"v_mov_b32 v{VTAG}, s30")
    stamp(1)
    e("v_mov_b32 v8, 0"); e(f"s_mov_b32 s62, {p.spin*16}")
    e("L_qw:")
    e(f"ds_read_b32 v9, v8 offset:{LDS_FL}"); e("s_waitcnt lgkmcnt(0)")
    e("v_cmp_ne_u32 vcc, 0, v9"); e("s_cbranch_vccnz L_qw_done")
    e("s_sub_u32 s62, s62, 1"); e("s_cbranch_scc1 L_qw_done")
    e("s_sleep 1"); e("s_branch L_qw")
    e("L_qw_done:")
    stamp(2)
    for br in range(2):
        for hf in range(2):
            q=Q+br*8+hf*4
            e(f"ds_read_b128 v[{q}:{q+3}], v15 offset:{LDS_Q+br*1024+hf*256}")
    e("s_waitcnt lgkmcnt(0)")
    groups=[loads[i] for i in range(0,NKV,2)]
    NG=len(groups)
    def sreg(br,t,r): return S+(0 if br==0 else 16)+t*2+(r>>1)
    lastm={}
    def need(dist, idx):
        n=dist-(len(L)-idx-1)
        if n>0: nop(n)
    def k_post(gi):
        ph,br,t,r,_=groups[gi]; d0=DT+4*((gi-1)%4); d1=DT+4*(gi%4)
        def qp(c): return f"quad_perm:[{c},{c},{c},{c}] row_mask:0xf bank_mask:0xf"
        need(8,lastm[gi-1])
        e(f"v_mov_b32_dpp v{TM}, v{d0} {qp(0)}"); e(f"v_mov_b32_dpp v{TM+1}, v{d0+2} {qp(2)}")
        need(8,lastm[gi])
        e(f"v_mov_b32_dpp v{TM+2}, v{d1} {qp(0)}"); e(f"v_mov_b32_dpp v{TM+3}, v{d1+2} {qp(2)}")
        e(f"v_add_f32_dpp v{TM}, v{d0+1}, v{TM} {qp(1)}"); e(f"v_add_f32_dpp v{TM+1}, v{d0+3}, v{TM+1} {qp(3)}")
        e(f"v_add_f32_dpp v{TM+2}, v{d1+1}, v{TM+2} {qp(1)}"); e(f"v_add_f32_dpp v{TM+3}, v{d1+3}, v{TM+3} {qp(3)}")
        e(f"v_add_f32 v{TM}, v{TM}, v{TM+1}"); e(f"v_add_f32 v{TM+2}, v{TM+2}, v{TM+3}")
        s=sreg(br,t,r)
        e(f"v_cvt_pk_bf16_f32 v{s}, v{TM}, v{TM+2}")
        e(f"v_lshlrev_b32 v{TM}, 16, v{s}"); e(f"v_and_b32 v{TM+1}, s97, v{s}")
        e(f"v_max3_f32 v{MX+br}, v{TM}, v{TM+1}, v{MX+br}")
    def v_pre(gi):
        ph,br,t,r,_=groups[gi]; s=sreg(br,t,r); a=AO+4*(gi%2)
        if r&1: e(f"v_and_b32 v{TM}, s97, v{s}")
        else: e(f"v_lshlrev_b32 v{TM}, 16, v{s}")
        e(f"v_fma_f32 v{TM}, v{TM}, s96, -v{MX+br}")
        e(f"v_exp_f32 v{TM}, v{TM}"); nop(1)
        e(f"v_cvt_pk_bf16_f32 v{TM+1}, v{TM}, v{TM}")
        for c in range(4): e(f"v_and_b32 v{a+c}, v{MK+c}, v{TM+1}")
        e(f"v_add_f32 v{LS+br}, v{LS+br}, v{TM}")
    def fin_max(br):
        allred_rows("v_max_f32", MX+br, TM)
        e(f"v_mul_f32 v{MX+br}, s96, v{MX+br}")
    def fin_branch(br):
        allred_rows("v_add_f32", LS+br, TM)
        e(f"v_lshrrev_b32 v{TM}, 5, v0"); e(f"v_lshlrev_b32 v{TM}, 10, v{TM}"); e(f"v_lshl_add_u32 v{TM}, v2, 5, v{TM}")
        e(f"v_and_b32 v{TM+1}, 1, v3"); e(f"v_lshl_add_u32 v{TM}, v{TM+1}, 4, v{TM}")
        e("s_lshl_b32 s54, s3, 12"); e(f"v_add_u32 v{TM}, s54, v{TM}")
        for hf in range(2):
            a=ACC+br*8+hf*4
            e(f"ds_write_b128 v{TM}, v[{a}:{a+3}] offset:{LDS_O+br*2048+hf*512}")
        e(f"v_bfe_u32 v{TM}, v0, 3, 1"); e(f"v_lshlrev_b32 v{TM}, 5, v{TM}"); e("s_lshl_b32 s54, s3, 3"); e(f"v_add_u32 v{TM}, s54, v{TM}")
        e(f"v_mov_b32 v{TM+2}, v{MX+br}"); e(f"v_mov_b32 v{TM+3}, v{LS+br}")
        e(f"ds_write_b64 v{TM}, v[{TM+2}:{TM+3}] offset:{LDS_ST+br*64}")
    pend_k=[]
    maxdone=set(); predone=set(); pend_fin=[]
    def flush_k(keep):
        while len(pend_k)>keep: k_post(pend_k.pop(0))
    for gi in range(NG):
        ph,br,t,r,_=groups[gi]
        i0=2*gi
        if ph[1]=="V" and gi not in predone:
            if br not in maxdone:
                if any(groups[x][1]==br for x in pend_k):
                    flush_k(0)
                fin_max(br); maxdone.add(br)
            v_pre(gi); predone.add(gi); nop(2)
        for hf in range(2):
            i=i0+hf
            e(f"s_waitcnt vmcnt({st['issued']-i-1})")
            d=slot(i)
            if ph[1]=="K":
                D=DT+4*(gi%4); q=Q+br*8+hf*4
                c="0" if hf==0 else f"v[{D}:{D+3}]"
                e(f"v_mfma_f32_16x16x32_bf16 v[{D}:{D+3}], v[{d}:{d+3}], v[{q}:{q+3}], {c}")
            else:
                a=AO+4*(gi%2); D=ACC+br*8+hf*4
                c="0" if (t==0 and r==0) else f"v[{D}:{D+3}]"
                e(f"v_mfma_f32_16x16x32_bf16 v[{D}:{D+3}], v[{a}:{a+3}], v[{d}:{d+3}], {c}")
        lastm[gi]=len(L)-1
        consumed=i0+2
        lag=st["issued"]-consumed
        if lag>=p.T: issue(p.T)
        else:
            while st["issued"]-consumed<p.T and st["issued"]<N: issue()
        flush_k(0)
        if ph[1]=="K" and (r&1): pend_k.append(gi)
        if pend_fin and pend_fin[0][1]<gi:
            fin_branch(pend_fin.pop(0)[0])
        if ph[1]=="V" and (gi+1==NG or groups[gi+1][0]!=ph): pend_fin.append((br,gi))
        if gi+1<NG:
            nph,nbr,_,_,_=groups[gi+1]
            if nph[1]=="V" and (nbr in maxdone or not any(groups[x][1]==nbr for x in pend_k)):
                if nbr not in maxdone: fin_max(nbr); maxdone.add(nbr)
                v_pre(gi+1); predone.add(gi+1)
    while st["issued"]<N: issue()
    stamp(3)
    while pend_fin: fin_branch(pend_fin.pop(0)[0])
    e("s_waitcnt lgkmcnt(0)")
    e("s_barrier")
    stamp(4)
    G=16
    e(f"v_lshlrev_b32 v8, 4, v0"); e("s_lshl_b32 s54, s3, 10"); e("v_add_u32 v8, s54, v8")
    e("s_lshl_b32 s54, s3, 5"); e("v_mov_b32 v9, s54")
    e(f"ds_read_b128 v[{G}:{G+3}], v9 offset:{LDS_ST}"); e(f"ds_read_b128 v[{G+4}:{G+7}], v9 offset:{LDS_ST+16}")
    for w in range(4): e(f"ds_read_b128 v[{G+8+4*w}:{G+11+4*w}], v8 offset:{LDS_O+w*4096}")
    e("v_lshrrev_b32 v8, 3, v0"); e("v_lshlrev_b32 v8, 12, v8"); e("v_and_b32 v9, 7, v0"); e("v_lshl_add_u32 v8, v9, 4, v8")
    e("s_lshl_b32 s54, s31, 2"); e("s_add_u32 s54, s54, s3")
    e("s_lshl_b32 s55, s54, 15"); e("s_lshl_b32 s98, s34, 7"); e("s_add_u32 s55, s55, s98"); e(f"s_add_u32 s55, s55, {H1_OFF:#x}")
    e("s_waitcnt lgkmcnt(0)" if p.stamps else "s_waitcnt lgkmcnt(4)")
    M=G+24
    e(f"v_max3_f32 v{M}, v{G}, v{G+2}, v{G+4}"); e(f"v_max_f32 v{M}, v{M}, v{G+6}")
    for w in range(4): e(f"v_sub_f32 v{G+2*w}, v{G+2*w}, v{M}")
    for w in range(4): e(f"v_exp_f32 v{G+2*w}, v{G+2*w}")
    nop(1)
    e(f"v_mul_f32 v{M+1}, v{G}, v{G+1}")
    for w in range(1,4): e(f"v_fmac_f32 v{M+1}, v{G+2*w}, v{G+2*w+1}")
    e(f"v_rcp_f32 v{M+2}, v{M+1}"); e(f"v_log_f32 v{M+3}, v{M+1}"); nop(1)
    for w in range(4): e(f"v_mul_f32 v{G+2*w}, v{G+2*w}, v{M+2}")
    PB=M+4
    e(f"v_add_f32 v{PB+2}, v{M}, v{M+3}"); e(f"v_mov_b32 v{PB+3}, v{VTAG}")
    e("s_waitcnt lgkmcnt(0)")
    O=M+8
    for c in range(4): e(f"v_mul_f32 v{O+c}, v{G}, v{G+8+c}")
    for w in range(1,4):
        for c in range(4): e(f"v_fmac_f32 v{O+c}, v{G+2*w}, v{G+8+4*w+c}")
    e(f"v_cvt_pk_bf16_f32 v{PB}, v{O}, v{O+1}"); e(f"v_cvt_pk_bf16_f32 v{PB+1}, v{O+2}, v{O+3}")
    e(f"buffer_store_dwordx4 v[{PB}:{PB+3}], v8, s[36:39], s55 offen sc1")
    stamp(5)
    e("v_lshrrev_b32 v9, 1, v0"); e("v_lshlrev_b32 v8, 7, v9"); e("v_and_b32 v9, 1, v0"); e("v_lshl_add_u32 v8, v9, 4, v8")
    e("s_lshl_b32 s55, s31, 5"); e("s_add_u32 s55, s55, s34"); e("s_lshl_b32 s55, s55, 12"); e(f"s_add_u32 s55, s55, {H1_OFF:#x}")
    e("s_lshl_b32 s98, s3, 5"); e("s_add_u32 s55, s55, s98")
    e("v_lshrrev_b32 v20, 5, v0"); e("v_lshlrev_b32 v20, 7, v20"); e("v_lshl_add_u32 v20, v9, 4, v20"); e("v_add_u32 v20, s98, v20")
    e("v_bfe_u32 v21, v0, 3, 1"); e("v_lshlrev_b32 v21, 7, v21"); e("v_lshl_add_u32 v21, v3, 5, v21")
    e(f"s_mov_b32 s62, {p.spin}")
    GA=16
    e("L_h1:")
    e(f"buffer_load_dwordx4 v[{GA}:{GA+3}], v8, s[36:39], s55 offen sc1")
    e("s_waitcnt vmcnt(0)")
    e(f"v_cmp_ne_u32 vcc, v{GA+3}, v{VTAG}")
    poll_tail_masked("L_h1",p.bk1)
    stamp(6)
    def ror(op,x,n): return f"{op}_dpp v{x}, v{x}, v{x} row_ror:{n} row_mask:0xf bank_mask:0xf"
    MXX=22; A0=24; W=28; TT=32
    e(f"v_mov_b32 v{MXX}, v{GA+2}")
    e(f"v_lshlrev_b32 v{A0}, 16, v{GA}"); e(f"v_and_b32 v{A0+1}, s97, v{GA}")
    e(ror("v_max_f32",MXX,2))
    e(f"v_lshlrev_b32 v{A0+2}, 16, v{GA+1}"); e(f"v_and_b32 v{A0+3}, s97, v{GA+1}")
    e(ror("v_max_f32",MXX,4)); nop(2)
    e(ror("v_max_f32",MXX,8))
    e(f"v_mov_b32 v{TT}, v{MXX}"); nop(2); e(f"v_permlane16_swap_b32 v{MXX}, v{TT}"); nop(1); e(f"v_max_f32 v{MXX}, v{MXX}, v{TT}")
    e(f"v_sub_f32 v{W}, v{GA+2}, v{MXX}"); e(f"v_exp_f32 v{W}, v{W}"); nop(1)
    for c in range(4): e(f"v_mul_f32 v{A0+c}, v{W}, v{A0+c}")
    regs=[W]+[A0+c for c in range(4)]
    for n in (2,4,8):
        for x in regs: e(ror("v_add_f32",x,n))
    for i,x in enumerate(regs): e(f"v_mov_b32 v{TT+i}, v{x}")
    for i,x in enumerate(regs): e(f"v_permlane16_swap_b32 v{x}, v{TT+i}")
    for i,x in enumerate(regs): e(f"v_add_f32 v{x}, v{x}, v{TT+i}")
    e(f"v_rcp_f32 v{W}, v{W}"); nop(1)
    for c in range(4): e(f"v_mul_f32 v{A0+c}, v{W}, v{A0+c}")
    for c in range(4): e(f"v_cvt_pk_bf16_f32 v{A0+c}, v{A0+c}, v{A0+c}")
    e("s_mov_b32 exec_lo, 3"); e("s_mov_b32 exec_hi, 3")
    e(f"ds_write_b128 v20, v[{A0}:{A0+3}] offset:{LDS_OX}")
    e("s_mov_b64 exec, -1")
    e("s_waitcnt lgkmcnt(0)")
    e("s_barrier")
    A0=24
    e(f"ds_read_b128 v[{A0}:{A0+3}], v21 offset:{LDS_OX}"); e(f"ds_read_b128 v[{A0+4}:{A0+7}], v21 offset:{LDS_OX+16}")
    e("s_waitcnt lgkmcnt(0)")
    DO=44
    AB=48
    for t in range(8):
        for c in range(4): e(f"v_and_b32 v{AB+4*t+c}, v{MK+c}, v{A0+t}")
    e("v_lshrrev_b32 v8, 5, v0"); e("v_mul_u32_u24 v8, 56, v8"); e("v_add_u32 v8, v8, v14"); e("v_lshlrev_b32 v8, 12, v8")
    for t in range(8):
        d=slot(NKV+t); c="0" if t==0 else f"v[{DO}:{DO+3}]"
        e(f"v_mfma_f32_16x16x32_bf16 v[{DO}:{DO+3}], v[{AB+4*t}:{AB+4*t+3}], v[{d}:{d+3}], {c}")
    e("v_and_b32 v9, 1, v3"); e("v_lshl_add_u32 v8, v9, 4, v8")
    e("v_cmp_gt_u32 vcc, 56, v14"); e("v_mov_b32 v9, 0x40000000")
    e("s_lshr_b32 s54, s34, 4"); e(f"s_mul_i32 s54, s54, {112*4096}"); e("v_cndmask_b32 v8, v9, v8, vcc")
    e("s_and_b32 s55, s34, 15"); e("s_lshl_b32 s98, s31, 4"); e("s_add_u32 s55, s55, s98"); e("s_lshl_b32 s55, s55, 5")
    e("s_add_u32 s54, s54, s55"); e(f"s_add_u32 s54, s54, {H2_OFF:#x}")
    nop(2)
    tag_insert(DO,VTAG)
    e(f"buffer_store_dwordx4 v[{DO}:{DO+3}], v8, s[36:39], s54 offen sc1")
    stamp(7)
    if p.stamps:
        e("s_cmp_lg_u32 s3, 0"); e("s_cbranch_scc1 L_end")
        write_stamps(8,0)
    e("s_endpgm")

    e("L_helper:")
    e("s_setprio 3")
    e("v_mov_b32 v8, 0"); e(f"ds_write_b32 v8, v8 offset:{LDS_FL}")
    X=16
    WQ=64
    e("v_bfe_u32 v8, v0, 3, 1"); e("v_mul_u32_u24 v4, 896, v8"); e("v_mul_u32_u24 v8, 56, v3"); e("v_add_u32 v4, v4, v8")
    e(f"v_mul_u32_u24 v5, {28*8192}, v3"); e("v_lshl_add_u32 v5, v2, 4, v5")
    e("s_and_b32 s35, s34, 3"); e("s_mul_i32 s52, s35, 224")
    e(f"s_mul_i32 s53, s35, {112*8192}"); e("s_lshl_b32 s54, s31, 10"); e("s_add_u32 s53, s53, s54")
    e("s_bfe_u32 s54, s34, 0x20002"); e("s_lshl_b32 s54, s54, 8"); e("s_add_u32 s53, s53, s54")
    e("s_cmp_ge_u32 s34, 16")
    e("s_waitcnt lgkmcnt(0)")
    e("s_cselect_b32 s40, s14, s4"); e("s_cselect_b32 s41, s15, s5"); e("s_mov_b32 s42, 1792"); e("s_mov_b32 s43, 0x20000")
    e("s_cselect_b32 s44, s20, s10"); e("s_cselect_b32 s45, s21, s11"); e(f"s_mov_b32 s46, {448*8192:#x}"); e("s_mov_b32 s47, 0x20000")
    e(f"buffer_load_dwordx4 v[{X}:{X+3}], v4, s[40:43], s52 offen")
    e(f"buffer_load_dwordx4 v[{X+4}:{X+7}], v4, s[40:43], s52 offen offset:16")
    e(f"buffer_load_dwordx4 v[{X+8}:{X+11}], v4, s[40:43], s52 offen offset:32")
    e(f"buffer_load_dwordx2 v[{X+12}:{X+13}], v4, s[40:43], s52 offen offset:48")
    for t in range(28):
        e(f"buffer_load_dwordx4 v[{WQ+4*t}:{WQ+4*t+3}], v5, s[44:47], s53 offen {POL(p.polw)}")
        if t<27: e("s_add_u32 s53, s53, 8192")
    if p.bar0: e("s_barrier")
    e("s_load_dword s30, s[28:29], 0")
    srd(36,28,29,WS_SIZE)
    emit_masks(MK)
    e("s_mov_b32 s48, 0x01000100"); e("s_mov_b32 s49, 0x03020302")
    e("v_lshrrev_b32 v8, 5, v0"); e("v_lshlrev_b32 v6, 14, v8"); e("v_lshl_add_u32 v6, v2, 5, v6"); e("v_and_b32 v9, 1, v3"); e("v_lshl_add_u32 v6, v9, 4, v6")
    e("s_lshl_b32 s50, s31, 15"); e("s_lshl_b32 s54, s34, 9"); e("s_add_u32 s50, s50, s54"); e(f"s_add_u32 s50, s50, {H0_OFF:#x}")
    e("v_lshlrev_b32 v14, 11, v8"); e("v_and_b32 v9, 31, v0"); e("v_lshl_add_u32 v14, v9, 4, v14")
    e("s_lshl_b32 s51, s31, 1"); e("s_add_u32 s51, s51, s32"); e("s_lshl_b32 s51, s51, 14"); e(f"s_add_u32 s51, s51, {H0_OFF:#x}")
    e("v_lshlrev_b32 v15, 3, v0")
    e("s_waitcnt lgkmcnt(0)")
    emit_tagconsts()
    e(f"v_mov_b32 v{VTAG}, s30")
    e("s_waitcnt vmcnt(28)")
    stamp(1)
    DQ=32; AQ=36
    def aq(t):
        a=AQ+4*(t%2)
        e(f"v_perm_b32 v8, v{X+t//2}, v{X+t//2}, s{48+(t&1)}")
        for c in range(4): e(f"v_and_b32 v{a+c}, v{MK+c}, v8")
    aq(0)
    for t in range(28):
        if t+1<28: aq(t+1)
        else: nop(2)
        e(f"s_waitcnt vmcnt({27-t})")
        a=AQ+4*(t%2); c="0" if t==0 else f"v[{DQ}:{DQ+3}]"
        e(f"v_mfma_f32_16x16x32_bf16 v[{DQ}:{DQ+3}], v[{a}:{a+3}], v[{WQ+4*t}:{WQ+4*t+3}], {c}")
    nop(8)
    tag_insert(DQ,VTAG)
    e(f"buffer_store_dwordx4 v[{DQ}:{DQ+3}], v6, s[36:39], s50 offen sc1")
    stamp(2)
    e(f"s_mov_b32 s62, {p.spin}")
    if p.first_delay: e(f"s_sleep {p.first_delay}")
    GQ=64; BAD=44; T0=45; T1=46
    e("s_mov_b32 s35, 0xffff")
    e("L_h0:")
    for pi in range(4):
        e(f"s_add_u32 s54, s51, {pi*4096}")
        for kq in range(4):
            k=pi*4+kq; r=GQ+4*k
            e(f"s_bitcmp0_b32 s35, {k}"); e(f"s_cbranch_scc1 L_h0s{k}")
            e(f"buffer_load_dwordx4 v[{r}:{r+3}], v14, s[36:39], s54 offen offset:{kq*512} sc1")
            e(f"L_h0s{k}:")
    e("s_waitcnt vmcnt(0)")
    e("s_mov_b32 s35, 0")
    for k in range(16):
        tag_check(GQ+4*k,VTAG,BAD,T0,T1,True)
        e(f"v_cmp_ne_u32 vcc, 0, v{BAD}"); e("s_cmp_lg_u64 vcc, 0"); e(f"s_cselect_b32 s54, {1<<k}, 0"); e("s_or_b32 s35, s35, s54")
    e("s_cbranch_scc0 L_h0_done")
    e("s_sub_u32 s62, s62, 1"); e("s_cbranch_scc1 L_h0_done")
    if p.sleep0: e(f"s_sleep {p.sleep0}")
    e("s_branch L_h0")
    e("L_h0_done:")
    stamp(3)
    for pi in range(4):
        r=GQ+16*pi
        for c in range(4):
            e(f"v_add_f32 v{r+c}, v{r+c}, v{r+4+c}"); e(f"v_add_f32 v{r+8+c}, v{r+8+c}, v{r+12+c}")
        for c in range(4): e(f"v_add_f32 v{r+c}, v{r+c}, v{r+8+c}")
        e(f"v_cvt_pk_bf16_f32 v{r}, v{r}, v{r+1}"); e(f"v_cvt_pk_bf16_f32 v{r+1}, v{r+2}, v{r+3}")
        e(f"ds_write_b64 v15, v[{r}:{r+1}] offset:{LDS_Q+pi*512}")
    e("v_mov_b32 v8, 0"); e("v_mov_b32 v9, 1")
    e("s_waitcnt lgkmcnt(0)")
    e(f"ds_write_b32 v8, v9 offset:{LDS_FL}")
    stamp(4)
    e("s_cmp_ge_u32 s2, 224"); e("s_cbranch_scc1 L_hend")
    e("v_lshlrev_b32 v4, 4, v0")
    e("s_lshl_b32 s51, s2, 12"); e(f"s_add_u32 s51, s51, {H2_OFF:#x}")
    e("s_mul_i32 s52, s2, 1171"); e("s_lshr_b32 s52, s52, 16")
    e("s_mul_i32 s53, s52, 56"); e("s_sub_u32 s53, s2, s53")
    e("s_lshl_b32 s53, s53, 4")
    e("s_and_b32 s54, s52, 1"); e("s_mul_i32 s54, s54, 1792"); e("s_add_u32 s53, s53, s54")
    e("s_lshr_b32 s54, s52, 1"); e("s_mul_i32 s54, s54, 896"); e("s_add_u32 s53, s53, s54")
    srd(40,24,25,3584)
    e(f"s_mov_b32 s62, {p.spin}")
    e("s_barrier")
    e("s_barrier")
    stamp(5)
    e("L_h2:")
    for i in range(4): e(f"buffer_load_dwordx4 v[{GQ+4*i}:{GQ+4*i+3}], v4, s[36:39], s51 offen offset:{i*1024} sc1")
    e("s_waitcnt vmcnt(0)")
    for k in range(4): tag_check(GQ+4*k,VTAG,BAD,T0,T1,k==0)
    e(f"v_cmp_ne_u32 vcc, 0, v{BAD}")
    poll_tail_masked("L_h2",p.bk2)
    stamp(6)
    for c in range(4):
        e(f"v_add_f32 v{GQ+c}, v{GQ+c}, v{GQ+4+c}"); e(f"v_add_f32 v{GQ+8+c}, v{GQ+8+c}, v{GQ+12+c}")
    for c in range(4): e(f"v_add_f32 v{GQ+c}, v{GQ+c}, v{GQ+8+c}")
    for rr in (2,4,8):
        if rr==2: nop(1)
        for c in range(4): e(f"v_add_f32_dpp v{GQ+c}, v{GQ+c}, v{GQ+c} row_ror:{rr} row_mask:0xf bank_mask:0xf")
    for sw in ("v_permlane16_swap_b32","v_permlane32_swap_b32"):
        for c in range(4): e(f"v_mov_b32 v{GQ+4+c}, v{GQ+c}")
        nop(1)
        for c in range(4): e(f"{sw} v{GQ+c}, v{GQ+4+c}")
        nop(1)
        for c in range(4): e(f"v_add_f32 v{GQ+c}, v{GQ+c}, v{GQ+4+c}")
    e(f"v_cvt_pk_bf16_f32 v{GQ}, v{GQ}, v{GQ+1}"); e(f"v_cvt_pk_bf16_f32 v{GQ+1}, v{GQ+2}, v{GQ+3}")
    e("s_mov_b64 exec, 3")
    e(f"buffer_store_dwordx2 v[{GQ}:{GQ+1}], v15, s[40:43], s53 offen")
    e("s_cmp_lg_u32 s2, 0"); e("s_cbranch_scc1 L_hend")
    e("s_mov_b64 exec, 1")
    e(f"buffer_store_dword v{VTAG}, v15, s[36:39], 0 offen sc1")
    e("L_hend:")
    stamp(7)
    write_stamps(8,8)
    e("L_end:")
    e("s_endpgm")
    body="\n".join("    "+x if not x.endswith(":") else x for x in L)
    txt = HDR + f"""; Generated by gen/gen.py (hand-designed schedule). One workgroup per CU: wave 0 = helper, waves 1-4 = streamers.
; @launch grid=(256,1,1) block=(320,1,1) lds={LDS_SIZE}
.amdgcn_target "amdgcn-amd-amdhsa--gfx950"
.text
.globl {NAME}
.p2align 8
.type {NAME},@function
{NAME}:
{body}
.section .rodata,"a"
.p2align 6
.amdhsa_kernel {NAME}
  .amdhsa_next_free_vgpr 256
  .amdhsa_next_free_sgpr 102
  .amdhsa_accum_offset 256
  .amdhsa_group_segment_fixed_size 0
  .amdhsa_kernarg_size 104
  .amdhsa_user_sgpr_count 2
  .amdhsa_user_sgpr_kernarg_segment_ptr 1
  .amdhsa_system_sgpr_workgroup_id_x 1
.end_amdhsa_kernel
"""
    return txt

if __name__=="__main__":
    p=P()
    out=sys.argv[1]
    for kv in sys.argv[2:]:
        k,v=kv.split("=")
        setattr(p,k, v if k in ("order","pol","polw") else int(v))
    open(out,"w").write(gen(p))
```

```python
import sys, math
NAME = "concat_heads__gqa_block_cached__sliding_block_cached__decode_kernel"
HDR = open("concat_heads__gqa_block_cached__sliding_block_cached__decode.s.ref").read().split("; Override launch")[0]

H0_OFF  = 0x1000
H1L_OFF = 0x60000
H1_OFF  = 0x80000
H2_OFF  = 0x200000
CNT_OFF = 0x50000
WS_SIZE = 0x400000
STAMP_OFF = 0x1000000
LDS_Q = 0; LDS_O = 2048; LDS_ST = 2048+16384; LDS_OX = LDS_ST+128; LDS_FL = LDS_OX+256; LDS_SIZE = LDS_FL+16
TAGC = 0x3B5D7F91
CEXP = math.log2(math.e)/16.0
def f2u(x):
    import struct; return struct.unpack("<I", struct.pack("<f", x))[0]

class P:
    R=39; T=7; order="AK,BK,AV,BV"; mp=0; stamps=0; spin=100000; T0=5; sleep0=1; sleep1=1; sleep2=1
    first_delay=30; fine=1; h2lay=1; TE=0; NE=0; d2=0; padto=0; bk1=2; bk2=2; kpat=1; bar0=1; TI=5; pol='nt'; polw='nt'; pt=0; ptd=0; cmap=1; lmap=1; dyn=0; NU=128

def POL(x): return '' if x=='none' else x.replace('+',' ')
def gen(p):
    L=[]; e=L.append
    def nop(n):
        if n>0: e(f"s_nop {n-1}")
    nst=[0]
    def stamp(i):
        if p.stamps: e(f"s_memrealtime s[{70+2*i}:{71+2*i}]")
    def srd(r, lo, hi, size):
        e(f"s_mov_b32 s{r}, s{lo}"); e(f"s_mov_b32 s{r+1}, s{hi}"); e(f"s_mov_b32 s{r+2}, {size:#x}"); e(f"s_mov_b32 s{r+3}, 0x20000")
    def write_stamps(n, slot0):
        if not p.stamps: return
        e("s_waitcnt lgkmcnt(0)")
        e(f"s_add_u32 s64, s28, {STAMP_OFF:#x}"); e("s_addc_u32 s65, s29, 0"); e("s_mov_b32 s66, 0x100000"); e("s_mov_b32 s67, 0x20000")
        e("s_lshl_b32 s68, s2, 7"); e(f"s_add_u32 s68, s68, {slot0*8}")
        e("s_mov_b64 exec, 1"); e("v_mov_b32 v1, 0")
        for i in range(n):
            e(f"v_mov_b32 v2, s{70+2*i}"); e(f"v_mov_b32 v3, s{71+2*i}")
            e(f"buffer_store_dwordx2 v[2:3], v1, s[64:67], s68 offen offset:{i*8}"); e("s_nop 1")
    stamp(0)
    if p.padto: e("s_memrealtime s[86:87]")
    e("s_cmp_ge_u32 s2, 256"); e("s_cbranch_scc1 L_end")
    e("s_load_dwordx16 s[4:19], s[0:1], 0")
    e("s_load_dwordx8 s[20:27], s[0:1], 64")
    e("s_load_dwordx2 s[28:29], s[0:1], 96")
    e("v_lshrrev_b32 v1, 6, v0")
    e("v_and_b32 v0, 63, v0")
    e("v_readfirstlane_b32 s3, v1")
    if p.mp==1:
        e("s_and_b32 s31, s2, 7"); e("s_bfe_u32 s32, s2, 0x10003"); e("s_lshr_b32 s33, s2, 4")
    else:
        e("s_bfe_u32 s31, s2, 0x30004"); e("s_lshr_b32 s32, s2, 7"); e("s_and_b32 s33, s2, 15")
    e("s_lshl_b32 s34, s32, 4"); e("s_add_u32 s34, s34, s33")
    e("v_and_b32 v2, 15, v0"); e("v_lshrrev_b32 v3, 4, v0")
    e("s_cmp_eq_u32 s3, 0"); e("s_cbranch_scc1 L_helper")

    def emit_masks(base):
        e("v_and_b32 v8, 1, v0"); e("v_lshlrev_b32 v8, 4, v8"); e("v_mov_b32 v9, 0xffff"); e("v_lshlrev_b32 v9, v8, v9")
        e("v_bfe_u32 v8, v0, 1, 2")
        for r in range(4):
            e(f"v_cmp_eq_u32 vcc, {r}, v8"); nop(2); e(f"v_cndmask_b32 v{base+r}, 0, v9, vcc")
    def emit_tagconsts():
        e(f"s_add_u32 s30, s30, {TAGC:#x}")
        for i in range(4): e(f"s_mov_b32 s{56+i}, {0x07060500+i:#x}")
        e("s_mov_b32 s60, 0x0c0c0400"); e("s_mov_b32 s61, 0x04000c0c")
    def tag_insert(r, vtag):
        for i in range(4): e(f"v_perm_b32 v{r+i}, v{r+i}, v{vtag}, s{56+i}")
    def tag_check(r, vtag, vbad, t0, t1, first):
        e(f"v_perm_b32 v{t0}, v{r+1}, v{r}, s60"); e(f"v_perm_b32 v{t1}, v{r+3}, v{r+2}, s61")
        if first: e(f"v_bitop3_b32 v{vbad}, v{t0}, v{t1}, v{vtag} bitop3:0x56")
        else:
            e(f"v_bitop3_b32 v{t0}, v{t0}, v{t1}, v{vtag} bitop3:0x56"); e(f"v_or_b32 v{vbad}, v{vbad}, v{t0}")
    def poll_tail(lbl, vbad, slp):
        e(f"v_cmp_ne_u32 vcc, 0, v{vbad}")
        e(f"s_cbranch_vccz {lbl}_done")
        e("s_sub_u32 s62, s62, 1"); e(f"s_cbranch_scc1 {lbl}_done")
        if slp: e(f"s_sleep {slp}")
        e(f"s_branch {lbl}")
        e(f"{lbl}_done:")
    def poll_tail_masked(lbl, bk):
        e("s_and_b64 exec, exec, vcc")
        e(f"s_cbranch_scc0 {lbl}_done")
        e("s_sub_u32 s62, s62, 1"); e(f"s_cbranch_scc1 {lbl}_done")
        e("s_bcnt1_i32_b64 s99, exec"); e(f"s_lshr_b32 s99, s99, {bk}")
        e(f"{lbl}_slp:")
        e("s_sub_u32 s99, s99, 1"); e(f"s_cbranch_scc1 {lbl}")
        e("s_sleep 1"); e(f"s_branch {lbl}_slp")
        e(f"{lbl}_done:")
        e("s_mov_b64 exec, -1")
    def allred_rows(op, x, t):
        e(f"v_mov_b32 v{t}, v{x}"); nop(2); e(f"v_permlane16_swap_b32 v{x}, v{t}"); nop(1); e(f"{op} v{x}, v{x}, v{t}")
        e(f"v_mov_b32 v{t}, v{x}"); nop(2); e(f"v_permlane32_swap_b32 v{x}, v{t}"); nop(1); e(f"{op} v{x}, v{x}, v{t}")

    VK,VV,VW=4,5,6; VTAG=7; MK=10
    Q=14
    Q=16
    S=32
    DT=52
    AO=68
    ACC=76
    MX=92
    LS=94
    TM=96
    RING=100
    R=p.R; assert RING+4*R<=256
    e("s_sub_u32 s3, s3, 1")
    e("v_lshrrev_b32 v8, 2, v2"); e(f"v_lshlrev_b32 v{VK}, 11, v8"); e(f"v_lshl_add_u32 v{VK}, v3, 6, v{VK}")
    e("v_and_b32 v8, 3, v0"); e(f"v_lshl_add_u32 v{VK}, v8, 4, v{VK}")
    e(f"v_lshlrev_b32 v{VV}, 11, v3"); e(f"v_lshl_add_u32 v{VV}, v2, 4, v{VV}")
    e("s_lshl_b32 s35, s32, 3"); e("s_add_u32 s35, s35, s31"); e("s_lshl_b32 s35, s35, 22")
    e("s_lshl_b32 s54, s3, 13"); e("s_add_u32 s35, s35, s54")
    e("s_lshl_b32 s52, s33, 18"); e("s_add_u32 s52, s52, s35")
    e("s_lshl_b32 s53, s33, 16"); e("s_add_u32 s53, s53, s35"); e(f"s_add_u32 s53, s53, {6144*512:#x}")
    e("s_waitcnt lgkmcnt(0)")
    SRD={"AK":40,"AV":44,"BK":48,"BV":36}
    SRD={"AK":40,"AV":44,"BK":48,"BV":88}
    order=("AK,AV" if p.dyn else p.order).split(",")
    ptr={"AK":6,"AV":8,"BK":16,"BV":18}
    srd(SRD[order[0]], ptr[order[0]], ptr[order[0]]+1, 0x4000000)
    loads=[]
    for ph in order:
        br=0 if ph[0]=="A" else 1
        nt=8 if br==0 else 2
        for t in range(nt):
            for r in range(4):
                for hf in range(2): loads.append((ph,br,t,r,hf))
    NKV=len(loads)
    for t in range(8): loads.append(("WO",0,t,0,0))
    VK2,VV2,TK=48,49,56
    if p.dyn:
        for un in range(2):
            for k in range(4): loads.append(("DU",1,un,k,0))
            loads.append(("TK",1,un+2,0,0))
    N=len(loads)
    st={"issued":0,"cur":None}
    def slot(i): return RING+4*(i%R)
    def ubuf(j): return slot(NKV+8+4*(j%3))
    if p.dyn: assert (NKV+8)%R+12<=R
    def unit_load(j,k,so):
        d=ubuf(j)+4*k; ph="BK" if k<2 else "BV"
        e(f"buffer_load_dwordx4 v[{d}:{d+3}], v{VK2 if k<2 else VV2}, s[{SRD[ph]}:{SRD[ph]+3}], s{so} offen offset:{(k&1)*256} {POL(p.pol)}")
    def ticket(j):
        e("s_mov_b64 exec, 1"); e(f"v_mov_b32 v{TK+j%3}, 1")
        e(f"buffer_atomic_add v{TK+j%3}, off, s[36:39], s69 sc0 sc1"); e("s_mov_b64 exec, -1")
    def issue(throttle=None):
        i=st["issued"]
        if i>=N: return
        ph,br,t,r,hf=loads[i]
        if throttle is not None and i>=throttle: e(f"s_waitcnt vmcnt({throttle-1})")
        d=slot(i)
        if ph=="WO":
            key=("WO",t//4)
            if st["cur"]!=key:
                e(f"s_add_u32 s55, s63, {(t//4)*4*896}"); st["cur"]=key
            e(f"buffer_load_dwordx4 v[{d}:{d+3}], v{VW}, s[92:95], s55 offen offset:{(t%4)*896} {POL(p.polw)}")
        elif ph=="DU":
            key=("DU",t)
            if st["cur"]!=key:
                e(f"s_lshl_b32 s55, s33, 13"); e("s_add_u32 s55, s55, s53")
                if t: e(f"s_add_u32 s55, s55, {16*8192:#x}")
                st["cur"]=key
            unit_load(t,r,55)
        elif ph=="TK":
            ticket(t)
        else:
            key=(br,t)
            if st["cur"]!=key:
                e(f"s_add_u32 s55, s{52+br}, {t*32768}"); st["cur"]=key
            vo=VK if (ph[1]=="K" and p.kpat) else VV
            e(f"buffer_load_dwordx4 v[{d}:{d+3}], v{vo}, s[{SRD[ph]}:{SRD[ph]+3}], s55 offen offset:{r*512+hf*256} {POL(p.pol)}")
        st["issued"]+=1
    if p.bar0: e("s_barrier")
    for i in range(p.T0): issue()
    e("s_load_dword s30, s[28:29], 0")
    for ph in ("AK","AV","BK","BV"):
        if ph!=order[0]: srd(SRD[ph], ptr[ph], ptr[ph]+1, 0x4000000)
    srd(36,28,29,WS_SIZE)
    if p.dyn:
        e("s_lshl_b32 s54, s32, 3"); e("s_add_u32 s54, s54, s31"); e("s_lshl_b32 s53, s54, 22")
        e("s_lshl_b32 s69, s3, 11"); e("s_add_u32 s53, s53, s69"); e(f"s_add_u32 s53, s53, {6144*512:#x}")
        e("s_lshl_b32 s54, s54, 2"); e("s_add_u32 s54, s54, s3"); e("s_lshl_b32 s69, s54, 7"); e(f"s_add_u32 s69, s69, {CNT_OFF:#x}")
        e("v_lshrrev_b32 v8, 2, v2"); e(f"v_lshlrev_b32 v{VK2}, 9, v8"); e(f"v_lshl_add_u32 v{VK2}, v3, 6, v{VK2}")
        e("v_and_b32 v8, 3, v0"); e(f"v_lshl_add_u32 v{VK2}, v8, 4, v{VK2}")
        e(f"v_lshlrev_b32 v{VV2}, 9, v3"); e(f"v_lshl_add_u32 v{VV2}, v2, 4, v{VV2}")
        for c in range(8): e(f"v_mov_b32 v{ACC+8+c}, 0")
        e("s_mov_b32 s100, 0xff00ff00"); e("s_mov_b32 s101, 0x00ff00ff")
    e("s_cmp_ge_u32 s34, 16"); e("s_cselect_b32 s92, s22, s12"); e("s_cselect_b32 s93, s23, s13")
    e(f"s_mov_b32 s94, {4096*896:#x}"); e("s_mov_b32 s95, 0x20000")
    e("s_and_b32 s54, s34, 15"); e("s_lshl_b32 s54, s54, 5"); e("s_lshl_b32 s63, s31, 9"); e("s_add_u32 s63, s63, s54"); e("s_mul_i32 s63, s63, 896")
    e(f"v_mul_u32_u24 v{VW}, {8*896}, v3"); e(f"v_lshl_add_u32 v{VW}, v2, 4, v{VW}")
    e("s_lshl_b32 s54, s3, 8"); e(f"v_add_u32 v{VW}, s54, v{VW}")
    e("s_lshl_b32 s54, s3, 4"); e("v_add_u32 v8, s54, v2")
    e("v_mov_b32 v14, v8")
    e("v_cmp_gt_u32 vcc, 56, v8"); e("v_mov_b32 v9, 0x40000000"); nop(1); e(f"v_cndmask_b32 v{VW}, v9, v{VW}, vcc")
    emit_masks(MK)
    e("v_bfe_u32 v8, v0, 3, 1"); e("v_lshlrev_b32 v15, 9, v8"); e("v_lshl_add_u32 v15, v3, 6, v15")
    e("v_and_b32 v8, 3, v0"); e("v_lshl_add_u32 v15, v8, 4, v15")
    for br in range(2):
        e(f"v_mov_b32 v{MX+br}, 0xff800000"); e(f"v_mov_b32 v{LS+br}, 0")
    e(f"s_mov_b32 s96, {f2u(CEXP):#x}"); e("s_mov_b32 s97, 0xffff0000")
    while st["issued"]<R: issue(p.TI)
    e("s_waitcnt lgkmcnt(0)")
    emit_tagconsts()
    e(f"v_mov_b32 v{VTAG}, s30")
    stamp(1)
    e("v_mov_b32 v8, 0"); e(f"s_mov_b32 s62, {p.spin*16}")
    e("L_qw:")
    e(f"ds_read_b32 v9, v8 offset:{LDS_FL}"); e("s_waitcnt lgkmcnt(0)")
    e("v_cmp_ne_u32 vcc, 0, v9"); e("s_cbranch_vccnz L_qw_done")
    e("s_sub_u32 s62, s62, 1"); e("s_cbranch_scc1 L_qw_done")
    e("s_sleep 1"); e("s_branch L_qw")
    e("L_qw_done:")
    stamp(2)
    for br in range(2):
        for hf in range(2):
            q=Q+br*8+hf*4
            e(f"ds_read_b128 v[{q}:{q+3}], v15 offset:{LDS_Q+br*1024+hf*256}")
    e("s_waitcnt lgkmcnt(0)")
    groups=[loads[i] for i in range(0,NKV,2)]
    NG=len(groups)
    def sreg(br,t,r): return S+(0 if br==0 else 16)+t*2+(r>>1)
    lastm={}
    def need(dist, idx):
        n=dist-(len(L)-idx-1)
        if n>0: nop(n)
    def k_post(gi):
        ph,br,t,r,_=groups[gi]; d0=DT+4*((gi-1)%4); d1=DT+4*(gi%4)
        def qp(c): return f"quad_perm:[{c},{c},{c},{c}] row_mask:0xf bank_mask:0xf"
        need(8,lastm[gi-1])
        e(f"v_mov_b32_dpp v{TM}, v{d0} {qp(0)}"); e(f"v_mov_b32_dpp v{TM+1}, v{d0+2} {qp(2)}")
        need(8,lastm[gi])
        e(f"v_mov_b32_dpp v{TM+2}, v{d1} {qp(0)}"); e(f"v_mov_b32_dpp v{TM+3}, v{d1+2} {qp(2)}")
        e(f"v_add_f32_dpp v{TM}, v{d0+1}, v{TM} {qp(1)}"); e(f"v_add_f32_dpp v{TM+1}, v{d0+3}, v{TM+1} {qp(3)}")
        e(f"v_add_f32_dpp v{TM+2}, v{d1+1}, v{TM+2} {qp(1)}"); e(f"v_add_f32_dpp v{TM+3}, v{d1+3}, v{TM+3} {qp(3)}")
        e(f"v_add_f32 v{TM}, v{TM}, v{TM+1}"); e(f"v_add_f32 v{TM+2}, v{TM+2}, v{TM+3}")
        s=sreg(br,t,r)
        e(f"v_cvt_pk_bf16_f32 v{s}, v{TM}, v{TM+2}")
        e(f"v_lshlrev_b32 v{TM}, 16, v{s}"); e(f"v_and_b32 v{TM+1}, s97, v{s}")
        e(f"v_max3_f32 v{MX+br}, v{TM}, v{TM+1}, v{MX+br}")
    def v_pre(gi):
        ph,br,t,r,_=groups[gi]; s=sreg(br,t,r); a=AO+4*(gi%2)
        if r&1: e(f"v_and_b32 v{TM}, s97, v{s}")
        else: e(f"v_lshlrev_b32 v{TM}, 16, v{s}")
        e(f"v_fma_f32 v{TM}, v{TM}, s96, -v{MX+br}")
        e(f"v_exp_f32 v{TM}, v{TM}"); nop(1)
        e(f"v_cvt_pk_bf16_f32 v{TM+1}, v{TM}, v{TM}")
        for c in range(4): e(f"v_and_b32 v{a+c}, v{MK+c}, v{TM+1}")
        e(f"v_add_f32 v{LS+br}, v{LS+br}, v{TM}")
    def fin_max(br):
        allred_rows("v_max_f32", MX+br, TM)
        e(f"v_mul_f32 v{MX+br}, s96, v{MX+br}")
    def fin_branch(br):
        allred_rows("v_add_f32", LS+br, TM)
        e(f"v_lshrrev_b32 v{TM}, 5, v0"); e(f"v_lshlrev_b32 v{TM}, 10, v{TM}"); e(f"v_lshl_add_u32 v{TM}, v2, 5, v{TM}")
        e(f"v_and_b32 v{TM+1}, 1, v3"); e(f"v_lshl_add_u32 v{TM}, v{TM+1}, 4, v{TM}")
        e("s_lshl_b32 s54, s3, 12"); e(f"v_add_u32 v{TM}, s54, v{TM}")
        for hf in range(2):
            a=ACC+br*8+hf*4
            e(f"ds_write_b128 v{TM}, v[{a}:{a+3}] offset:{LDS_O+br*2048+hf*512}")
        e(f"v_bfe_u32 v{TM}, v0, 3, 1"); e(f"v_lshlrev_b32 v{TM}, 5, v{TM}"); e("s_lshl_b32 s54, s3, 3"); e(f"v_add_u32 v{TM}, s54, v{TM}")
        e(f"v_mov_b32 v{TM+2}, v{MX+br}"); e(f"v_mov_b32 v{TM+3}, v{LS+br}")
        e(f"ds_write_b64 v{TM}, v[{TM+2}:{TM+3}] offset:{LDS_ST+br*64}")
    pend_k=[]
    maxdone=set(); predone=set(); pend_fin=[]
    def flush_k(keep):
        while len(pend_k)>keep: k_post(pend_k.pop(0))
    for gi in range(NG):
        ph,br,t,r,_=groups[gi]
        i0=2*gi
        if ph[1]=="V" and gi not in predone:
            if br not in maxdone:
                if any(groups[x][1]==br for x in pend_k):
                    flush_k(0)
                fin_max(br); maxdone.add(br)
            v_pre(gi); predone.add(gi); nop(2)
        for hf in range(2):
            i=i0+hf
            e(f"s_waitcnt vmcnt({st['issued']-i-1})")
            d=slot(i)
            if ph[1]=="K":
                D=DT+4*(gi%4); q=Q+br*8+hf*4
                c="0" if hf==0 else f"v[{D}:{D+3}]"
                e(f"v_mfma_f32_16x16x32_bf16 v[{D}:{D+3}], v[{d}:{d+3}], v[{q}:{q+3}], {c}")
            else:
                a=AO+4*(gi%2); D=ACC+br*8+hf*4
                c="0" if (t==0 and r==0) else f"v[{D}:{D+3}]"
                e(f"v_mfma_f32_16x16x32_bf16 v[{D}:{D+3}], v[{a}:{a+3}], v[{d}:{d+3}], {c}")
            lastm[gi]=len(L)-1
            Tc = p.TE if (p.TE and i>=NKV-p.NE) else p.T
            if p.fine and hf==0:
                while st["issued"]-(i+1)<Tc and st["issued"]<N: issue()
        consumed=i0+2
        lag=st["issued"]-consumed
        if lag>=Tc: issue(Tc)
        else:
            while st["issued"]-consumed<Tc and st["issued"]<N: issue()
        flush_k(0)
        if ph[1]=="K" and (r&1): pend_k.append(gi)
        if pend_fin and pend_fin[0][1]<gi:
            fin_branch(pend_fin.pop(0)[0])
        if ph[1]=="V" and (gi+1==NG or groups[gi+1][0]!=ph): pend_fin.append((br,gi))
        if gi+1<NG:
            nph,nbr,_,_,_=groups[gi+1]
            if nph[1]=="V" and (nbr in maxdone or not any(groups[x][1]==nbr for x in pend_k)):
                if nbr not in maxdone: fin_max(nbr); maxdone.add(nbr)
                v_pre(gi+1); predone.add(gi+1)
    while st["issued"]<N: issue()
    if p.dyn:
        nop(4)
        while pend_fin: fin_branch(pend_fin.pop(0)[0])
        def process(j,lbl):
            b0=ubuf(j); D=DT; q=Q+8; a=AO
            def qp(c): return f"quad_perm:[{c},{c},{c},{c}] row_mask:0xf bank_mask:0xf"
            e(f"v_mfma_f32_16x16x32_bf16 v[{D}:{D+3}], v[{b0}:{b0+3}], v[{q}:{q+3}], 0")
            e(f"v_mfma_f32_16x16x32_bf16 v[{D}:{D+3}], v[{b0+4}:{b0+7}], v[{q+4}:{q+7}], v[{D}:{D+3}]")
            nop(8)
            e(f"v_mov_b32_dpp v{TM}, v{D} {qp(0)}"); e(f"v_mov_b32_dpp v{TM+1}, v{D+2} {qp(2)}")
            e(f"v_add_f32_dpp v{TM}, v{D+1}, v{TM} {qp(1)}"); e(f"v_add_f32_dpp v{TM+1}, v{D+3}, v{TM+1} {qp(3)}")
            e(f"v_add_f32 v{TM}, v{TM}, v{TM+1}")
            e(f"v_cvt_pk_bf16_f32 v{TM}, v{TM}, v{TM}"); e(f"v_and_b32 v{TM}, s97, v{TM}")
            e(f"v_mul_f32 v{TM+1}, s96, v{TM}")
            allred_rows("v_max_f32", TM+1, TM+2)
            e(f"v_cmp_gt_f32 vcc, v{TM+1}, v{MX+1}"); e(f"s_cbranch_vccz {lbl}_keep")
            e(f"v_max_f32 v{TM+1}, v{TM+1}, v{MX+1}"); e(f"v_sub_f32 v{TM+2}, v{MX+1}, v{TM+1}"); e(f"v_exp_f32 v{TM+2}, v{TM+2}")
            e(f"v_mov_b32 v{MX+1}, v{TM+1}"); nop(1)
            e(f"v_mul_f32 v{LS+1}, v{LS+1}, v{TM+2}")
            e(f"v_mov_b32_dpp v{TM+3}, v{TM+2} row_ror:8 row_mask:0xf bank_mask:0xf")
            e(f"v_cndmask_b32 v{TM+2}, v{TM+2}, v{TM+3}, s[100:101]")
            for c in range(8): e(f"v_mul_f32 v{ACC+8+c}, v{ACC+8+c}, v{TM+2}")
            e(f"{lbl}_keep:")
            e(f"v_fma_f32 v{TM}, v{TM}, s96, -v{MX+1}")
            e(f"v_exp_f32 v{TM}, v{TM}"); nop(1)
            e(f"v_cvt_pk_bf16_f32 v{TM+1}, v{TM}, v{TM}")
            for c in range(4): e(f"v_and_b32 v{a+c}, v{MK+c}, v{TM+1}")
            e(f"v_add_f32 v{LS+1}, v{LS+1}, v{TM}"); nop(1)
            for hf in range(2):
                A=ACC+8+4*hf
                e(f"v_mfma_f32_16x16x32_bf16 v[{A}:{A+3}], v[{a}:{a+3}], v[{b0+8+4*hf}:{b0+11+4*hf}], v[{A}:{A+3}]")
        e("s_mov_b32 s68, 0")
        e("L_dyn:")
        for i in (1,2,3):
            e("s_cmp_eq_u32 s68, 0"); e(f"s_cbranch_scc1 L_dy{i}_draw")
            e("s_mov_b32 s68, 2"); e("s_waitcnt vmcnt(1)"); e(f"s_branch L_dy{i}_proc")
            e(f"L_dy{i}_draw:")
            e("s_waitcnt vmcnt(5)")
            e(f"v_readfirstlane_b32 s54, v{TK+(i+1)%3}")
            e(f"s_cmp_ge_u32 s54, {p.NU}"); e("s_cselect_b32 s68, 1, 0"); e(f"s_cbranch_scc1 L_dy{i}_proc")
            e("s_lshl_b32 s54, s54, 13"); e("s_add_u32 s55, s54, s53")
            for k in range(4): unit_load(i+1,k,55)
            ticket(i+3)
            e(f"L_dy{i}_proc:")
            process(i-1,f"L_dy{i}")
            e("s_cmp_eq_u32 s68, 2")
            e("s_cbranch_scc1 L_dyn_done" if i<3 else "s_cbranch_scc0 L_dyn")
        e("L_dyn_done:")
        stamp(3)
        fin_branch(1)
    else:
        stamp(3)
        while pend_fin: fin_branch(pend_fin.pop(0)[0])
    e("s_waitcnt lgkmcnt(0)")
    e("s_barrier")
    stamp(4)
    G=16
    e(f"v_lshlrev_b32 v8, 4, v0"); e("s_lshl_b32 s54, s3, 10"); e("v_add_u32 v8, s54, v8")
    e("s_lshl_b32 s54, s3, 5"); e("v_mov_b32 v9, s54")
    e(f"ds_read_b128 v[{G}:{G+3}], v9 offset:{LDS_ST}"); e(f"ds_read_b128 v[{G+4}:{G+7}], v9 offset:{LDS_ST+16}")
    for w in range(4): e(f"ds_read_b128 v[{G+8+4*w}:{G+11+4*w}], v8 offset:{LDS_O+w*4096}")
    e("v_lshrrev_b32 v8, 3, v0"); e("v_lshlrev_b32 v8, 12, v8"); e("v_and_b32 v9, 7, v0"); e("v_lshl_add_u32 v8, v9, 4, v8")
    e("s_lshl_b32 s54, s31, 2"); e("s_add_u32 s54, s54, s3")
    e("s_lshl_b32 s55, s54, 15"); e("s_lshl_b32 s98, s34, 7"); e("s_add_u32 s55, s55, s98"); e(f"s_add_u32 s55, s55, {H1_OFF:#x}")
    e("s_waitcnt lgkmcnt(0)" if p.stamps else "s_waitcnt lgkmcnt(4)")
    M=G+24
    e(f"v_max3_f32 v{M}, v{G}, v{G+2}, v{G+4}"); e(f"v_max_f32 v{M}, v{M}, v{G+6}")
    for w in range(4): e(f"v_sub_f32 v{G+2*w}, v{G+2*w}, v{M}")
    for w in range(4): e(f"v_exp_f32 v{G+2*w}, v{G+2*w}")
    nop(1)
    e(f"v_mul_f32 v{M+1}, v{G}, v{G+1}")
    for w in range(1,4): e(f"v_fmac_f32 v{M+1}, v{G+2*w}, v{G+2*w+1}")
    e(f"v_rcp_f32 v{M+2}, v{M+1}"); e(f"v_log_f32 v{M+3}, v{M+1}"); nop(1)
    for w in range(4): e(f"v_mul_f32 v{G+2*w}, v{G+2*w}, v{M+2}")
    PB=M+4
    e(f"v_add_f32 v{PB+2}, v{M}, v{M+3}"); e(f"v_mov_b32 v{PB+3}, v{VTAG}")
    e("s_waitcnt lgkmcnt(0)")
    O=M+8
    for c in range(4): e(f"v_mul_f32 v{O+c}, v{G}, v{G+8+c}")
    for w in range(1,4):
        for c in range(4): e(f"v_fmac_f32 v{O+c}, v{G+2*w}, v{G+8+4*w+c}")
    e(f"v_cvt_pk_bf16_f32 v{PB}, v{O}, v{O+1}"); e(f"v_cvt_pk_bf16_f32 v{PB+1}, v{O+2}, v{O+3}")
    e(f"buffer_store_dwordx4 v[{PB}:{PB+3}], v8, s[36:39], s55 offen sc1")
    stamp(5)
    e("v_lshrrev_b32 v9, 1, v0"); e("v_lshlrev_b32 v8, 7, v9"); e("v_and_b32 v9, 1, v0"); e("v_lshl_add_u32 v8, v9, 4, v8")
    e("s_lshl_b32 s55, s31, 5"); e("s_add_u32 s55, s55, s34"); e("s_lshl_b32 s55, s55, 12"); e(f"s_add_u32 s55, s55, {H1_OFF:#x}")
    e("s_lshl_b32 s98, s3, 5"); e("s_add_u32 s55, s55, s98")
    e("v_lshrrev_b32 v20, 5, v0"); e("v_lshlrev_b32 v20, 7, v20"); e("v_lshl_add_u32 v20, v9, 4, v20"); e("v_add_u32 v20, s98, v20")
    e("v_bfe_u32 v21, v0, 3, 1"); e("v_lshlrev_b32 v21, 7, v21"); e("v_lshl_add_u32 v21, v3, 5, v21")
    e(f"s_mov_b32 s62, {p.spin}")
    GA=16
    e("L_h1:")
    e(f"buffer_load_dwordx4 v[{GA}:{GA+3}], v8, s[36:39], s55 offen sc1")
    e("s_waitcnt vmcnt(0)")
    e(f"v_cmp_ne_u32 vcc, v{GA+3}, v{VTAG}")
    poll_tail_masked("L_h1",p.bk1)
    stamp(6)
    def ror(op,x,n): return f"{op}_dpp v{x}, v{x}, v{x} row_ror:{n} row_mask:0xf bank_mask:0xf"
    MXX=22; A0=24; W=28; TT=32
    e(f"v_mov_b32 v{MXX}, v{GA+2}")
    e(f"v_lshlrev_b32 v{A0}, 16, v{GA}"); e(f"v_and_b32 v{A0+1}, s97, v{GA}")
    e(ror("v_max_f32",MXX,2))
    e(f"v_lshlrev_b32 v{A0+2}, 16, v{GA+1}"); e(f"v_and_b32 v{A0+3}, s97, v{GA+1}")
    e(ror("v_max_f32",MXX,4)); nop(2)
    e(ror("v_max_f32",MXX,8))
    e(f"v_mov_b32 v{TT}, v{MXX}"); nop(2); e(f"v_permlane16_swap_b32 v{MXX}, v{TT}"); nop(1); e(f"v_max_f32 v{MXX}, v{MXX}, v{TT}")
    e(f"v_sub_f32 v{W}, v{GA+2}, v{MXX}"); e(f"v_exp_f32 v{W}, v{W}"); nop(1)
    for c in range(4): e(f"v_mul_f32 v{A0+c}, v{W}, v{A0+c}")
    regs=[W]+[A0+c for c in range(4)]
    for n in (2,4,8):
        for x in regs: e(ror("v_add_f32",x,n))
    for i,x in enumerate(regs): e(f"v_mov_b32 v{TT+i}, v{x}")
    for i,x in enumerate(regs): e(f"v_permlane16_swap_b32 v{x}, v{TT+i}")
    for i,x in enumerate(regs): e(f"v_add_f32 v{x}, v{x}, v{TT+i}")
    e(f"v_rcp_f32 v{W}, v{W}"); nop(1)
    for c in range(4): e(f"v_mul_f32 v{A0+c}, v{W}, v{A0+c}")
    for c in range(4): e(f"v_cvt_pk_bf16_f32 v{A0+c}, v{A0+c}, v{A0+c}")
    e("s_mov_b32 exec_lo, 3"); e("s_mov_b32 exec_hi, 3")
    e(f"ds_write_b128 v20, v[{A0}:{A0+3}] offset:{LDS_OX}")
    e("s_mov_b64 exec, -1")
    e("s_waitcnt lgkmcnt(0)")
    e("s_barrier")
    A0=24
    e(f"ds_read_b128 v[{A0}:{A0+3}], v21 offset:{LDS_OX}"); e(f"ds_read_b128 v[{A0+4}:{A0+7}], v21 offset:{LDS_OX+16}")
    e("s_waitcnt lgkmcnt(0)")
    DO=44
    AB=48
    for t in range(8):
        for c in range(4): e(f"v_and_b32 v{AB+4*t+c}, v{MK+c}, v{A0+t}")
    if p.h2lay==0:
        e("v_lshrrev_b32 v8, 5, v0"); e("v_mul_u32_u24 v8, 56, v8"); e("v_add_u32 v8, v8, v14"); e("v_lshlrev_b32 v8, 12, v8")
    else:
        e("v_lshrrev_b32 v8, 5, v0"); e("v_mul_u32_u24 v8, 14, v8"); e("v_lshrrev_b32 v9, 2, v14"); e("v_add_u32 v8, v8, v9"); e("v_lshlrev_b32 v8, 14, v8")
        e("v_and_b32 v9, 3, v14"); e("v_lshl_add_u32 v8, v9, 5, v8")
    for t in range(8):
        d=slot(NKV+t); c="0" if t==0 else f"v[{DO}:{DO+3}]"
        e(f"v_mfma_f32_16x16x32_bf16 v[{DO}:{DO+3}], v[{AB+4*t}:{AB+4*t+3}], v[{d}:{d+3}], {c}")
    e("v_and_b32 v9, 1, v3"); e("v_lshl_add_u32 v8, v9, 4, v8")
    e("v_cmp_gt_u32 vcc, 56, v14"); e("v_mov_b32 v9, 0x40000000")
    e("s_lshr_b32 s54, s34, 4"); e(f"s_mul_i32 s54, s54, {112*4096}"); e("v_cndmask_b32 v8, v9, v8, vcc")
    e("s_and_b32 s55, s34, 15"); e("s_lshl_b32 s98, s31, 4"); e("s_add_u32 s55, s55, s98"); e(f"s_lshl_b32 s55, s55, {5 if p.h2lay==0 else 7}")
    e("s_add_u32 s54, s54, s55"); e(f"s_add_u32 s54, s54, {H2_OFF:#x}")
    nop(2)
    tag_insert(DO,VTAG)
    e(f"buffer_store_dwordx4 v[{DO}:{DO+3}], v8, s[36:39], s54 offen sc1")
    stamp(7)
    if p.stamps:
        e("s_cmp_lg_u32 s3, 0"); e("s_cbranch_scc1 L_end")
        write_stamps(8,0)
    e("s_endpgm")

    e("L_helper:")
    e("s_setprio 3")
    e("v_mov_b32 v8, 0"); e(f"ds_write_b32 v8, v8 offset:{LDS_FL}")
    X=16
    WQ=64
    e("v_bfe_u32 v8, v0, 3, 1"); e("v_mul_u32_u24 v4, 896, v8"); e("v_mul_u32_u24 v8, 56, v3"); e("v_add_u32 v4, v4, v8")
    e(f"v_mul_u32_u24 v5, {28*8192}, v3"); e("v_lshl_add_u32 v5, v2, 4, v5")
    e("s_and_b32 s35, s34, 3"); e("s_mul_i32 s52, s35, 224")
    e(f"s_mul_i32 s53, s35, {112*8192}"); e("s_lshl_b32 s54, s31, 10"); e("s_add_u32 s53, s53, s54")
    e("s_bfe_u32 s54, s34, 0x20002"); e("s_lshl_b32 s54, s54, 8"); e("s_add_u32 s53, s53, s54")
    e("s_cmp_ge_u32 s34, 16")
    e("s_waitcnt lgkmcnt(0)")
    e("s_cselect_b32 s40, s14, s4"); e("s_cselect_b32 s41, s15, s5"); e("s_mov_b32 s42, 1792"); e("s_mov_b32 s43, 0x20000")
    e("s_cselect_b32 s44, s20, s10"); e("s_cselect_b32 s45, s21, s11"); e(f"s_mov_b32 s46, {448*8192:#x}"); e("s_mov_b32 s47, 0x20000")
    e(f"buffer_load_dwordx4 v[{X}:{X+3}], v4, s[40:43], s52 offen")
    e(f"buffer_load_dwordx4 v[{X+4}:{X+7}], v4, s[40:43], s52 offen offset:16")
    e(f"buffer_load_dwordx4 v[{X+8}:{X+11}], v4, s[40:43], s52 offen offset:32")
    e(f"buffer_load_dwordx2 v[{X+12}:{X+13}], v4, s[40:43], s52 offen offset:48")
    for t in range(28):
        e(f"buffer_load_dwordx4 v[{WQ+4*t}:{WQ+4*t+3}], v5, s[44:47], s53 offen {POL(p.polw)}")
        if t<27: e("s_add_u32 s53, s53, 8192")
    XT=0
    if p.dyn:
        XT=1
        srd(36,28,29,WS_SIZE)
        e("s_lshl_b32 s54, s32, 3"); e("s_add_u32 s54, s54, s31"); e("s_lshl_b32 s54, s54, 9"); e(f"s_add_u32 s54, s54, {CNT_OFF:#x}")
        e("v_lshlrev_b32 v8, 7, v0"); e("v_mov_b32 v47, 32")
        e("s_cmp_eq_u32 s33, 0"); e("s_cselect_b32 s55, 0, 0x40000000"); e("v_add_u32 v8, s55, v8")
        e("s_mov_b64 exec, 15")
        e("buffer_atomic_swap v47, v8, s[36:39], s54 offen sc0 sc1")
        e("s_mov_b64 exec, -1")
    if p.bar0: e("s_barrier")
    e("s_load_dword s30, s[28:29], 0")
    srd(36,28,29,WS_SIZE)
    emit_masks(MK)
    e("s_mov_b32 s48, 0x01000100"); e("s_mov_b32 s49, 0x03020302")
    e("v_lshrrev_b32 v8, 5, v0"); e("v_lshlrev_b32 v6, 14, v8"); e("v_lshl_add_u32 v6, v2, 5, v6"); e("v_and_b32 v9, 1, v3"); e("v_lshl_add_u32 v6, v9, 4, v6")
    e("s_lshl_b32 s50, s31, 15"); e("s_lshl_b32 s54, s34, 9"); e("s_add_u32 s50, s50, s54"); e(f"s_add_u32 s50, s50, {H0_OFF:#x}")
    e("v_lshlrev_b32 v14, 11, v8"); e("v_and_b32 v9, 31, v0"); e("v_lshl_add_u32 v14, v9, 4, v14")
    e("s_lshl_b32 s51, s31, 1"); e("s_add_u32 s51, s51, s32"); e("s_lshl_b32 s51, s51, 14"); e(f"s_add_u32 s51, s51, {H0_OFF:#x}")
    e("v_lshlrev_b32 v15, 3, v0")
    e("s_waitcnt lgkmcnt(0)")
    emit_tagconsts()
    e(f"v_mov_b32 v{VTAG}, s30")
    e(f"s_waitcnt vmcnt({28+XT})")
    stamp(1)
    DQ=32; AQ=36
    def aq(t):
        a=AQ+4*(t%2)
        e(f"v_perm_b32 v8, v{X+t//2}, v{X+t//2}, s{48+(t&1)}")
        for c in range(4): e(f"v_and_b32 v{a+c}, v{MK+c}, v8")
    aq(0)
    for t in range(28):
        if t+1<28: aq(t+1)
        else: nop(2)
        e(f"s_waitcnt vmcnt({27-t+XT})")
        a=AQ+4*(t%2); c="0" if t==0 else f"v[{DQ}:{DQ+3}]"
        e(f"v_mfma_f32_16x16x32_bf16 v[{DQ}:{DQ+3}], v[{a}:{a+3}], v[{WQ+4*t}:{WQ+4*t+3}], {c}")
    nop(8)
    if XT: e("s_waitcnt vmcnt(0)")
    tag_insert(DQ,VTAG)
    e(f"buffer_store_dwordx4 v[{DQ}:{DQ+3}], v6, s[36:39], s50 offen sc1")
    stamp(2)
    e(f"s_mov_b32 s62, {p.spin}")
    if p.first_delay: e(f"s_sleep {p.first_delay}")
    GQ=64; BAD=44; T0=45; T1=46
    e("s_mov_b32 s35, 0xffff")
    e("L_h0:")
    for pi in range(4):
        e(f"s_add_u32 s54, s51, {pi*4096}")
        for kq in range(4):
            k=pi*4+kq; r=GQ+4*k
            e(f"s_bitcmp0_b32 s35, {k}"); e(f"s_cbranch_scc1 L_h0s{k}")
            e(f"buffer_load_dwordx4 v[{r}:{r+3}], v14, s[36:39], s54 offen offset:{kq*512} sc1")
            e(f"L_h0s{k}:")
    e("s_waitcnt vmcnt(0)")
    e("s_mov_b32 s35, 0")
    for k in range(16):
        tag_check(GQ+4*k,VTAG,BAD,T0,T1,True)
        e(f"v_cmp_ne_u32 vcc, 0, v{BAD}"); e("s_cmp_lg_u64 vcc, 0"); e(f"s_cselect_b32 s54, {1<<k}, 0"); e("s_or_b32 s35, s35, s54")
    e("s_cbranch_scc0 L_h0_done")
    e("s_sub_u32 s62, s62, 1"); e("s_cbranch_scc1 L_h0_done")
    if p.sleep0: e(f"s_sleep {p.sleep0}")
    e("s_branch L_h0")
    e("L_h0_done:")
    stamp(3)
    for pi in range(4):
        r=GQ+16*pi
        for c in range(4):
            e(f"v_add_f32 v{r+c}, v{r+c}, v{r+4+c}"); e(f"v_add_f32 v{r+8+c}, v{r+8+c}, v{r+12+c}")
        for c in range(4): e(f"v_add_f32 v{r+c}, v{r+c}, v{r+8+c}")
        e(f"v_cvt_pk_bf16_f32 v{r}, v{r}, v{r+1}"); e(f"v_cvt_pk_bf16_f32 v{r+1}, v{r+2}, v{r+3}")
        e(f"ds_write_b64 v15, v[{r}:{r+1}] offset:{LDS_Q+pi*512}")
    e("v_mov_b32 v8, 0"); e("v_mov_b32 v9, 1")
    e("s_waitcnt lgkmcnt(0)")
    e(f"ds_write_b32 v8, v9 offset:{LDS_FL}")
    stamp(4)
    if p.pt:
        for i in range(p.ptd): e("s_sleep 127")
        e("v_and_b32 v9, 31, v0")
        e("v_lshlrev_b32 v8, 12, v9")
        e("s_lshl_b32 s54, s31, 17"); e("s_lshl_b32 s52, s34, 7"); e("s_add_u32 s54, s54, s52"); e(f"s_add_u32 s54, s54, {H1_OFF:#x}")
        e(f"buffer_load_dword v{GQ}, v8, s[36:39], s54 offen sc1")
        e("v_min_u32 v9, 27, v9")
        e("v_lshlrev_b32 v8, 14, v9")
        e("s_lshr_b32 s54, s34, 4"); e(f"s_mul_i32 s54, s54, {112*4096}")
        e("s_and_b32 s55, s34, 15"); e("s_lshl_b32 s52, s31, 4"); e("s_add_u32 s55, s55, s52"); e("s_lshl_b32 s55, s55, 7")
        e("s_add_u32 s54, s54, s55"); e(f"s_add_u32 s54, s54, {H2_OFF:#x}")
        e(f"buffer_load_dword v{GQ+1}, v8, s[36:39], s54 offen sc1")
        e("v_and_b32 v9, 3, v0"); e("v_lshlrev_b32 v8, 12, v9")
        e("s_lshr_b32 s54, s2, 2"); e("s_lshl_b32 s54, s54, 14"); e(f"s_add_u32 s54, s54, {H2_OFF:#x}")
        e(f"buffer_load_dword v{GQ+2}, v8, s[36:39], s54 offen sc1")
        srd(40,24,25,3584)
        e(f"buffer_load_dword v{GQ+3}, v15, s[40:43], 0 offen sc1")
        e("s_waitcnt vmcnt(0)")
    e("s_cmp_ge_u32 s2, 224"); e("s_cbranch_scc1 L_hend2")
    if p.cmap:
        e("s_and_b32 s35, s2, 7"); e("s_lshr_b32 s52, s2, 5"); e("s_lshl_b32 s52, s52, 3"); e("s_add_u32 s35, s35, s52"); e("s_lshl_b32 s35, s35, 2")
        e("s_bfe_u32 s52, s2, 0x20003"); e("s_add_u32 s35, s35, s52")
    else: e("s_mov_b32 s35, s2")
    if p.h2lay==0:
        e("v_lshlrev_b32 v4, 4, v0")
        e("s_lshl_b32 s51, s35, 12"); e(f"s_add_u32 s51, s51, {H2_OFF:#x}")
    else:
        e("v_lshrrev_b32 v4, 1, v0"); e(f"v_lshlrev_b32 v4, {9 if p.lmap else 7}, v4"); e("v_and_b32 v9, 1, v0"); e("v_lshl_add_u32 v4, v9, 4, v4")
        e("s_lshr_b32 s51, s35, 2"); e("s_lshl_b32 s51, s51, 14"); e("s_and_b32 s52, s35, 3"); e("s_lshl_b32 s52, s52, 5"); e("s_add_u32 s51, s51, s52"); e(f"s_add_u32 s51, s51, {H2_OFF:#x}")
        for i in range(1,4): e(f"s_add_u32 s{44+i}, s51, {i*(128 if p.lmap else 4096)}")
    e("s_mul_i32 s52, s35, 1171"); e("s_lshr_b32 s52, s52, 16")
    e("s_mul_i32 s53, s52, 56"); e("s_sub_u32 s53, s35, s53")
    e("s_lshl_b32 s53, s53, 4")
    e("s_and_b32 s54, s52, 1"); e("s_mul_i32 s54, s54, 1792"); e("s_add_u32 s53, s53, s54")
    e("s_lshr_b32 s54, s52, 1"); e("s_mul_i32 s54, s54, 896"); e("s_add_u32 s53, s53, s54")
    srd(40,24,25,3584)
    e(f"s_mov_b32 s62, {p.spin}")
    e("s_barrier")
    e("s_barrier")
    stamp(5)
    if p.d2: e(f"s_sleep {p.d2}")
    e("L_h2:")
    for i in range(4):
        if p.h2lay==0: e(f"buffer_load_dwordx4 v[{GQ+4*i}:{GQ+4*i+3}], v4, s[36:39], s51 offen offset:{i*1024} sc1")
        else: e(f"buffer_load_dwordx4 v[{GQ+4*i}:{GQ+4*i+3}], v4, s[36:39], s{51 if i==0 else 44+i} offen sc1")
    e("s_waitcnt vmcnt(0)")
    for k in range(4): tag_check(GQ+4*k,VTAG,BAD,T0,T1,k==0)
    e(f"v_cmp_ne_u32 vcc, 0, v{BAD}")
    poll_tail_masked("L_h2",p.bk2)
    stamp(6)
    for c in range(4):
        e(f"v_add_f32 v{GQ+c}, v{GQ+c}, v{GQ+4+c}"); e(f"v_add_f32 v{GQ+8+c}, v{GQ+8+c}, v{GQ+12+c}")
    for c in range(4): e(f"v_add_f32 v{GQ+c}, v{GQ+c}, v{GQ+8+c}")
    for rr in (2,4,8):
        if rr==2: nop(1)
        for c in range(4): e(f"v_add_f32_dpp v{GQ+c}, v{GQ+c}, v{GQ+c} row_ror:{rr} row_mask:0xf bank_mask:0xf")
    for sw in ("v_permlane16_swap_b32","v_permlane32_swap_b32"):
        for c in range(4): e(f"v_mov_b32 v{GQ+4+c}, v{GQ+c}")
        nop(1)
        for c in range(4): e(f"{sw} v{GQ+c}, v{GQ+4+c}")
        nop(1)
        for c in range(4): e(f"v_add_f32 v{GQ+c}, v{GQ+c}, v{GQ+4+c}")
    e(f"v_cvt_pk_bf16_f32 v{GQ}, v{GQ}, v{GQ+1}"); e(f"v_cvt_pk_bf16_f32 v{GQ+1}, v{GQ+2}, v{GQ+3}")
    e("s_mov_b64 exec, 3")
    e(f"buffer_store_dwordx2 v[{GQ}:{GQ+1}], v15, s[40:43], s53 offen")
    e("s_cmp_lg_u32 s2, 0"); e("s_cbranch_scc1 L_hend")
    e("s_mov_b64 exec, 1")
    e(f"buffer_store_dword v{VTAG}, v15, s[36:39], 0 offen sc1")
    e("L_hend:")
    if p.padto:
        e("L_pad:"); e("s_memrealtime s[84:85]"); e("s_waitcnt lgkmcnt(0)"); e("s_sub_u32 s84, s84, s86")
        e(f"s_cmp_lt_u32 s84, {p.padto}"); e("s_cbranch_scc1 L_pad")
    e("L_hend2:")
    stamp(7)
    write_stamps(8,8)
    e("L_end:")
    e("s_endpgm")
    body="\n".join("    "+x if not x.endswith(":") else x for x in L)
    txt = HDR + f"""; Generated by gen/gen.py (hand-designed schedule). One workgroup per CU: wave 0 = helper, waves 1-4 = streamers.
; @launch grid=(256,1,1) block=(320,1,1) lds={LDS_SIZE}
.amdgcn_target "amdgcn-amd-amdhsa--gfx950"
.text
.globl {NAME}
.p2align 8
.type {NAME},@function
{NAME}:
{body}
.section .rodata,"a"
.p2align 6
.amdhsa_kernel {NAME}
  .amdhsa_next_free_vgpr 256
  .amdhsa_next_free_sgpr 102
  .amdhsa_accum_offset 256
  .amdhsa_group_segment_fixed_size 0
  .amdhsa_kernarg_size 104
  .amdhsa_user_sgpr_count 2
  .amdhsa_user_sgpr_kernarg_segment_ptr 1
  .amdhsa_system_sgpr_workgroup_id_x 1
.end_amdhsa_kernel
"""
    return txt

if __name__=="__main__":
    p=P()
    out=sys.argv[1]
    for kv in sys.argv[2:]:
        k,v=kv.split("=")
        setattr(p,k, v if k in ("order","pol","polw") else int(v))
    open(out,"w").write(gen(p))
```

```python
import sys, math
NAME = "concat_heads__gqa_block_cached__sliding_block_cached__decode_kernel"
HDR = open("concat_heads__gqa_block_cached__sliding_block_cached__decode.s.ref").read().split("; Override launch")[0]

H0_OFF  = 0x1000
H1L_OFF = 0x60000
H1_OFF  = 0x80000
H2_OFF  = 0x200000
CNT_OFF = 0x50000
WS_SIZE = 0x400000
STAMP_OFF = 0x1000000
LDS_Q = 0; LDS_O = 2048; LDS_ST = 2048+16384; LDS_OX = LDS_ST+128; LDS_FL = LDS_OX+256; LDS_SIZE = LDS_FL+16
TAGC = 0x3B5D7F91
CEXP = math.log2(math.e)/16.0
def f2u(x):
    import struct; return struct.unpack("<I", struct.pack("<f", x))[0]

class P:
    R=39; T=7; order="AK,BK,AV,BV"; mp=0; stamps=0; spin=100000; T0=5; sleep0=1; sleep1=1; sleep2=1
    first_delay=30; fine=1; h2lay=1; TE=0; NE=0; d2=0; padto=0; bk1=2; bk2=2; kpat=1; bar0=1; TI=5; pol='nt'; polw='nt'; pt=0; ptd=0; cmap=1; lmap=1; dyn=0; NU=128; fake=0; wol=0; nowq=0; fd2=0; sat=0; sm=0

def POL(x): return '' if x=='none' else x.replace('+',' ')
def gen(p):
    L=[]; e=L.append
    def nop(n):
        if n>0: e(f"s_nop {n-1}")
    nst=[0]
    def stamp(i):
        if p.stamps: e(f"s_memrealtime s[{70+2*i}:{71+2*i}]")
    def srd(r, lo, hi, size):
        e(f"s_mov_b32 s{r}, s{lo}"); e(f"s_mov_b32 s{r+1}, s{hi}"); e(f"s_mov_b32 s{r+2}, {size:#x}"); e(f"s_mov_b32 s{r+3}, 0x20000")
    def write_stamps(n, slot0):
        if not p.stamps: return
        e("s_waitcnt lgkmcnt(0)")
        e(f"s_add_u32 s64, s28, {STAMP_OFF:#x}"); e("s_addc_u32 s65, s29, 0"); e("s_mov_b32 s66, 0x100000"); e("s_mov_b32 s67, 0x20000")
        e("s_lshl_b32 s68, s2, 7"); e(f"s_add_u32 s68, s68, {slot0*8}")
        e("s_mov_b64 exec, 1"); e("v_mov_b32 v1, 0")
        for i in range(n):
            e(f"v_mov_b32 v2, s{70+2*i}"); e(f"v_mov_b32 v3, s{71+2*i}")
            e(f"buffer_store_dwordx2 v[2:3], v1, s[64:67], s68 offen offset:{i*8}"); e("s_nop 1")
    stamp(0)
    if p.padto: e("s_memrealtime s[86:87]")
    e("s_cmp_ge_u32 s2, 256"); e("s_cbranch_scc1 L_end")
    e("s_load_dwordx16 s[4:19], s[0:1], 0")
    e("s_load_dwordx8 s[20:27], s[0:1], 64")
    e("s_load_dwordx2 s[28:29], s[0:1], 96")
    e("v_lshrrev_b32 v1, 6, v0")
    e("v_and_b32 v0, 63, v0")
    e("v_readfirstlane_b32 s3, v1")
    if p.mp==1:
        e("s_and_b32 s31, s2, 7"); e("s_bfe_u32 s32, s2, 0x10003"); e("s_lshr_b32 s33, s2, 4")
    elif p.mp==2:
        e("s_bfe_u32 s31, s2, 0x20001"); e("s_bfe_u32 s32, s2, 0x10006"); e("s_lshl_b32 s32, s32, 2"); e("s_or_b32 s31, s31, s32")
        e("s_bfe_u32 s33, s2, 0x30003"); e("s_lshl_b32 s33, s33, 1"); e("s_and_b32 s32, s2, 1"); e("s_or_b32 s33, s33, s32"); e("s_lshr_b32 s32, s2, 7")
    elif p.mp==3:
        e("s_bfe_u32 s31, s2, 0x10002"); e("s_bfe_u32 s32, s2, 0x20005"); e("s_lshl_b32 s32, s32, 1"); e("s_or_b32 s31, s31, s32")
        e("s_bfe_u32 s33, s2, 0x20003"); e("s_lshl_b32 s33, s33, 2"); e("s_and_b32 s32, s2, 3"); e("s_or_b32 s33, s33, s32"); e("s_lshr_b32 s32, s2, 7")
    else:
        e("s_bfe_u32 s31, s2, 0x30004"); e("s_lshr_b32 s32, s2, 7"); e("s_and_b32 s33, s2, 15")
    e("s_lshl_b32 s34, s32, 4"); e("s_add_u32 s34, s34, s33")
    e("v_and_b32 v2, 15, v0"); e("v_lshrrev_b32 v3, 4, v0")
    e("s_cmp_eq_u32 s3, 0"); e("s_cbranch_scc1 L_helper")

    def emit_masks(base):
        e("v_and_b32 v8, 1, v0"); e("v_lshlrev_b32 v8, 4, v8"); e("v_mov_b32 v9, 0xffff"); e("v_lshlrev_b32 v9, v8, v9")
        e("v_bfe_u32 v8, v0, 1, 2")
        for r in range(4):
            e(f"v_cmp_eq_u32 vcc, {r}, v8"); nop(2); e(f"v_cndmask_b32 v{base+r}, 0, v9, vcc")
    def emit_tagconsts():
        e(f"s_add_u32 s30, s30, {TAGC:#x}")
        for i in range(4): e(f"s_mov_b32 s{56+i}, {0x07060500+i:#x}")
        e("s_mov_b32 s60, 0x0c0c0400"); e("s_mov_b32 s61, 0x04000c0c")
    def tag_insert(r, vtag):
        for i in range(4): e(f"v_perm_b32 v{r+i}, v{r+i}, v{vtag}, s{56+i}")
    def tag_check(r, vtag, vbad, t0, t1, first):
        e(f"v_perm_b32 v{t0}, v{r+1}, v{r}, s60"); e(f"v_perm_b32 v{t1}, v{r+3}, v{r+2}, s61")
        if first: e(f"v_bitop3_b32 v{vbad}, v{t0}, v{t1}, v{vtag} bitop3:0x56")
        else:
            e(f"v_bitop3_b32 v{t0}, v{t0}, v{t1}, v{vtag} bitop3:0x56"); e(f"v_or_b32 v{vbad}, v{vbad}, v{t0}")
    def poll_tail(lbl, vbad, slp):
        e(f"v_cmp_ne_u32 vcc, 0, v{vbad}")
        e(f"s_cbranch_vccz {lbl}_done")
        e("s_sub_u32 s62, s62, 1"); e(f"s_cbranch_scc1 {lbl}_done")
        if slp: e(f"s_sleep {slp}")
        e(f"s_branch {lbl}")
        e(f"{lbl}_done:")
    def poll_tail_masked(lbl, bk):
        e("s_and_b64 exec, exec, vcc")
        e(f"s_cbranch_scc0 {lbl}_done")
        e("s_sub_u32 s62, s62, 1"); e(f"s_cbranch_scc1 {lbl}_done")
        e("s_bcnt1_i32_b64 s99, exec"); e(f"s_lshr_b32 s99, s99, {bk}")
        e(f"{lbl}_slp:")
        e("s_sub_u32 s99, s99, 1"); e(f"s_cbranch_scc1 {lbl}")
        e("s_sleep 1"); e(f"s_branch {lbl}_slp")
        e(f"{lbl}_done:")
        e("s_mov_b64 exec, -1")
    def allred_rows(op, x, t):
        e(f"v_mov_b32 v{t}, v{x}"); nop(2); e(f"v_permlane16_swap_b32 v{x}, v{t}"); nop(1); e(f"{op} v{x}, v{x}, v{t}")
        e(f"v_mov_b32 v{t}, v{x}"); nop(2); e(f"v_permlane32_swap_b32 v{x}, v{t}"); nop(1); e(f"{op} v{x}, v{x}, v{t}")

    VK,VV,VW=4,5,6; VTAG=7; MK=10
    Q=14
    Q=16
    S=32
    DT=52
    AO=68
    ACC=76
    MX=92
    LS=94
    TM=96
    RING=100
    R=p.R; assert RING+4*R<=256
    e("s_sub_u32 s3, s3, 1")
    e("v_lshrrev_b32 v8, 2, v2"); e(f"v_lshlrev_b32 v{VK}, 11, v8"); e(f"v_lshl_add_u32 v{VK}, v3, 6, v{VK}")
    e("v_and_b32 v8, 3, v0"); e(f"v_lshl_add_u32 v{VK}, v8, 4, v{VK}")
    e(f"v_lshlrev_b32 v{VV}, 11, v3"); e(f"v_lshl_add_u32 v{VV}, v2, 4, v{VV}")
    e("s_lshl_b32 s35, s32, 3"); e("s_add_u32 s35, s35, s31"); e("s_lshl_b32 s35, s35, 22")
    e("s_lshl_b32 s54, s3, 13"); e("s_add_u32 s35, s35, s54")
    e("s_lshl_b32 s52, s33, 18"); e("s_add_u32 s52, s52, s35")
    e("s_lshl_b32 s53, s33, 16"); e("s_add_u32 s53, s53, s35"); e(f"s_add_u32 s53, s53, {6144*512:#x}")
    e("s_waitcnt lgkmcnt(0)")
    SRD={"AK":40,"AV":44,"BK":48,"BV":36}
    SRD={"AK":40,"AV":44,"BK":48,"BV":88}
    order=("AK,AV" if p.dyn else p.order).split(",")
    ptr={"AK":6,"AV":8,"BK":16,"BV":18}
    srd(SRD[order[0]], ptr[order[0]], ptr[order[0]]+1, 0x4000000)
    loads=[]
    for ph in order:
        br=0 if ph[0]=="A" else 1
        nt=8 if br==0 else 2
        for t in range(nt):
            for r in range(4):
                for hf in range(2): loads.append((ph,br,t,r,hf))
    NKV=len(loads)
    if not(p.dyn and p.wol):
        for t in range(8): loads.append(("WO",0,t,0,0))
    VK2,VV2,TK=48,49,56
    if p.dyn:
        for un in range(2):
            for k in range(4): loads.append(("DU",1,un,k,0))
            if not p.sat: loads.append(("TK",1,un+2,0,0))
    N=len(loads)
    st={"issued":0,"cur":None}
    def slot(i): return RING+4*(i%R)
    def ubuf(j): return slot(NKV+8+4*(j%3))
    if p.dyn: assert (NKV+8)%R+12<=R
    def unit_load(j,k,so):
        d=ubuf(j)+4*k; ph="BK" if k<2 else "BV"
        e(f"buffer_load_dwordx4 v[{d}:{d+3}], v{VK2 if k<2 else VV2}, s[{SRD[ph]}:{SRD[ph]+3}], s{so} offen offset:{(k&1)*256} {POL(p.pol)}")
    def ticket(j):
        e("s_mov_b64 exec, 1"); e(f"v_mov_b32 v{TK+j%3}, 1")
        if p.fake==1: e(f"buffer_load_dword v{TK+j%3}, off, s[36:39], s69 sc1")
        elif p.fake==2: e(f"buffer_load_dword v{TK+j%3}, off, s[36:39], s69")
        else: e(f"buffer_atomic_add v{TK+j%3}, off, s[36:39], s69 sc0 sc1")
        e("s_mov_b64 exec, -1")
    def issue(throttle=None):
        i=st["issued"]
        if i>=N: return
        ph,br,t,r,hf=loads[i]
        if throttle is not None and i>=throttle: e(f"s_waitcnt vmcnt({throttle-1})")
        d=slot(i)
        if ph=="WO":
            key=("WO",t//4)
            if st["cur"]!=key:
                e(f"s_add_u32 s55, s63, {(t//4)*4*896}"); st["cur"]=key
            e(f"buffer_load_dwordx4 v[{d}:{d+3}], v{VW}, s[92:95], s55 offen offset:{(t%4)*896} {POL(p.polw)}")
        elif ph=="DU":
            key=("DU",t)
            if st["cur"]!=key:
                e(f"s_lshl_b32 s55, s33, 13"); e("s_add_u32 s55, s55, s53")
                if t: e(f"s_add_u32 s55, s55, {16*8192:#x}")
                st["cur"]=key
            unit_load(t,r,55)
        elif ph=="TK":
            ticket(t)
        else:
            key=(br,t)
            if st["cur"]!=key:
                e(f"s_add_u32 s55, s{52+br}, {t*32768}"); st["cur"]=key
            vo=VK if (ph[1]=="K" and p.kpat) else VV
            e(f"buffer_load_dwordx4 v[{d}:{d+3}], v{vo}, s[{SRD[ph]}:{SRD[ph]+3}], s55 offen offset:{r*512+hf*256} {POL(p.pol)}")
        st["issued"]+=1
    if p.bar0: e("s_barrier")
    for i in range(p.T0): issue()
    e("s_load_dword s30, s[28:29], 0")
    for ph in ("AK","AV","BK","BV"):
        if ph!=order[0]: srd(SRD[ph], ptr[ph], ptr[ph]+1, 0x4000000)
    srd(36,28,29,WS_SIZE)
    if p.dyn:
        e("s_lshl_b32 s54, s32, 3"); e("s_add_u32 s54, s54, s31"); e("s_lshl_b32 s53, s54, 22")
        e("s_lshl_b32 s69, s3, 11"); e("s_add_u32 s53, s53, s69"); e(f"s_add_u32 s53, s53, {6144*512:#x}")
        e("s_lshl_b32 s54, s54, 2"); e("s_add_u32 s54, s54, s3"); e("s_lshl_b32 s69, s54, 7"); e(f"s_add_u32 s69, s69, {CNT_OFF:#x}")
        e("v_lshrrev_b32 v8, 2, v2"); e(f"v_lshlrev_b32 v{VK2}, 9, v8"); e(f"v_lshl_add_u32 v{VK2}, v3, 6, v{VK2}")
        e("v_and_b32 v8, 3, v0"); e(f"v_lshl_add_u32 v{VK2}, v8, 4, v{VK2}")
        e(f"v_lshlrev_b32 v{VV2}, 9, v3"); e(f"v_lshl_add_u32 v{VV2}, v2, 4, v{VV2}")
        for c in range(8): e(f"v_mov_b32 v{ACC+8+c}, 0")
        e("s_mov_b32 s100, 0xff00ff00"); e("s_mov_b32 s101, 0x00ff00ff")
    e("s_cmp_ge_u32 s34, 16"); e("s_cselect_b32 s92, s22, s12"); e("s_cselect_b32 s93, s23, s13")
    e(f"s_mov_b32 s94, {4096*896:#x}"); e("s_mov_b32 s95, 0x20000")
    e("s_and_b32 s54, s34, 15"); e("s_lshl_b32 s54, s54, 5"); e("s_lshl_b32 s63, s31, 9"); e("s_add_u32 s63, s63, s54"); e("s_mul_i32 s63, s63, 896")
    e(f"v_mul_u32_u24 v{VW}, {8*896}, v3"); e(f"v_lshl_add_u32 v{VW}, v2, 4, v{VW}")
    e("s_lshl_b32 s54, s3, 8"); e(f"v_add_u32 v{VW}, s54, v{VW}")
    e("s_lshl_b32 s54, s3, 4"); e("v_add_u32 v8, s54, v2")
    e("v_mov_b32 v14, v8")
    e("v_cmp_gt_u32 vcc, 56, v8"); e("v_mov_b32 v9, 0x40000000"); nop(1); e(f"v_cndmask_b32 v{VW}, v9, v{VW}, vcc")
    emit_masks(MK)
    e("v_bfe_u32 v8, v0, 3, 1"); e("v_lshlrev_b32 v15, 9, v8"); e("v_lshl_add_u32 v15, v3, 6, v15")
    e("v_and_b32 v8, 3, v0"); e("v_lshl_add_u32 v15, v8, 4, v15")
    for br in range(2):
        e(f"v_mov_b32 v{MX+br}, 0xff800000"); e(f"v_mov_b32 v{LS+br}, 0")
    e(f"s_mov_b32 s96, {f2u(CEXP):#x}"); e("s_mov_b32 s97, 0xffff0000")
    while st["issued"]<R: issue(p.TI)
    e("s_waitcnt lgkmcnt(0)")
    emit_tagconsts()
    e(f"v_mov_b32 v{VTAG}, s30")
    if not p.dyn: stamp(1)
    e("v_mov_b32 v8, 0"); e(f"s_mov_b32 s62, {p.spin*16}")
    e("L_qw:")
    e(f"ds_read_b32 v9, v8 offset:{LDS_FL}"); e("s_waitcnt lgkmcnt(0)")
    e("v_cmp_ne_u32 vcc, 0, v9"); e("s_cbranch_vccnz L_qw_done")
    e("s_sub_u32 s62, s62, 1"); e("s_cbranch_scc1 L_qw_done")
    e("s_sleep 1"); e("s_branch L_qw")
    e("L_qw_done:")
    if not p.dyn: stamp(2)
    for br in range(2):
        for hf in range(2):
            q=Q+br*8+hf*4
            e(f"ds_read_b128 v[{q}:{q+3}], v15 offset:{LDS_Q+br*1024+hf*256}")
    e("s_waitcnt lgkmcnt(0)")
    groups=[loads[i] for i in range(0,NKV,2)]
    NG=len(groups)
    def sreg(br,t,r): return S+(0 if br==0 else 16)+t*2+(r>>1)
    lastm={}
    def need(dist, idx):
        n=dist-(len(L)-idx-1)
        if n>0: nop(n)
    def k_post(gi):
        ph,br,t,r,_=groups[gi]; d0=DT+4*((gi-1)%4); d1=DT+4*(gi%4)
        def qp(c): return f"quad_perm:[{c},{c},{c},{c}] row_mask:0xf bank_mask:0xf"
        need(8,lastm[gi-1])
        e(f"v_mov_b32_dpp v{TM}, v{d0} {qp(0)}"); e(f"v_mov_b32_dpp v{TM+1}, v{d0+2} {qp(2)}")
        need(8,lastm[gi])
        e(f"v_mov_b32_dpp v{TM+2}, v{d1} {qp(0)}"); e(f"v_mov_b32_dpp v{TM+3}, v{d1+2} {qp(2)}")
        e(f"v_add_f32_dpp v{TM}, v{d0+1}, v{TM} {qp(1)}"); e(f"v_add_f32_dpp v{TM+1}, v{d0+3}, v{TM+1} {qp(3)}")
        e(f"v_add_f32_dpp v{TM+2}, v{d1+1}, v{TM+2} {qp(1)}"); e(f"v_add_f32_dpp v{TM+3}, v{d1+3}, v{TM+3} {qp(3)}")
        e(f"v_add_f32 v{TM}, v{TM}, v{TM+1}"); e(f"v_add_f32 v{TM+2}, v{TM+2}, v{TM+3}")
        s=sreg(br,t,r)
        e(f"v_cvt_pk_bf16_f32 v{s}, v{TM}, v{TM+2}")
        e(f"v_lshlrev_b32 v{TM}, 16, v{s}"); e(f"v_and_b32 v{TM+1}, s97, v{s}")
        e(f"v_max3_f32 v{MX+br}, v{TM}, v{TM+1}, v{MX+br}")
    def v_pre(gi):
        ph,br,t,r,_=groups[gi]; s=sreg(br,t,r); a=AO+4*(gi%2)
        if r&1: e(f"v_and_b32 v{TM}, s97, v{s}")
        else: e(f"v_lshlrev_b32 v{TM}, 16, v{s}")
        e(f"v_fma_f32 v{TM}, v{TM}, s96, -v{MX+br}")
        e(f"v_exp_f32 v{TM}, v{TM}"); nop(1)
        e(f"v_cvt_pk_bf16_f32 v{TM+1}, v{TM}, v{TM}")
        for c in range(4): e(f"v_and_b32 v{a+c}, v{MK+c}, v{TM+1}")
        e(f"v_add_f32 v{LS+br}, v{LS+br}, v{TM}")
    def fin_max(br):
        allred_rows("v_max_f32", MX+br, TM)
        e(f"v_mul_f32 v{MX+br}, s96, v{MX+br}")
    def fin_branch(br):
        allred_rows("v_add_f32", LS+br, TM)
        e(f"v_lshrrev_b32 v{TM}, 5, v0"); e(f"v_lshlrev_b32 v{TM}, 10, v{TM}"); e(f"v_lshl_add_u32 v{TM}, v2, 5, v{TM}")
        e(f"v_and_b32 v{TM+1}, 1, v3"); e(f"v_lshl_add_u32 v{TM}, v{TM+1}, 4, v{TM}")
        e("s_lshl_b32 s54, s3, 12"); e(f"v_add_u32 v{TM}, s54, v{TM}")
        for hf in range(2):
            a=ACC+br*8+hf*4
            e(f"ds_write_b128 v{TM}, v[{a}:{a+3}] offset:{LDS_O+br*2048+hf*512}")
        e(f"v_bfe_u32 v{TM}, v0, 3, 1"); e(f"v_lshlrev_b32 v{TM}, 5, v{TM}"); e("s_lshl_b32 s54, s3, 3"); e(f"v_add_u32 v{TM}, s54, v{TM}")
        e(f"v_mov_b32 v{TM+2}, v{MX+br}"); e(f"v_mov_b32 v{TM+3}, v{LS+br}")
        e(f"ds_write_b64 v{TM}, v[{TM+2}:{TM+3}] offset:{LDS_ST+br*64}")
    pend_k=[]
    maxdone=set(); predone=set(); pend_fin=[]
    def flush_k(keep):
        while len(pend_k)>keep: k_post(pend_k.pop(0))
    for gi in range(NG):
        ph,br,t,r,_=groups[gi]
        i0=2*gi
        if ph[1]=="V" and gi not in predone:
            if br not in maxdone:
                if any(groups[x][1]==br for x in pend_k):
                    flush_k(0)
                fin_max(br); maxdone.add(br)
            v_pre(gi); predone.add(gi); nop(2)
        for hf in range(2):
            i=i0+hf
            e(f"s_waitcnt vmcnt({st['issued']-i-1})")
            d=slot(i)
            if ph[1]=="K":
                D=DT+4*(gi%4); q=Q+br*8+hf*4
                c="0" if hf==0 else f"v[{D}:{D+3}]"
                e(f"v_mfma_f32_16x16x32_bf16 v[{D}:{D+3}], v[{d}:{d+3}], v[{q}:{q+3}], {c}")
            else:
                a=AO+4*(gi%2); D=ACC+br*8+hf*4
                c="0" if (t==0 and r==0) else f"v[{D}:{D+3}]"
                e(f"v_mfma_f32_16x16x32_bf16 v[{D}:{D+3}], v[{a}:{a+3}], v[{d}:{d+3}], {c}")
            lastm[gi]=len(L)-1
            Tc = p.TE if (p.TE and i>=NKV-p.NE) else p.T
            if p.fine and hf==0:
                while st["issued"]-(i+1)<Tc and st["issued"]<N: issue()
        consumed=i0+2
        lag=st["issued"]-consumed
        if lag>=Tc: issue(Tc)
        else:
            while st["issued"]-consumed<Tc and st["issued"]<N: issue()
        flush_k(0)
        if ph[1]=="K" and (r&1): pend_k.append(gi)
        if pend_fin and pend_fin[0][1]<gi:
            fin_branch(pend_fin.pop(0)[0])
        if ph[1]=="V" and (gi+1==NG or groups[gi+1][0]!=ph): pend_fin.append((br,gi))
        if gi+1<NG:
            nph,nbr,_,_,_=groups[gi+1]
            if nph[1]=="V" and (nbr in maxdone or not any(groups[x][1]==nbr for x in pend_k)):
                if nbr not in maxdone: fin_max(nbr); maxdone.add(nbr)
                v_pre(gi+1); predone.add(gi+1)
    while st["issued"]<N: issue()
    if p.dyn:
        stamp(1)
        if p.sat:
            e("s_add_u32 s64, s28, s69"); e("s_addc_u32 s65, s29, 0"); e("s_mov_b32 s66, 1"); e("s_atomic_add s66, s[64:65], 0 glc")
        nop(4)
        while pend_fin: fin_branch(pend_fin.pop(0)[0])
        def process(j,lbl):
            b0=ubuf(j); D=DT; q=Q+8; a=AO
            def qp(c): return f"quad_perm:[{c},{c},{c},{c}] row_mask:0xf bank_mask:0xf"
            e(f"v_mfma_f32_16x16x32_bf16 v[{D}:{D+3}], v[{b0}:{b0+3}], v[{q}:{q+3}], 0")
            e(f"v_mfma_f32_16x16x32_bf16 v[{D}:{D+3}], v[{b0+4}:{b0+7}], v[{q+4}:{q+7}], v[{D}:{D+3}]")
            nop(8)
            e(f"v_mov_b32_dpp v{TM}, v{D} {qp(0)}"); e(f"v_mov_b32_dpp v{TM+1}, v{D+2} {qp(2)}")
            e(f"v_add_f32_dpp v{TM}, v{D+1}, v{TM} {qp(1)}"); e(f"v_add_f32_dpp v{TM+1}, v{D+3}, v{TM+1} {qp(3)}")
            e(f"v_add_f32 v{TM}, v{TM}, v{TM+1}")
            e(f"v_cvt_pk_bf16_f32 v{TM}, v{TM}, v{TM}"); e(f"v_and_b32 v{TM}, s97, v{TM}")
            e(f"v_mul_f32 v{TM+1}, s96, v{TM}")
            allred_rows("v_max_f32", TM+1, TM+2)
            e(f"v_cmp_gt_f32 vcc, v{TM+1}, v{MX+1}"); e(f"s_cbranch_vccz {lbl}_keep")
            e(f"v_max_f32 v{TM+1}, v{TM+1}, v{MX+1}"); e(f"v_sub_f32 v{TM+2}, v{MX+1}, v{TM+1}"); e(f"v_exp_f32 v{TM+2}, v{TM+2}")
            e(f"v_mov_b32 v{MX+1}, v{TM+1}"); nop(1)
            e(f"v_mul_f32 v{LS+1}, v{LS+1}, v{TM+2}")
            e(f"v_mov_b32_dpp v{TM+3}, v{TM+2} row_ror:8 row_mask:0xf bank_mask:0xf")
            e(f"v_cndmask_b32 v{TM+2}, v{TM+2}, v{TM+3}, s[100:101]")
            for c in range(8): e(f"v_mul_f32 v{ACC+8+c}, v{ACC+8+c}, v{TM+2}")
            e(f"{lbl}_keep:")
            e(f"v_fma_f32 v{TM}, v{TM}, s96, -v{MX+1}")
            e(f"v_exp_f32 v{TM}, v{TM}"); nop(1)
            e(f"v_cvt_pk_bf16_f32 v{TM+1}, v{TM}, v{TM}")
            for c in range(4): e(f"v_and_b32 v{a+c}, v{MK+c}, v{TM+1}")
            e(f"v_add_f32 v{LS+1}, v{LS+1}, v{TM}"); nop(1)
            for hf in range(2):
                A=ACC+8+4*hf
                e(f"v_mfma_f32_16x16x32_bf16 v[{A}:{A+3}], v[{a}:{a+3}], v[{b0+8+4*hf}:{b0+11+4*hf}], v[{A}:{A+3}]")
        e("s_mov_b32 s68, 0")
        if p.fake: e("s_add_u32 s67, s33, 16")
        e("L_dyn:")
        for i in ((1,2,3) if not p.sat else ()):
            e("s_cmp_eq_u32 s68, 0"); e(f"s_cbranch_scc1 L_dy{i}_draw")
            stamp(2)
            e("s_mov_b32 s68, 2"); e(f"s_waitcnt vmcnt({9 if p.wol==1 else 1})"); e(f"s_branch L_dy{i}_proc")
            if p.wol==1:
                e(f"L_dy{i}_empty:")
                for t in range(8):
                    if t%4==0: e(f"s_add_u32 s55, s63, {(t//4)*4*896}")
                    d=slot(NKV+t)
                    e(f"buffer_load_dwordx4 v[{d}:{d+3}], v{VW}, s[92:95], s55 offen offset:{(t%4)*896} {POL(p.polw)}")
                e(f"s_branch L_dy{i}_proc")
            e(f"L_dy{i}_draw:")
            e("s_waitcnt vmcnt(5)")
            e(f"v_readfirstlane_b32 s54, v{TK+(i+1)%3}")
            if p.fake: e("s_add_u32 s67, s67, 16"); e("s_mov_b32 s54, s67")
            e(f"s_cmp_ge_u32 s54, {p.NU}"); e("s_cselect_b32 s68, 1, 0"); e(f"s_cbranch_scc1 L_dy{i}_{'empty' if p.wol==1 else 'proc'}")
            e("s_lshl_b32 s54, s54, 13"); e("s_add_u32 s55, s54, s53")
            for k in range(4): unit_load(i+1,k,55)
            ticket(i+3)
            e(f"L_dy{i}_proc:")
            process(i-1,f"L_dy{i}")
            e("s_cmp_eq_u32 s68, 2")
            e("s_cbranch_scc1 L_dyn_done" if i<3 else "s_cbranch_scc0 L_dyn")
        if p.sat:
            for i in (1,2,3):
                e("s_cmp_eq_u32 s68, 0"); e(f"s_cbranch_scc1 L_dy{i}_draw")
                stamp(2)
                e("s_mov_b32 s68, 2"); e("s_waitcnt vmcnt(0)"); e(f"s_branch L_dy{i}_proc")
                e(f"L_dy{i}_empty:"); e("s_waitcnt vmcnt(4)"); e(f"s_branch L_dy{i}_proc")
                e(f"L_dy{i}_draw:")
                e(f"s_waitcnt vmcnt({6 if p.sm else 4}) lgkmcnt(0)")
                e(f"s_cmp_ge_u32 s66, {p.NU}"); e("s_cselect_b32 s68, 1, 0"); e(f"s_cbranch_scc1 L_dy{i}_empty")
                e("s_lshl_b32 s54, s66, 13"); e("s_add_u32 s55, s54, s53")
                e("s_mov_b32 s66, 1"); e("s_atomic_add s66, s[64:65], 0 glc")
                for k in range(4):
                    if p.sm and k==2: e("s_waitcnt vmcnt(6)")
                    unit_load(i+1,k,55)
                e(f"L_dy{i}_proc:")
                process(i-1,f"L_dy{i}")
                e("s_cmp_eq_u32 s68, 2")
                e("s_cbranch_scc1 L_dyn_done" if i<3 else "s_cbranch_scc0 L_dyn")
        e("L_dyn_done:")
        stamp(3)
        def wo_loads():
            for t in range(8):
                if t%4==0: e(f"s_add_u32 s55, s63, {(t//4)*4*896}")
                d=slot(NKV+t)
                e(f"buffer_load_dwordx4 v[{d}:{d+3}], v{VW}, s[92:95], s55 offen offset:{(t%4)*896} {POL(p.polw)}")
        if p.wol==2: wo_loads()
        fin_branch(1)
    else:
        stamp(3)
        while pend_fin: fin_branch(pend_fin.pop(0)[0])
    e("s_waitcnt lgkmcnt(0)")
    e("s_barrier")
    stamp(4)
    if p.dyn and p.wol==3: wo_loads()
    G=16
    e(f"v_lshlrev_b32 v8, 4, v0"); e("s_lshl_b32 s54, s3, 10"); e("v_add_u32 v8, s54, v8")
    e("s_lshl_b32 s54, s3, 5"); e("v_mov_b32 v9, s54")
    e(f"ds_read_b128 v[{G}:{G+3}], v9 offset:{LDS_ST}"); e(f"ds_read_b128 v[{G+4}:{G+7}], v9 offset:{LDS_ST+16}")
    for w in range(4): e(f"ds_read_b128 v[{G+8+4*w}:{G+11+4*w}], v8 offset:{LDS_O+w*4096}")
    e("v_lshrrev_b32 v8, 3, v0"); e("v_lshlrev_b32 v8, 12, v8"); e("v_and_b32 v9, 7, v0"); e("v_lshl_add_u32 v8, v9, 4, v8")
    e("s_lshl_b32 s54, s31, 2"); e("s_add_u32 s54, s54, s3")
    e("s_lshl_b32 s55, s54, 15"); e("s_lshl_b32 s98, s34, 7"); e("s_add_u32 s55, s55, s98"); e(f"s_add_u32 s55, s55, {H1_OFF:#x}")
    e("s_waitcnt lgkmcnt(0)" if p.stamps else "s_waitcnt lgkmcnt(4)")
    M=G+24
    e(f"v_max3_f32 v{M}, v{G}, v{G+2}, v{G+4}"); e(f"v_max_f32 v{M}, v{M}, v{G+6}")
    for w in range(4): e(f"v_sub_f32 v{G+2*w}, v{G+2*w}, v{M}")
    for w in range(4): e(f"v_exp_f32 v{G+2*w}, v{G+2*w}")
    nop(1)
    e(f"v_mul_f32 v{M+1}, v{G}, v{G+1}")
    for w in range(1,4): e(f"v_fmac_f32 v{M+1}, v{G+2*w}, v{G+2*w+1}")
    e(f"v_rcp_f32 v{M+2}, v{M+1}"); e(f"v_log_f32 v{M+3}, v{M+1}"); nop(1)
    for w in range(4): e(f"v_mul_f32 v{G+2*w}, v{G+2*w}, v{M+2}")
    PB=M+4
    e(f"v_add_f32 v{PB+2}, v{M}, v{M+3}"); e(f"v_mov_b32 v{PB+3}, v{VTAG}")
    e("s_waitcnt lgkmcnt(0)")
    O=M+8
    for c in range(4): e(f"v_mul_f32 v{O+c}, v{G}, v{G+8+c}")
    for w in range(1,4):
        for c in range(4): e(f"v_fmac_f32 v{O+c}, v{G+2*w}, v{G+8+4*w+c}")
    e(f"v_cvt_pk_bf16_f32 v{PB}, v{O}, v{O+1}"); e(f"v_cvt_pk_bf16_f32 v{PB+1}, v{O+2}, v{O+3}")
    e(f"buffer_store_dwordx4 v[{PB}:{PB+3}], v8, s[36:39], s55 offen sc1")
    stamp(5)
    e("v_lshrrev_b32 v9, 1, v0"); e("v_lshlrev_b32 v8, 7, v9"); e("v_and_b32 v9, 1, v0"); e("v_lshl_add_u32 v8, v9, 4, v8")
    e("s_lshl_b32 s55, s31, 5"); e("s_add_u32 s55, s55, s34"); e("s_lshl_b32 s55, s55, 12"); e(f"s_add_u32 s55, s55, {H1_OFF:#x}")
    e("s_lshl_b32 s98, s3, 5"); e("s_add_u32 s55, s55, s98")
    e("v_lshrrev_b32 v20, 5, v0"); e("v_lshlrev_b32 v20, 7, v20"); e("v_lshl_add_u32 v20, v9, 4, v20"); e("v_add_u32 v20, s98, v20")
    e("v_bfe_u32 v21, v0, 3, 1"); e("v_lshlrev_b32 v21, 7, v21"); e("v_lshl_add_u32 v21, v3, 5, v21")
    e(f"s_mov_b32 s62, {p.spin}")
    GA=16
    e("L_h1:")
    e(f"buffer_load_dwordx4 v[{GA}:{GA+3}], v8, s[36:39], s55 offen sc1")
    e("s_waitcnt vmcnt(0)")
    e(f"v_cmp_ne_u32 vcc, v{GA+3}, v{VTAG}")
    poll_tail_masked("L_h1",p.bk1)
    stamp(6)
    def ror(op,x,n): return f"{op}_dpp v{x}, v{x}, v{x} row_ror:{n} row_mask:0xf bank_mask:0xf"
    MXX=22; A0=24; W=28; TT=32
    e(f"v_mov_b32 v{MXX}, v{GA+2}")
    e(f"v_lshlrev_b32 v{A0}, 16, v{GA}"); e(f"v_and_b32 v{A0+1}, s97, v{GA}")
    e(ror("v_max_f32",MXX,2))
    e(f"v_lshlrev_b32 v{A0+2}, 16, v{GA+1}"); e(f"v_and_b32 v{A0+3}, s97, v{GA+1}")
    e(ror("v_max_f32",MXX,4)); nop(2)
    e(ror("v_max_f32",MXX,8))
    e(f"v_mov_b32 v{TT}, v{MXX}"); nop(2); e(f"v_permlane16_swap_b32 v{MXX}, v{TT}"); nop(1); e(f"v_max_f32 v{MXX}, v{MXX}, v{TT}")
    e(f"v_sub_f32 v{W}, v{GA+2}, v{MXX}"); e(f"v_exp_f32 v{W}, v{W}"); nop(1)
    for c in range(4): e(f"v_mul_f32 v{A0+c}, v{W}, v{A0+c}")
    regs=[W]+[A0+c for c in range(4)]
    for n in (2,4,8):
        for x in regs: e(ror("v_add_f32",x,n))
    for i,x in enumerate(regs): e(f"v_mov_b32 v{TT+i}, v{x}")
    for i,x in enumerate(regs): e(f"v_permlane16_swap_b32 v{x}, v{TT+i}")
    for i,x in enumerate(regs): e(f"v_add_f32 v{x}, v{x}, v{TT+i}")
    e(f"v_rcp_f32 v{W}, v{W}"); nop(1)
    for c in range(4): e(f"v_mul_f32 v{A0+c}, v{W}, v{A0+c}")
    for c in range(4): e(f"v_cvt_pk_bf16_f32 v{A0+c}, v{A0+c}, v{A0+c}")
    e("s_mov_b32 exec_lo, 3"); e("s_mov_b32 exec_hi, 3")
    e(f"ds_write_b128 v20, v[{A0}:{A0+3}] offset:{LDS_OX}")
    e("s_mov_b64 exec, -1")
    e("s_waitcnt lgkmcnt(0)")
    e("s_barrier")
    A0=24
    e(f"ds_read_b128 v[{A0}:{A0+3}], v21 offset:{LDS_OX}"); e(f"ds_read_b128 v[{A0+4}:{A0+7}], v21 offset:{LDS_OX+16}")
    e("s_waitcnt lgkmcnt(0)")
    DO=44
    AB=48
    for t in range(8):
        for c in range(4): e(f"v_and_b32 v{AB+4*t+c}, v{MK+c}, v{A0+t}")
    if p.h2lay==0:
        e("v_lshrrev_b32 v8, 5, v0"); e("v_mul_u32_u24 v8, 56, v8"); e("v_add_u32 v8, v8, v14"); e("v_lshlrev_b32 v8, 12, v8")
    else:
        e("v_lshrrev_b32 v8, 5, v0"); e("v_mul_u32_u24 v8, 14, v8"); e("v_lshrrev_b32 v9, 2, v14"); e("v_add_u32 v8, v8, v9"); e("v_lshlrev_b32 v8, 14, v8")
        e("v_and_b32 v9, 3, v14"); e("v_lshl_add_u32 v8, v9, 5, v8")
    for t in range(8):
        d=slot(NKV+t); c="0" if t==0 else f"v[{DO}:{DO+3}]"
        e(f"v_mfma_f32_16x16x32_bf16 v[{DO}:{DO+3}], v[{AB+4*t}:{AB+4*t+3}], v[{d}:{d+3}], {c}")
    e("v_and_b32 v9, 1, v3"); e("v_lshl_add_u32 v8, v9, 4, v8")
    e("v_cmp_gt_u32 vcc, 56, v14"); e("v_mov_b32 v9, 0x40000000")
    e("s_lshr_b32 s54, s34, 4"); e(f"s_mul_i32 s54, s54, {112*4096}"); e("v_cndmask_b32 v8, v9, v8, vcc")
    e("s_and_b32 s55, s34, 15"); e("s_lshl_b32 s98, s31, 4"); e("s_add_u32 s55, s55, s98"); e(f"s_lshl_b32 s55, s55, {5 if p.h2lay==0 else 7}")
    e("s_add_u32 s54, s54, s55"); e(f"s_add_u32 s54, s54, {H2_OFF:#x}")
    nop(2)
    tag_insert(DO,VTAG)
    e(f"buffer_store_dwordx4 v[{DO}:{DO+3}], v8, s[36:39], s54 offen sc1")
    stamp(7)
    if p.stamps:
        e("s_cmp_lg_u32 s3, 0"); e("s_cbranch_scc1 L_end")
        write_stamps(8,0)
    e("s_endpgm")

    e("L_helper:")
    e("s_setprio 3")
    e("v_mov_b32 v8, 0"); e(f"ds_write_b32 v8, v8 offset:{LDS_FL}")
    X=16
    WQ=64
    e("v_bfe_u32 v8, v0, 3, 1"); e("v_mul_u32_u24 v4, 896, v8"); e("v_mul_u32_u24 v8, 56, v3"); e("v_add_u32 v4, v4, v8")
    e(f"v_mul_u32_u24 v5, {28*8192}, v3"); e("v_lshl_add_u32 v5, v2, 4, v5")
    e("s_and_b32 s35, s34, 3"); e("s_mul_i32 s52, s35, 224")
    e(f"s_mul_i32 s53, s35, {112*8192}"); e("s_lshl_b32 s54, s31, 10"); e("s_add_u32 s53, s53, s54")
    e("s_bfe_u32 s54, s34, 0x20002"); e("s_lshl_b32 s54, s54, 8"); e("s_add_u32 s53, s53, s54")
    e("s_cmp_ge_u32 s34, 16")
    e("s_waitcnt lgkmcnt(0)")
    e("s_cselect_b32 s40, s14, s4"); e("s_cselect_b32 s41, s15, s5"); e("s_mov_b32 s42, 1792"); e("s_mov_b32 s43, 0x20000")
    e("s_cselect_b32 s44, s20, s10"); e("s_cselect_b32 s45, s21, s11"); e(f"s_mov_b32 s46, {0 if p.nowq else 448*8192:#x}"); e("s_mov_b32 s47, 0x20000")
    e(f"buffer_load_dwordx4 v[{X}:{X+3}], v4, s[40:43], s52 offen")
    e(f"buffer_load_dwordx4 v[{X+4}:{X+7}], v4, s[40:43], s52 offen offset:16")
    e(f"buffer_load_dwordx4 v[{X+8}:{X+11}], v4, s[40:43], s52 offen offset:32")
    e(f"buffer_load_dwordx2 v[{X+12}:{X+13}], v4, s[40:43], s52 offen offset:48")
    for t in range(28):
        e(f"buffer_load_dwordx4 v[{WQ+4*t}:{WQ+4*t+3}], v5, s[44:47], s53 offen {POL(p.polw)}")
        if t<27: e("s_add_u32 s53, s53, 8192")
    XT=0
    if p.dyn:
        XT=1
        srd(36,28,29,WS_SIZE)
        e("s_lshl_b32 s54, s32, 3"); e("s_add_u32 s54, s54, s31"); e("s_lshl_b32 s54, s54, 9"); e(f"s_add_u32 s54, s54, {CNT_OFF:#x}")
        e("v_lshlrev_b32 v8, 7, v0"); e("v_mov_b32 v47, 32")
        e("s_cmp_eq_u32 s33, 0"); e("s_cselect_b32 s55, 0, 0x40000000"); e("v_add_u32 v8, s55, v8")
        e("s_mov_b64 exec, 15")
        e("buffer_atomic_swap v47, v8, s[36:39], s54 offen sc0 sc1")
        e("s_mov_b64 exec, -1")
    if p.bar0: e("s_barrier")
    e("s_load_dword s30, s[28:29], 0")
    srd(36,28,29,WS_SIZE)
    emit_masks(MK)
    e("s_mov_b32 s48, 0x01000100"); e("s_mov_b32 s49, 0x03020302")
    e("v_lshrrev_b32 v8, 5, v0"); e("v_lshlrev_b32 v6, 14, v8"); e("v_lshl_add_u32 v6, v2, 5, v6"); e("v_and_b32 v9, 1, v3"); e("v_lshl_add_u32 v6, v9, 4, v6")
    e("s_lshl_b32 s50, s31, 15"); e("s_lshl_b32 s54, s34, 9"); e("s_add_u32 s50, s50, s54"); e(f"s_add_u32 s50, s50, {H0_OFF:#x}")
    e("v_lshlrev_b32 v14, 11, v8"); e("v_and_b32 v9, 31, v0"); e("v_lshl_add_u32 v14, v9, 4, v14")
    e("s_lshl_b32 s51, s31, 1"); e("s_add_u32 s51, s51, s32"); e("s_lshl_b32 s51, s51, 14"); e(f"s_add_u32 s51, s51, {H0_OFF:#x}")
    e("v_lshlrev_b32 v15, 3, v0")
    e("s_waitcnt lgkmcnt(0)")
    emit_tagconsts()
    e(f"v_mov_b32 v{VTAG}, s30")
    e(f"s_waitcnt vmcnt({28+XT})")
    stamp(1)
    DQ=32; AQ=36
    def aq(t):
        a=AQ+4*(t%2)
        e(f"v_perm_b32 v8, v{X+t//2}, v{X+t//2}, s{48+(t&1)}")
        for c in range(4): e(f"v_and_b32 v{a+c}, v{MK+c}, v8")
    aq(0)
    for t in range(28):
        if t+1<28: aq(t+1)
        else: nop(2)
        e(f"s_waitcnt vmcnt({27-t+XT})")
        a=AQ+4*(t%2); c="0" if t==0 else f"v[{DQ}:{DQ+3}]"
        e(f"v_mfma_f32_16x16x32_bf16 v[{DQ}:{DQ+3}], v[{a}:{a+3}], v[{WQ+4*t}:{WQ+4*t+3}], {c}")
    nop(8)
    if XT: e("s_waitcnt vmcnt(0)")
    tag_insert(DQ,VTAG)
    e(f"buffer_store_dwordx4 v[{DQ}:{DQ+3}], v6, s[36:39], s50 offen sc1")
    stamp(2)
    e(f"s_mov_b32 s62, {p.spin}")
    if p.first_delay: e(f"s_sleep {p.first_delay}")
    for i in range(p.fd2): e("s_sleep 127")
    GQ=64; BAD=44; T0=45; T1=46
    e("s_mov_b32 s35, 0xffff")
    e("L_h0:")
    for pi in range(4):
        e(f"s_add_u32 s54, s51, {pi*4096}")
        for kq in range(4):
            k=pi*4+kq; r=GQ+4*k
            e(f"s_bitcmp0_b32 s35, {k}"); e(f"s_cbranch_scc1 L_h0s{k}")
            e(f"buffer_load_dwordx4 v[{r}:{r+3}], v14, s[36:39], s54 offen offset:{kq*512} sc1")
            e(f"L_h0s{k}:")
    e("s_waitcnt vmcnt(0)")
    e("s_mov_b32 s35, 0")
    for k in range(16):
        tag_check(GQ+4*k,VTAG,BAD,T0,T1,True)
        e(f"v_cmp_ne_u32 vcc, 0, v{BAD}"); e("s_cmp_lg_u64 vcc, 0"); e(f"s_cselect_b32 s54, {1<<k}, 0"); e("s_or_b32 s35, s35, s54")
    e("s_cbranch_scc0 L_h0_done")
    e("s_sub_u32 s62, s62, 1"); e("s_cbranch_scc1 L_h0_done")
    if p.sleep0: e(f"s_sleep {p.sleep0}")
    e("s_branch L_h0")
    e("L_h0_done:")
    stamp(3)
    for pi in range(4):
        r=GQ+16*pi
        for c in range(4):
            e(f"v_add_f32 v{r+c}, v{r+c}, v{r+4+c}"); e(f"v_add_f32 v{r+8+c}, v{r+8+c}, v{r+12+c}")
        for c in range(4): e(f"v_add_f32 v{r+c}, v{r+c}, v{r+8+c}")
        e(f"v_cvt_pk_bf16_f32 v{r}, v{r}, v{r+1}"); e(f"v_cvt_pk_bf16_f32 v{r+1}, v{r+2}, v{r+3}")
        e(f"ds_write_b64 v15, v[{r}:{r+1}] offset:{LDS_Q+pi*512}")
    e("v_mov_b32 v8, 0"); e("v_mov_b32 v9, 1")
    e("s_waitcnt lgkmcnt(0)")
    e(f"ds_write_b32 v8, v9 offset:{LDS_FL}")
    stamp(4)
    if p.pt:
        for i in range(p.ptd): e("s_sleep 127")
        e("v_and_b32 v9, 31, v0")
        e("v_lshlrev_b32 v8, 12, v9")
        e("s_lshl_b32 s54, s31, 17"); e("s_lshl_b32 s52, s34, 7"); e("s_add_u32 s54, s54, s52"); e(f"s_add_u32 s54, s54, {H1_OFF:#x}")
        e(f"buffer_load_dword v{GQ}, v8, s[36:39], s54 offen sc1")
        e("v_min_u32 v9, 27, v9")
        e("v_lshlrev_b32 v8, 14, v9")
        e("s_lshr_b32 s54, s34, 4"); e(f"s_mul_i32 s54, s54, {112*4096}")
        e("s_and_b32 s55, s34, 15"); e("s_lshl_b32 s52, s31, 4"); e("s_add_u32 s55, s55, s52"); e("s_lshl_b32 s55, s55, 7")
        e("s_add_u32 s54, s54, s55"); e(f"s_add_u32 s54, s54, {H2_OFF:#x}")
        e(f"buffer_load_dword v{GQ+1}, v8, s[36:39], s54 offen sc1")
        e("v_and_b32 v9, 3, v0"); e("v_lshlrev_b32 v8, 12, v9")
        e("s_lshr_b32 s54, s2, 2"); e("s_lshl_b32 s54, s54, 14"); e(f"s_add_u32 s54, s54, {H2_OFF:#x}")
        e(f"buffer_load_dword v{GQ+2}, v8, s[36:39], s54 offen sc1")
        srd(40,24,25,3584)
        e(f"buffer_load_dword v{GQ+3}, v15, s[40:43], 0 offen sc1")
        if p.pt>=2:
            e("s_cmp_ge_u32 s34, 16"); e("s_cselect_b32 s92, s22, s12"); e("s_cselect_b32 s93, s23, s13")
            e(f"s_mov_b32 s94, {4096*896:#x}"); e("s_mov_b32 s95, 0x20000")
            e("s_and_b32 s54, s34, 15"); e("s_lshl_b32 s54, s54, 5"); e("s_lshl_b32 s63, s31, 9"); e("s_add_u32 s63, s63, s54"); e("s_mul_i32 s63, s63, 896")
            e("v_and_b32 v9, 7, v0"); e("v_mul_u32_u24 v8, 4095, v9"); e("v_and_b32 v8, -4, v8")
            e(f"buffer_load_dword v{GQ+4}, v8, s[92:95], s63 offen")
        e("s_waitcnt vmcnt(0)")
    e("s_cmp_ge_u32 s2, 224"); e("s_cbranch_scc1 L_hend2")
    if p.cmap:
        e("s_and_b32 s35, s2, 7"); e("s_lshr_b32 s52, s2, 5"); e("s_lshl_b32 s52, s52, 3"); e("s_add_u32 s35, s35, s52"); e("s_lshl_b32 s35, s35, 2")
        e("s_bfe_u32 s52, s2, 0x20003"); e("s_add_u32 s35, s35, s52")
    else: e("s_mov_b32 s35, s2")
    if p.h2lay==0:
        e("v_lshlrev_b32 v4, 4, v0")
        e("s_lshl_b32 s51, s35, 12"); e(f"s_add_u32 s51, s51, {H2_OFF:#x}")
    else:
        e("v_lshrrev_b32 v4, 1, v0"); e(f"v_lshlrev_b32 v4, {9 if p.lmap else 7}, v4"); e("v_and_b32 v9, 1, v0"); e("v_lshl_add_u32 v4, v9, 4, v4")
        e("s_lshr_b32 s51, s35, 2"); e("s_lshl_b32 s51, s51, 14"); e("s_and_b32 s52, s35, 3"); e("s_lshl_b32 s52, s52, 5"); e("s_add_u32 s51, s51, s52"); e(f"s_add_u32 s51, s51, {H2_OFF:#x}")
        for i in range(1,4): e(f"s_add_u32 s{44+i}, s51, {i*(128 if p.lmap else 4096)}")
    e("s_mul_i32 s52, s35, 1171"); e("s_lshr_b32 s52, s52, 16")
    e("s_mul_i32 s53, s52, 56"); e("s_sub_u32 s53, s35, s53")
    e("s_lshl_b32 s53, s53, 4")
    e("s_and_b32 s54, s52, 1"); e("s_mul_i32 s54, s54, 1792"); e("s_add_u32 s53, s53, s54")
    e("s_lshr_b32 s54, s52, 1"); e("s_mul_i32 s54, s54, 896"); e("s_add_u32 s53, s53, s54")
    srd(40,24,25,3584)
    e(f"s_mov_b32 s62, {p.spin}")
    e("s_barrier")
    e("s_barrier")
    stamp(5)
    if p.d2: e(f"s_sleep {p.d2}")
    e("L_h2:")
    for i in range(4):
        if p.h2lay==0: e(f"buffer_load_dwordx4 v[{GQ+4*i}:{GQ+4*i+3}], v4, s[36:39], s51 offen offset:{i*1024} sc1")
        else: e(f"buffer_load_dwordx4 v[{GQ+4*i}:{GQ+4*i+3}], v4, s[36:39], s{51 if i==0 else 44+i} offen sc1")
    e("s_waitcnt vmcnt(0)")
    for k in range(4): tag_check(GQ+4*k,VTAG,BAD,T0,T1,k==0)
    e(f"v_cmp_ne_u32 vcc, 0, v{BAD}")
    poll_tail_masked("L_h2",p.bk2)
    stamp(6)
    for c in range(4):
        e(f"v_add_f32 v{GQ+c}, v{GQ+c}, v{GQ+4+c}"); e(f"v_add_f32 v{GQ+8+c}, v{GQ+8+c}, v{GQ+12+c}")
    for c in range(4): e(f"v_add_f32 v{GQ+c}, v{GQ+c}, v{GQ+8+c}")
    for rr in (2,4,8):
        if rr==2: nop(1)
        for c in range(4): e(f"v_add_f32_dpp v{GQ+c}, v{GQ+c}, v{GQ+c} row_ror:{rr} row_mask:0xf bank_mask:0xf")
    for sw in ("v_permlane16_swap_b32","v_permlane32_swap_b32"):
        for c in range(4): e(f"v_mov_b32 v{GQ+4+c}, v{GQ+c}")
        nop(1)
        for c in range(4): e(f"{sw} v{GQ+c}, v{GQ+4+c}")
        nop(1)
        for c in range(4): e(f"v_add_f32 v{GQ+c}, v{GQ+c}, v{GQ+4+c}")
    e(f"v_cvt_pk_bf16_f32 v{GQ}, v{GQ}, v{GQ+1}"); e(f"v_cvt_pk_bf16_f32 v{GQ+1}, v{GQ+2}, v{GQ+3}")
    e("s_mov_b64 exec, 3")
    e(f"buffer_store_dwordx2 v[{GQ}:{GQ+1}], v15, s[40:43], s53 offen")
    e("s_cmp_lg_u32 s2, 0"); e("s_cbranch_scc1 L_hend")
    e("s_mov_b64 exec, 1")
    e(f"buffer_store_dword v{VTAG}, v15, s[36:39], 0 offen sc1")
    e("L_hend:")
    if p.padto:
        e("L_pad:"); e("s_memrealtime s[84:85]"); e("s_waitcnt lgkmcnt(0)"); e("s_sub_u32 s84, s84, s86")
        e(f"s_cmp_lt_u32 s84, {p.padto}"); e("s_cbranch_scc1 L_pad")
    e("L_hend2:")
    stamp(7)
    write_stamps(8,8)
    e("L_end:")
    e("s_endpgm")
    body="\n".join("    "+x if not x.endswith(":") else x for x in L)
    txt = HDR + f"""; Generated by gen/gen.py (hand-designed schedule). One workgroup per CU: wave 0 = helper, waves 1-4 = streamers.
; @launch grid=(256,1,1) block=(320,1,1) lds={LDS_SIZE}
.amdgcn_target "amdgcn-amd-amdhsa--gfx950"
.text
.globl {NAME}
.p2align 8
.type {NAME},@function
{NAME}:
{body}
.section .rodata,"a"
.p2align 6
.amdhsa_kernel {NAME}
  .amdhsa_next_free_vgpr 256
  .amdhsa_next_free_sgpr 102
  .amdhsa_accum_offset 256
  .amdhsa_group_segment_fixed_size 0
  .amdhsa_kernarg_size 104
  .amdhsa_user_sgpr_count 2
  .amdhsa_user_sgpr_kernarg_segment_ptr 1
  .amdhsa_system_sgpr_workgroup_id_x 1
.end_amdhsa_kernel
"""
    return txt

if __name__=="__main__":
    p=P()
    out=sys.argv[1]
    for kv in sys.argv[2:]:
        k,v=kv.split("=")
        setattr(p,k, v if k in ("order","pol","polw") else int(v))
    open(out,"w").write(gen(p))
```

```python
import sys, math
NAME = "concat_heads__gqa_block_cached__sliding_block_cached__decode_kernel"
HDR = open("concat_heads__gqa_block_cached__sliding_block_cached__decode.s.ref").read().split("; Override launch")[0]

H0_OFF  = 0x1000
H1L_OFF = 0x60000
H1_OFF  = 0x80000
H2_OFF  = 0x200000
CNT_OFF = 0x300000
WS_SIZE = 0x400000
STAMP_OFF = 0x1000000
LDS_Q = 0; LDS_O = 2048; LDS_ST = 2048+16384; LDS_OX = LDS_ST+128; LDS_FL = LDS_OX+256; LDS_SIZE = LDS_FL+16
TAGC = 0x3B5D7F91
CEXP = math.log2(math.e)/16.0
def f2u(x):
    import struct; return struct.unpack("<I", struct.pack("<f", x))[0]

class P:
    R=39; T=7; order="AK,BK,AV,BV"; mp=0; stamps=0; spin=100000; T0=5; sleep0=1; sleep1=1; sleep2=1
    first_delay=30; fine=1; h2lay=1; TE=0; NE=0; d2=0; padto=0; bk1=2; bk2=2; kpat=1; bar0=1; TI=5; pol='nt'; polw='nt'; pt=0; ptd=0; cmap=1; lmap=1; dyn=0; NU=128; fake=0; wol=0; nowq=0; fd2=0; sat=0; sm=0; rot=0; nos=0; dw=4; tl=5; ept=0; prof=0; h0p='sc1'; ep2=0; pte=0; ptm=31; h2e=0; TH=0; cont=0; skew=0; cst=128

def POL(x): return '' if x=='none' else x.replace('+',' ')
def gen(p):
    L=[]; e=L.append
    def nop(n):
        if n>0: e(f"s_nop {n-1}")
    nst=[0]
    def stamp(i):
        if p.stamps: e(f"s_memrealtime s[{70+2*i}:{71+2*i}]")
    def srd(r, lo, hi, size):
        e(f"s_mov_b32 s{r}, s{lo}"); e(f"s_mov_b32 s{r+1}, s{hi}"); e(f"s_mov_b32 s{r+2}, {size:#x}"); e(f"s_mov_b32 s{r+3}, 0x20000")
    def write_stamps(n, slot0):
        if not p.stamps: return
        e("s_waitcnt lgkmcnt(0)")
        e(f"s_add_u32 s64, s28, {STAMP_OFF:#x}"); e("s_addc_u32 s65, s29, 0"); e("s_mov_b32 s66, 0x100000"); e("s_mov_b32 s67, 0x20000")
        e("s_lshl_b32 s68, s2, 7"); e(f"s_add_u32 s68, s68, {slot0*8}")
        e("s_mov_b64 exec, 1"); e("v_mov_b32 v1, 0")
        for i in range(n):
            e(f"v_mov_b32 v2, s{70+2*i}"); e(f"v_mov_b32 v3, s{71+2*i}")
            e(f"buffer_store_dwordx2 v[2:3], v1, s[64:67], s68 offen offset:{i*8}"); e("s_nop 1")
    stamp(0)
    if p.padto: e("s_memrealtime s[86:87]")
    e("s_cmp_ge_u32 s2, 256"); e("s_cbranch_scc1 L_end")
    e("s_load_dwordx16 s[4:19], s[0:1], 0")
    e("s_load_dwordx8 s[20:27], s[0:1], 64")
    e("s_load_dwordx2 s[28:29], s[0:1], 96")
    e("v_lshrrev_b32 v1, 6, v0")
    e("v_and_b32 v0, 63, v0")
    e("v_readfirstlane_b32 s3, v1")
    if p.mp==1:
        e("s_and_b32 s31, s2, 7"); e("s_bfe_u32 s32, s2, 0x10003"); e("s_lshr_b32 s33, s2, 4")
    elif p.mp==2:
        e("s_bfe_u32 s31, s2, 0x20001"); e("s_bfe_u32 s32, s2, 0x10006"); e("s_lshl_b32 s32, s32, 2"); e("s_or_b32 s31, s31, s32")
        e("s_bfe_u32 s33, s2, 0x30003"); e("s_lshl_b32 s33, s33, 1"); e("s_and_b32 s32, s2, 1"); e("s_or_b32 s33, s33, s32"); e("s_lshr_b32 s32, s2, 7")
    elif p.mp==3:
        e("s_bfe_u32 s31, s2, 0x10002"); e("s_bfe_u32 s32, s2, 0x20005"); e("s_lshl_b32 s32, s32, 1"); e("s_or_b32 s31, s31, s32")
        e("s_bfe_u32 s33, s2, 0x20003"); e("s_lshl_b32 s33, s33, 2"); e("s_and_b32 s32, s2, 3"); e("s_or_b32 s33, s33, s32"); e("s_lshr_b32 s32, s2, 7")
    else:
        e("s_bfe_u32 s31, s2, 0x30004"); e("s_lshr_b32 s32, s2, 7"); e("s_and_b32 s33, s2, 15")
    e("s_lshl_b32 s34, s32, 4"); e("s_add_u32 s34, s34, s33")
    e("v_and_b32 v2, 15, v0"); e("v_lshrrev_b32 v3, 4, v0")
    e("s_cmp_eq_u32 s3, 0"); e("s_cbranch_scc1 L_helper")

    def emit_masks(base):
        e("v_and_b32 v8, 1, v0"); e("v_lshlrev_b32 v8, 4, v8"); e("v_mov_b32 v9, 0xffff"); e("v_lshlrev_b32 v9, v8, v9")
        e("v_bfe_u32 v8, v0, 1, 2")
        for r in range(4):
            e(f"v_cmp_eq_u32 vcc, {r}, v8"); nop(2); e(f"v_cndmask_b32 v{base+r}, 0, v9, vcc")
    def emit_tagconsts():
        e(f"s_add_u32 s30, s30, {TAGC:#x}")
        for i in range(4): e(f"s_mov_b32 s{56+i}, {0x07060500+i:#x}")
        e("s_mov_b32 s60, 0x0c0c0400"); e("s_mov_b32 s61, 0x04000c0c")
    def tag_insert(r, vtag):
        for i in range(4): e(f"v_perm_b32 v{r+i}, v{r+i}, v{vtag}, s{56+i}")
    def tag_check(r, vtag, vbad, t0, t1, first):
        e(f"v_perm_b32 v{t0}, v{r+1}, v{r}, s60"); e(f"v_perm_b32 v{t1}, v{r+3}, v{r+2}, s61")
        if first: e(f"v_bitop3_b32 v{vbad}, v{t0}, v{t1}, v{vtag} bitop3:0x56")
        else:
            e(f"v_bitop3_b32 v{t0}, v{t0}, v{t1}, v{vtag} bitop3:0x56"); e(f"v_or_b32 v{vbad}, v{vbad}, v{t0}")
    def poll_tail(lbl, vbad, slp):
        e(f"v_cmp_ne_u32 vcc, 0, v{vbad}")
        e(f"s_cbranch_vccz {lbl}_done")
        e("s_sub_u32 s62, s62, 1"); e(f"s_cbranch_scc1 {lbl}_done")
        if slp: e(f"s_sleep {slp}")
        e(f"s_branch {lbl}")
        e(f"{lbl}_done:")
    def poll_tail_masked(lbl, bk):
        e("s_and_b64 exec, exec, vcc")
        e(f"s_cbranch_scc0 {lbl}_done")
        e("s_sub_u32 s62, s62, 1"); e(f"s_cbranch_scc1 {lbl}_done")
        e("s_bcnt1_i32_b64 s99, exec"); e(f"s_lshr_b32 s99, s99, {bk}")
        e(f"{lbl}_slp:")
        e("s_sub_u32 s99, s99, 1"); e(f"s_cbranch_scc1 {lbl}")
        e("s_sleep 1"); e(f"s_branch {lbl}_slp")
        e(f"{lbl}_done:")
        e("s_mov_b64 exec, -1")
    def allred_rows(op, x, t):
        e(f"v_mov_b32 v{t}, v{x}"); nop(2); e(f"v_permlane16_swap_b32 v{x}, v{t}"); nop(1); e(f"{op} v{x}, v{x}, v{t}")
        e(f"v_mov_b32 v{t}, v{x}"); nop(2); e(f"v_permlane32_swap_b32 v{x}, v{t}"); nop(1); e(f"{op} v{x}, v{x}, v{t}")

    VK,VV,VW=4,5,6; VTAG=7; MK=10
    Q=14
    Q=16
    S=32
    DT=52
    AO=68
    ACC=76
    MX=92
    LS=94
    TM=96
    RING=100
    R=p.R; assert RING+4*R<=256
    e("s_sub_u32 s3, s3, 1")
    e("v_lshrrev_b32 v8, 2, v2"); e(f"v_lshlrev_b32 v{VK}, 11, v8"); e(f"v_lshl_add_u32 v{VK}, v3, 6, v{VK}")
    e("v_and_b32 v8, 3, v0"); e(f"v_lshl_add_u32 v{VK}, v8, 4, v{VK}")
    e(f"v_lshlrev_b32 v{VV}, 11, v3"); e(f"v_lshl_add_u32 v{VV}, v2, 4, v{VV}")
    e("s_lshl_b32 s35, s32, 3"); e("s_add_u32 s35, s35, s31"); e("s_lshl_b32 s35, s35, 22")
    e("s_lshl_b32 s54, s3, 13"); e("s_add_u32 s35, s35, s54")
    e("s_lshl_b32 s52, s33, 18"); e("s_add_u32 s52, s52, s35")
    e("s_lshl_b32 s53, s33, 16"); e("s_add_u32 s53, s53, s35"); e(f"s_add_u32 s53, s53, {6144*512:#x}")
    e("s_waitcnt lgkmcnt(0)")
    SRD={"AK":40,"AV":44,"BK":48,"BV":36}
    SRD={"AK":40,"AV":44,"BK":48,"BV":88}
    order=("AK,AV" if p.dyn else p.order).split(",")
    ptr={"AK":6,"AV":8,"BK":16,"BV":18}
    srd(SRD[order[0]], ptr[order[0]], ptr[order[0]]+1, 0x4000000)
    loads=[]
    for ph in order:
        br=0 if ph[0]=="A" else 1
        nt=8 if br==0 else 2
        for t in range(nt):
            for r in range(4):
                for hf in range(2): loads.append((ph,br,t,r,hf))
    NKV=len(loads)
    if not(p.dyn and p.wol):
        for t in range(8): loads.append(("WO",0,t,0,0))
    VK2,VV2,TK=48,49,56
    if p.dyn:
        for un in range(2):
            for k in range(4): loads.append(("DU",1,un,k,0))
            if not p.sat: loads.append(("TK",1,un+2,0,0))
    N=len(loads)
    st={"issued":0,"cur":None}
    def slot(i): return RING+4*(i%R)
    def ubuf(j): return slot(NKV+8+4*(j%3))
    if p.dyn: assert (NKV+8)%R+12<=R
    def unit_load(j,k,so):
        d=ubuf(j)+4*k; ph="BK" if k<2 else "BV"
        e(f"buffer_load_dwordx4 v[{d}:{d+3}], v{VK2 if k<2 else VV2}, s[{SRD[ph]}:{SRD[ph]+3}], s{so} offen offset:{(k&1)*256} {POL(p.pol)}")
    def unit_addr(src):
        sh=11 if p.cont else 13
        if p.rot==0: e(f"s_lshl_b32 s54, s{src}, {sh}")
        else:
            if p.rot==1: e(f"s_add_u32 s54, s{src}, s35")
            elif p.rot==2: e(f"s_mul_i32 s54, s{src}, 37")
            else: e(f"s_mul_i32 s54, s{src}, 37"); e("s_add_u32 s54, s54, s35")
            e("s_and_b32 s54, s54, 127"); e(f"s_lshl_b32 s54, s54, {sh}")
        e("s_add_u32 s55, s54, s53")
    def ticket(j):
        e("s_mov_b64 exec, 1"); e(f"v_mov_b32 v{TK+j%3}, 1")
        if p.fake==1: e(f"buffer_load_dword v{TK+j%3}, off, s[36:39], s69 sc1")
        elif p.fake==2: e(f"buffer_load_dword v{TK+j%3}, off, s[36:39], s69")
        else: e(f"buffer_atomic_add v{TK+j%3}, off, s[36:39], s69 sc0 sc1")
        e("s_mov_b64 exec, -1")
    def issue(throttle=None):
        i=st["issued"]
        if i>=N: return
        ph,br,t,r,hf=loads[i]
        if throttle is not None and i>=throttle: e(f"s_waitcnt vmcnt({throttle-1})")
        if p.prof==2 and i%4==0 and i<=NKV:
            if i==0: e("v_mov_b32 v1, 0")
            else: e("s_waitcnt lgkmcnt(0)"); e(f"v_writelane_b32 v1, s84, {i//4-1}")
            e("s_memrealtime s[84:85]")
        if p.dyn and p.nos and i==N-8-p.tl:
            e("s_add_u32 s64, s28, s69"); e("s_addc_u32 s65, s29, 0"); e("s_mov_b32 s66, 1"); e("s_atomic_add s66, s[64:65], 0 glc")
        d=slot(i)
        if ph=="WO":
            key=("WO",t//4)
            if st["cur"]!=key:
                e(f"s_add_u32 s55, s63, {(t//4)*4*896}"); st["cur"]=key
            e(f"buffer_load_dwordx4 v[{d}:{d+3}], v{VW}, s[92:95], s55 offen offset:{(t%4)*896} {POL(p.polw)}")
        elif ph=="DU":
            key=("DU",t)
            if st["cur"]!=key:
                if p.nos:
                    e("s_waitcnt lgkmcnt(0)")
                    e(f"s_cmp_ge_u32 s66, {p.NU}"); e(f"s_cselect_b32 s{67+t}, 1, 0")
                    e(f"s_cselect_b32 s{SRD['BK']+2}, 0, 0x4000000"); e(f"s_cselect_b32 s{SRD['BV']+2}, 0, 0x4000000")
                    e("s_cselect_b32 s55, 0, s66"); e(f"s_cbranch_scc1 L_nodraw{t}")
                    e("s_mov_b32 s66, 1"); e("s_atomic_add s66, s[64:65], 0 glc")
                    e(f"L_nodraw{t}:")
                    unit_addr(55)
                else:
                    e(f"s_add_u32 s55, s33, {16*t}"); unit_addr(55)
                st["cur"]=key
            if p.skew:
                if r==2 and t==0: e(f"s_mov_b32 s{SRD['BV']+2}, 0")
                unit_load(t,r,55 if (r<2 or t==0) else 87)
                if r==3:
                    e("s_mov_b32 s87, s55")
                    if t==0: e(f"s_mov_b32 s{SRD['BV']+2}, 0x4000000")
            else: unit_load(t,r,55)
        elif ph=="TK":
            ticket(t)
        else:
            key=(br,t)
            if st["cur"]!=key:
                e(f"s_add_u32 s55, s{52+br}, {t*32768}"); st["cur"]=key
            vo=VK if (ph[1]=="K" and p.kpat) else VV
            e(f"buffer_load_dwordx4 v[{d}:{d+3}], v{vo}, s[{SRD[ph]}:{SRD[ph]+3}], s55 offen offset:{r*512+hf*256} {POL(p.pol)}")
        st["issued"]+=1
    if p.bar0: e("s_barrier")
    for i in range(p.T0): issue()
    e("s_load_dword s30, s[28:29], 0")
    for ph in ("AK","AV","BK","BV"):
        if ph!=order[0]: srd(SRD[ph], ptr[ph], ptr[ph]+1, 0x4000000)
    srd(36,28,29,WS_SIZE)
    if p.dyn:
        e("s_lshl_b32 s54, s32, 3"); e("s_add_u32 s54, s54, s31"); e("s_lshl_b32 s53, s54, 22"); e("s_lshl_b32 s35, s54, 3")
        e(f"s_lshl_b32 s69, s3, {18 if p.cont else 11}"); e("s_add_u32 s53, s53, s69"); e(f"s_add_u32 s53, s53, {6144*512:#x}")
        e("s_lshl_b32 s54, s54, 2"); e("s_add_u32 s54, s54, s3"); e(f"s_mul_i32 s69, s54, {p.cst}"); e(f"s_add_u32 s69, s69, {CNT_OFF:#x}")
        e("v_lshrrev_b32 v8, 2, v2"); e(f"v_lshlrev_b32 v{VK2}, 9, v8"); e(f"v_lshl_add_u32 v{VK2}, v3, 6, v{VK2}")
        e("v_and_b32 v8, 3, v0"); e(f"v_lshl_add_u32 v{VK2}, v8, 4, v{VK2}")
        e(f"v_lshlrev_b32 v{VV2}, 9, v3"); e(f"v_lshl_add_u32 v{VV2}, v2, 4, v{VV2}")
        for c in range(8): e(f"v_mov_b32 v{ACC+8+c}, 0")
        e("s_mov_b32 s100, 0xff00ff00"); e("s_mov_b32 s101, 0x00ff00ff")
    e("s_cmp_ge_u32 s34, 16"); e("s_cselect_b32 s92, s22, s12"); e("s_cselect_b32 s93, s23, s13")
    e(f"s_mov_b32 s94, {4096*896:#x}"); e("s_mov_b32 s95, 0x20000")
    e("s_and_b32 s54, s34, 15"); e("s_lshl_b32 s54, s54, 5"); e("s_lshl_b32 s63, s31, 9"); e("s_add_u32 s63, s63, s54"); e("s_mul_i32 s63, s63, 896")
    e(f"v_mul_u32_u24 v{VW}, {8*896}, v3"); e(f"v_lshl_add_u32 v{VW}, v2, 4, v{VW}")
    e("s_lshl_b32 s54, s3, 8"); e(f"v_add_u32 v{VW}, s54, v{VW}")
    e("s_lshl_b32 s54, s3, 4"); e("v_add_u32 v8, s54, v2")
    e("v_mov_b32 v14, v8")
    e("v_cmp_gt_u32 vcc, 56, v8"); e("v_mov_b32 v9, 0x40000000"); nop(1); e(f"v_cndmask_b32 v{VW}, v9, v{VW}, vcc")
    emit_masks(MK)
    e("v_bfe_u32 v8, v0, 3, 1"); e("v_lshlrev_b32 v15, 9, v8"); e("v_lshl_add_u32 v15, v3, 6, v15")
    e("v_and_b32 v8, 3, v0"); e("v_lshl_add_u32 v15, v8, 4, v15")
    for br in range(2):
        e(f"v_mov_b32 v{MX+br}, {0xf149f2ca if (br==1 and p.dyn) else 0xff800000:#x}"); e(f"v_mov_b32 v{LS+br}, 0")
    e(f"s_mov_b32 s96, {f2u(CEXP):#x}"); e("s_mov_b32 s97, 0xffff0000")
    while st["issued"]<R: issue(p.TI)
    e("s_waitcnt lgkmcnt(0)")
    emit_tagconsts()
    e(f"v_mov_b32 v{VTAG}, s30")
    if not p.dyn: stamp(1)
    e("v_mov_b32 v8, 0"); e(f"s_mov_b32 s62, {p.spin*16}")
    e("L_qw:")
    e(f"ds_read_b32 v9, v8 offset:{LDS_FL}"); e("s_waitcnt lgkmcnt(0)")
    e("v_cmp_ne_u32 vcc, 0, v9"); e("s_cbranch_vccnz L_qw_done")
    e("s_sub_u32 s62, s62, 1"); e("s_cbranch_scc1 L_qw_done")
    e("s_sleep 1"); e("s_branch L_qw")
    e("L_qw_done:")
    if not p.dyn: stamp(2)
    for br in range(2):
        for hf in range(2):
            q=Q+br*8+hf*4
            e(f"ds_read_b128 v[{q}:{q+3}], v15 offset:{LDS_Q+br*1024+hf*256}")
    e("s_waitcnt lgkmcnt(0)")
    if p.prof==1: e("v_mov_b32 v1, 0"); e("s_memrealtime s[84:85]")
    groups=[loads[i] for i in range(0,NKV,2)]
    NG=len(groups)
    def sreg(br,t,r): return S+(0 if br==0 else 16)+t*2+(r>>1)
    lastm={}
    def need(dist, idx):
        n=dist-(len(L)-idx-1)
        if n>0: nop(n)
    def k_post(gi):
        ph,br,t,r,_=groups[gi]; d0=DT+4*((gi-1)%4); d1=DT+4*(gi%4)
        def qp(c): return f"quad_perm:[{c},{c},{c},{c}] row_mask:0xf bank_mask:0xf"
        need(8,lastm[gi-1])
        e(f"v_mov_b32_dpp v{TM}, v{d0} {qp(0)}"); e(f"v_mov_b32_dpp v{TM+1}, v{d0+2} {qp(2)}")
        need(8,lastm[gi])
        e(f"v_mov_b32_dpp v{TM+2}, v{d1} {qp(0)}"); e(f"v_mov_b32_dpp v{TM+3}, v{d1+2} {qp(2)}")
        e(f"v_add_f32_dpp v{TM}, v{d0+1}, v{TM} {qp(1)}"); e(f"v_add_f32_dpp v{TM+1}, v{d0+3}, v{TM+1} {qp(3)}")
        e(f"v_add_f32_dpp v{TM+2}, v{d1+1}, v{TM+2} {qp(1)}"); e(f"v_add_f32_dpp v{TM+3}, v{d1+3}, v{TM+3} {qp(3)}")
        e(f"v_add_f32 v{TM}, v{TM}, v{TM+1}"); e(f"v_add_f32 v{TM+2}, v{TM+2}, v{TM+3}")
        s=sreg(br,t,r)
        e(f"v_cvt_pk_bf16_f32 v{s}, v{TM}, v{TM+2}")
        e(f"v_lshlrev_b32 v{TM}, 16, v{s}"); e(f"v_and_b32 v{TM+1}, s97, v{s}")
        e(f"v_max3_f32 v{MX+br}, v{TM}, v{TM+1}, v{MX+br}")
    def v_pre(gi):
        ph,br,t,r,_=groups[gi]; s=sreg(br,t,r); a=AO+4*(gi%2)
        if r&1: e(f"v_and_b32 v{TM}, s97, v{s}")
        else: e(f"v_lshlrev_b32 v{TM}, 16, v{s}")
        e(f"v_fma_f32 v{TM}, v{TM}, s96, -v{MX+br}")
        e(f"v_exp_f32 v{TM}, v{TM}"); nop(1)
        e(f"v_cvt_pk_bf16_f32 v{TM+1}, v{TM}, v{TM}")
        for c in range(4): e(f"v_and_b32 v{a+c}, v{MK+c}, v{TM+1}")
        e(f"v_add_f32 v{LS+br}, v{LS+br}, v{TM}")
    def fin_max(br):
        allred_rows("v_max_f32", MX+br, TM)
        e(f"v_mul_f32 v{MX+br}, s96, v{MX+br}")
    def fin_branch(br):
        allred_rows("v_add_f32", LS+br, TM)
        e(f"v_lshrrev_b32 v{TM}, 5, v0"); e(f"v_lshlrev_b32 v{TM}, 10, v{TM}"); e(f"v_lshl_add_u32 v{TM}, v2, 5, v{TM}")
        e(f"v_and_b32 v{TM+1}, 1, v3"); e(f"v_lshl_add_u32 v{TM}, v{TM+1}, 4, v{TM}")
        e("s_lshl_b32 s54, s3, 12"); e(f"v_add_u32 v{TM}, s54, v{TM}")
        for hf in range(2):
            a=ACC+br*8+hf*4
            e(f"ds_write_b128 v{TM}, v[{a}:{a+3}] offset:{LDS_O+br*2048+hf*512}")
        e(f"v_bfe_u32 v{TM}, v0, 3, 1"); e(f"v_lshlrev_b32 v{TM}, 5, v{TM}"); e("s_lshl_b32 s54, s3, 3"); e(f"v_add_u32 v{TM}, s54, v{TM}")
        e(f"v_mov_b32 v{TM+2}, v{MX+br}"); e(f"v_mov_b32 v{TM+3}, v{LS+br}")
        e(f"ds_write_b64 v{TM}, v[{TM+2}:{TM+3}] offset:{LDS_ST+br*64}")
    pend_k=[]
    maxdone=set(); predone=set(); pend_fin=[]
    def flush_k(keep):
        while len(pend_k)>keep: k_post(pend_k.pop(0))
    for gi in range(NG):
        ph,br,t,r,_=groups[gi]
        i0=2*gi
        if ph[1]=="V" and gi not in predone:
            if br not in maxdone:
                if any(groups[x][1]==br for x in pend_k):
                    flush_k(0)
                fin_max(br); maxdone.add(br)
            v_pre(gi); predone.add(gi); nop(2)
        for hf in range(2):
            i=i0+hf
            e(f"s_waitcnt vmcnt({st['issued']-i-1})")
            d=slot(i)
            if ph[1]=="K":
                D=DT+4*(gi%4); q=Q+br*8+hf*4
                c="0" if hf==0 else f"v[{D}:{D+3}]"
                e(f"v_mfma_f32_16x16x32_bf16 v[{D}:{D+3}], v[{d}:{d+3}], v[{q}:{q+3}], {c}")
            else:
                a=AO+4*(gi%2); D=ACC+br*8+hf*4
                c="0" if (t==0 and r==0) else f"v[{D}:{D+3}]"
                e(f"v_mfma_f32_16x16x32_bf16 v[{D}:{D+3}], v[{a}:{a+3}], v[{d}:{d+3}], {c}")
            lastm[gi]=len(L)-1
            Tc = p.TE if (p.TE and i>=NKV-p.NE) else p.T
            if p.fine and hf==0:
                while st["issued"]-(i+1)<Tc and st["issued"]<N: issue()
        consumed=i0+2
        if p.prof==1 and (gi+1)%2==0:
            k=(gi+1)//2
            e("s_waitcnt lgkmcnt(0)"); e(f"v_writelane_b32 v1, s84, {k-1}"); e("s_memrealtime s[84:85]")
        lag=st["issued"]-consumed
        if lag>=Tc: issue(Tc)
        else:
            while st["issued"]-consumed<Tc and st["issued"]<N: issue()
        flush_k(0)
        if ph[1]=="K" and (r&1): pend_k.append(gi)
        if pend_fin and pend_fin[0][1]<gi:
            fin_branch(pend_fin.pop(0)[0])
        if ph[1]=="V" and (gi+1==NG or groups[gi+1][0]!=ph): pend_fin.append((br,gi))
        if gi+1<NG:
            nph,nbr,_,_,_=groups[gi+1]
            if nph[1]=="V" and (nbr in maxdone or not any(groups[x][1]==nbr for x in pend_k)):
                if nbr not in maxdone: fin_max(nbr); maxdone.add(nbr)
                v_pre(gi+1); predone.add(gi+1)
    while st["issued"]<N: issue()
    if p.dyn:
        stamp(1)
        if p.sat and not p.nos:
            e("s_add_u32 s64, s28, s69"); e("s_addc_u32 s65, s29, 0"); e("s_mov_b32 s66, 1"); e("s_atomic_add s66, s[64:65], 0 glc")
        nop(4)
        while pend_fin: fin_branch(pend_fin.pop(0)[0])
        def process(j,lbl):
            b0=ubuf(j); D=DT; q=Q+8; a=AO
            def qp(c): return f"quad_perm:[{c},{c},{c},{c}] row_mask:0xf bank_mask:0xf"
            def pv():
                for hf in range(2):
                    A=ACC+8+4*hf
                    e(f"v_mfma_f32_16x16x32_bf16 v[{A}:{A+3}], v[{a}:{a+3}], v[{b0+8+4*hf}:{b0+11+4*hf}], v[{A}:{A+3}]")
            if p.skew:
                pv(); e("s_cmp_eq_u32 s68, 3"); e("s_cbranch_scc1 L_dyn_done")
            e(f"v_mfma_f32_16x16x32_bf16 v[{D}:{D+3}], v[{b0}:{b0+3}], v[{q}:{q+3}], 0")
            e(f"v_mfma_f32_16x16x32_bf16 v[{D}:{D+3}], v[{b0+4}:{b0+7}], v[{q+4}:{q+7}], v[{D}:{D+3}]")
            nop(8)
            e(f"v_mov_b32_dpp v{TM}, v{D} {qp(0)}"); e(f"v_mov_b32_dpp v{TM+1}, v{D+2} {qp(2)}")
            e(f"v_add_f32_dpp v{TM}, v{D+1}, v{TM} {qp(1)}"); e(f"v_add_f32_dpp v{TM+1}, v{D+3}, v{TM+1} {qp(3)}")
            e(f"v_add_f32 v{TM}, v{TM}, v{TM+1}")
            e(f"v_cvt_pk_bf16_f32 v{TM}, v{TM}, v{TM}"); e(f"v_and_b32 v{TM}, s97, v{TM}")
            e(f"v_mul_f32 v{TM+1}, s96, v{TM}")
            allred_rows("v_max_f32", TM+1, TM+2)
            e(f"v_cmp_gt_f32 vcc, v{TM+1}, v{MX+1}"); e(f"s_cbranch_vccz {lbl}_keep")
            e(f"v_max_f32 v{TM+1}, v{TM+1}, v{MX+1}"); e(f"v_sub_f32 v{TM+2}, v{MX+1}, v{TM+1}"); e(f"v_exp_f32 v{TM+2}, v{TM+2}")
            e(f"v_mov_b32 v{MX+1}, v{TM+1}"); nop(1)
            e(f"v_mul_f32 v{LS+1}, v{LS+1}, v{TM+2}")
            e(f"v_mov_b32_dpp v{TM+3}, v{TM+2} row_ror:8 row_mask:0xf bank_mask:0xf")
            e(f"v_cndmask_b32 v{TM+2}, v{TM+2}, v{TM+3}, s[100:101]")
            for c in range(8): e(f"v_mul_f32 v{ACC+8+c}, v{ACC+8+c}, v{TM+2}")
            e(f"{lbl}_keep:")
            e(f"v_fma_f32 v{TM}, v{TM}, s96, -v{MX+1}")
            e(f"v_exp_f32 v{TM}, v{TM}"); nop(1)
            e(f"v_cvt_pk_bf16_f32 v{TM+1}, v{TM}, v{TM}")
            for c in range(4): e(f"v_and_b32 v{a+c}, v{MK+c}, v{TM+1}")
            e(f"v_add_f32 v{LS+1}, v{LS+1}, v{TM}"); nop(1)
            if not p.skew: pv()
        if p.nos: e("s_cmp_lg_u32 s67, 0"); e("s_cbranch_scc1 L_dyn_done")
        else: e("s_mov_b32 s68, 0")
        if p.fake: e("s_add_u32 s67, s33, 16")
        if p.TH: e("s_mov_b32 s67, 0"); e("s_mov_b32 s98, 1")
        if p.prof==1: e(f"s_mov_b32 s86, {NG//2}"); e("s_waitcnt lgkmcnt(0)")
        e("L_dyn:")
        for i in ((1,2,3) if not p.sat else ()):
            e("s_cmp_eq_u32 s68, 0"); e(f"s_cbranch_scc1 L_dy{i}_draw")
            stamp(2)
            e("s_mov_b32 s68, 2"); e(f"s_waitcnt vmcnt({9 if p.wol==1 else 1})"); e(f"s_branch L_dy{i}_proc")
            if p.wol==1:
                e(f"L_dy{i}_empty:")
                for t in range(8):
                    if t%4==0: e(f"s_add_u32 s55, s63, {(t//4)*4*896}")
                    d=slot(NKV+t)
                    e(f"buffer_load_dwordx4 v[{d}:{d+3}], v{VW}, s[92:95], s55 offen offset:{(t%4)*896} {POL(p.polw)}")
                e(f"s_branch L_dy{i}_proc")
            e(f"L_dy{i}_draw:")
            e("s_waitcnt vmcnt(5)")
            e(f"v_readfirstlane_b32 s54, v{TK+(i+1)%3}")
            if p.fake: e("s_add_u32 s67, s67, 16"); e("s_mov_b32 s54, s67")
            e(f"s_cmp_ge_u32 s54, {p.NU}"); e("s_cselect_b32 s68, 1, 0"); e(f"s_cbranch_scc1 L_dy{i}_{'empty' if p.wol==1 else 'proc'}")
            unit_addr(54)
            for k in range(4): unit_load(i+1,k,55)
            ticket(i+3)
            e(f"L_dy{i}_proc:")
            process(i-1,f"L_dy{i}")
            e("s_cmp_eq_u32 s68, 2")
            e("s_cbranch_scc1 L_dyn_done" if i<3 else "s_cbranch_scc0 L_dyn")
        if p.sat:
            for i in (1,2,3):
                e("s_cmp_eq_u32 s68, 0"); e(f"s_cbranch_scc1 L_dy{i}_draw")
                if p.skew:
                    e("s_add_u32 s68, s68, 1"); e("s_waitcnt vmcnt(2) lgkmcnt(0)")
                    e("s_cmp_eq_u32 s68, 2"); e(f"s_cbranch_scc1 L_dy{i}_proc")
                    e("s_waitcnt vmcnt(0)"); e(f"s_branch L_dy{i}_proc")
                    e(f"L_dy{i}_empty:")
                    stamp(2)
                    for k in (2,3): unit_load(i+1,k,87)
                    e("s_waitcnt vmcnt(6)"); e(f"s_branch L_dy{i}_proc")
                else:
                    stamp(2)
                    e("s_mov_b32 s68, 2"); e("s_waitcnt vmcnt(0) lgkmcnt(0)"); e(f"s_branch L_dy{i}_proc")
                    e(f"L_dy{i}_empty:"); e("s_waitcnt vmcnt(4)"); e(f"s_branch L_dy{i}_proc")
                e(f"L_dy{i}_draw:")
                if not p.TH:
                    e(f"s_waitcnt vmcnt({p.dw+2 if p.sm else p.dw}) lgkmcnt(0)")
                    e(f"s_cmp_ge_u32 s66, {p.NU}"); e("s_cselect_b32 s68, 1, 0"); e(f"s_cbranch_scc1 L_dy{i}_empty")
                    unit_addr(66)
                    e("s_mov_b32 s66, 1"); e("s_atomic_add s66, s[64:65], 0 glc")
                else:
                    e(f"s_waitcnt vmcnt({p.dw+2 if p.sm else p.dw})")
                    e("s_add_u32 s99, s99, 1")
                    e("s_sub_u32 s67, s67, 1"); e(f"s_cbranch_scc0 L_dy{i}_have")
                    e("s_waitcnt lgkmcnt(0)")
                    e("s_mov_b32 s99, s66"); e("s_sub_u32 s67, s98, 1")
                    e(f"s_cmp_ge_u32 s99, {p.NU}"); e(f"s_cbranch_scc1 L_dy{i}_have")
                    e(f"s_cmp_lt_u32 s99, {p.TH}"); e("s_cselect_b32 s98, 2, 1")
                    e("s_mov_b32 s66, s98"); e("s_atomic_add s66, s[64:65], 0 glc")
                    e(f"L_dy{i}_have:")
                    e(f"s_cmp_ge_u32 s99, {p.NU}"); e("s_cselect_b32 s68, 1, 0"); e(f"s_cbranch_scc1 L_dy{i}_empty")
                    unit_addr(99)
                for k in range(4):
                    if p.sm and k==2: e(f"s_waitcnt vmcnt({p.dw+2})")
                    unit_load(i+1,k,87 if (p.skew and k>=2) else 55)
                if p.skew: e("s_mov_b32 s87, s55")
                if p.dw>4: e("s_waitcnt vmcnt(8)")
                e(f"L_dy{i}_proc:")
                process(i-1,f"L_dy{i}")
                if p.prof==1: e("s_mov_b32 m0, s86"); e("v_writelane_b32 v1, s84, m0"); e("s_add_u32 s86, s86, 1"); e("s_memrealtime s[84:85]")
                if p.skew:
                    if i==3: e("s_branch L_dyn")
                else:
                    e("s_cmp_eq_u32 s68, 2")
                    e("s_cbranch_scc1 L_dyn_done" if i<3 else "s_cbranch_scc0 L_dyn")
        e("L_dyn_done:")
        stamp(3)
        def wo_loads():
            for t in range(8):
                if t%4==0: e(f"s_add_u32 s55, s63, {(t//4)*4*896}")
                d=slot(NKV+t)
                e(f"buffer_load_dwordx4 v[{d}:{d+3}], v{VW}, s[92:95], s55 offen offset:{(t%4)*896} {POL(p.polw)}")
        if p.wol==2: wo_loads()
        fin_branch(1)
    else:
        stamp(3)
        while pend_fin: fin_branch(pend_fin.pop(0)[0])
    e("s_waitcnt lgkmcnt(0)")
    e("s_barrier")
    stamp(4)
    if p.dyn and p.wol==3: wo_loads()
    G=16
    e(f"v_lshlrev_b32 v8, 4, v0"); e("s_lshl_b32 s54, s3, 10"); e("v_add_u32 v8, s54, v8")
    e("s_lshl_b32 s54, s3, 5"); e("v_mov_b32 v9, s54")
    e(f"ds_read_b128 v[{G}:{G+3}], v9 offset:{LDS_ST}"); e(f"ds_read_b128 v[{G+4}:{G+7}], v9 offset:{LDS_ST+16}")
    for w in range(4): e(f"ds_read_b128 v[{G+8+4*w}:{G+11+4*w}], v8 offset:{LDS_O+w*4096}")
    e("v_lshrrev_b32 v8, 3, v0"); e("v_lshlrev_b32 v8, 12, v8"); e("v_and_b32 v9, 7, v0"); e("v_lshl_add_u32 v8, v9, 4, v8")
    e("s_lshl_b32 s54, s31, 2"); e("s_add_u32 s54, s54, s3")
    e("s_lshl_b32 s55, s54, 15"); e("s_lshl_b32 s98, s34, 7"); e("s_add_u32 s55, s55, s98"); e(f"s_add_u32 s55, s55, {H1_OFF:#x}")
    e("s_waitcnt lgkmcnt(0)" if p.stamps else "s_waitcnt lgkmcnt(4)")
    M=G+24
    e(f"v_max3_f32 v{M}, v{G}, v{G+2}, v{G+4}"); e(f"v_max_f32 v{M}, v{M}, v{G+6}")
    for w in range(4): e(f"v_sub_f32 v{G+2*w}, v{G+2*w}, v{M}")
    for w in range(4): e(f"v_exp_f32 v{G+2*w}, v{G+2*w}")
    nop(1)
    e(f"v_mul_f32 v{M+1}, v{G}, v{G+1}")
    for w in range(1,4): e(f"v_fmac_f32 v{M+1}, v{G+2*w}, v{G+2*w+1}")
    if p.dyn: e(f"v_max_f32 v{M+1}, 0x0da24260, v{M+1}")
    e(f"v_rcp_f32 v{M+2}, v{M+1}"); e(f"v_log_f32 v{M+3}, v{M+1}"); nop(1)
    for w in range(4): e(f"v_mul_f32 v{G+2*w}, v{G+2*w}, v{M+2}")
    PB=M+4
    e(f"v_add_f32 v{PB+2}, v{M}, v{M+3}"); e(f"v_mov_b32 v{PB+3}, v{VTAG}")
    e("s_waitcnt lgkmcnt(0)")
    O=M+8
    for c in range(4): e(f"v_mul_f32 v{O+c}, v{G}, v{G+8+c}")
    for w in range(1,4):
        for c in range(4): e(f"v_fmac_f32 v{O+c}, v{G+2*w}, v{G+8+4*w+c}")
    e(f"v_cvt_pk_bf16_f32 v{PB}, v{O}, v{O+1}"); e(f"v_cvt_pk_bf16_f32 v{PB+1}, v{O+2}, v{O+3}")
    e(f"buffer_store_dwordx4 v[{PB}:{PB+3}], v8, s[36:39], s55 offen sc1")
    stamp(5)
    e("v_lshrrev_b32 v9, 1, v0"); e("v_lshlrev_b32 v8, 7, v9"); e("v_and_b32 v9, 1, v0"); e("v_lshl_add_u32 v8, v9, 4, v8")
    e("s_lshl_b32 s55, s31, 5"); e("s_add_u32 s55, s55, s34"); e("s_lshl_b32 s55, s55, 12"); e(f"s_add_u32 s55, s55, {H1_OFF:#x}")
    e("s_lshl_b32 s98, s3, 5"); e("s_add_u32 s55, s55, s98")
    e("v_lshrrev_b32 v20, 5, v0"); e("v_lshlrev_b32 v20, 7, v20"); e("v_lshl_add_u32 v20, v9, 4, v20"); e("v_add_u32 v20, s98, v20")
    e("v_bfe_u32 v21, v0, 3, 1"); e("v_lshlrev_b32 v21, 7, v21"); e("v_lshl_add_u32 v21, v3, 5, v21")
    e(f"s_mov_b32 s62, {p.spin}")
    GA=16
    e("L_h1:")
    e(f"buffer_load_dwordx4 v[{GA}:{GA+3}], v8, s[36:39], s55 offen sc1")
    e("s_waitcnt vmcnt(0)")
    e(f"v_cmp_ne_u32 vcc, v{GA+3}, v{VTAG}")
    poll_tail_masked("L_h1",p.bk1)
    stamp(6)
    def ror(op,x,n): return f"{op}_dpp v{x}, v{x}, v{x} row_ror:{n} row_mask:0xf bank_mask:0xf"
    MXX=22; A0=24; W=28; TT=32
    e(f"v_mov_b32 v{MXX}, v{GA+2}")
    e(f"v_lshlrev_b32 v{A0}, 16, v{GA}"); e(f"v_and_b32 v{A0+1}, s97, v{GA}")
    e(ror("v_max_f32",MXX,2))
    e(f"v_lshlrev_b32 v{A0+2}, 16, v{GA+1}"); e(f"v_and_b32 v{A0+3}, s97, v{GA+1}")
    e(ror("v_max_f32",MXX,4)); nop(2)
    e(ror("v_max_f32",MXX,8))
    e(f"v_mov_b32 v{TT}, v{MXX}"); nop(2); e(f"v_permlane16_swap_b32 v{MXX}, v{TT}"); nop(1); e(f"v_max_f32 v{MXX}, v{MXX}, v{TT}")
    e(f"v_sub_f32 v{W}, v{GA+2}, v{MXX}"); e(f"v_exp_f32 v{W}, v{W}"); nop(1)
    for c in range(4): e(f"v_mul_f32 v{A0+c}, v{W}, v{A0+c}")
    regs=[W]+[A0+c for c in range(4)]
    for n in (2,4,8):
        for x in regs: e(ror("v_add_f32",x,n))
    for i,x in enumerate(regs): e(f"v_mov_b32 v{TT+i}, v{x}")
    for i,x in enumerate(regs): e(f"v_permlane16_swap_b32 v{x}, v{TT+i}")
    for i,x in enumerate(regs): e(f"v_add_f32 v{x}, v{x}, v{TT+i}")
    e(f"v_rcp_f32 v{W}, v{W}"); nop(1)
    for c in range(4): e(f"v_mul_f32 v{A0+c}, v{W}, v{A0+c}")
    for c in range(4): e(f"v_cvt_pk_bf16_f32 v{A0+c}, v{A0+c}, v{A0+c}")
    e("s_mov_b32 exec_lo, 3"); e("s_mov_b32 exec_hi, 3")
    e(f"ds_write_b128 v20, v[{A0}:{A0+3}] offset:{LDS_OX}")
    e("s_mov_b64 exec, -1")
    e("s_waitcnt lgkmcnt(0)")
    e("s_barrier")
    A0=24
    e(f"ds_read_b128 v[{A0}:{A0+3}], v21 offset:{LDS_OX}"); e(f"ds_read_b128 v[{A0+4}:{A0+7}], v21 offset:{LDS_OX+16}")
    e("s_waitcnt lgkmcnt(0)")
    DO=44
    AB=48
    for t in range(8):
        for c in range(4): e(f"v_and_b32 v{AB+4*t+c}, v{MK+c}, v{A0+t}")
    if p.h2lay==0:
        e("v_lshrrev_b32 v8, 5, v0"); e("v_mul_u32_u24 v8, 56, v8"); e("v_add_u32 v8, v8, v14"); e("v_lshlrev_b32 v8, 12, v8")
    else:
        e("v_lshrrev_b32 v8, 5, v0"); e("v_mul_u32_u24 v8, 14, v8"); e("v_lshrrev_b32 v9, 2, v14"); e("v_add_u32 v8, v8, v9"); e("v_lshlrev_b32 v8, 14, v8")
        e("v_and_b32 v9, 3, v14"); e("v_lshl_add_u32 v8, v9, 5, v8")
    for t in range(8):
        d=slot(NKV+t); c="0" if t==0 else f"v[{DO}:{DO+3}]"
        e(f"v_mfma_f32_16x16x32_bf16 v[{DO}:{DO+3}], v[{AB+4*t}:{AB+4*t+3}], v[{d}:{d+3}], {c}")
    e("v_and_b32 v9, 1, v3"); e("v_lshl_add_u32 v8, v9, 4, v8")
    e("v_cmp_gt_u32 vcc, 56, v14"); e("v_mov_b32 v9, 0x40000000")
    e("s_lshr_b32 s54, s34, 4"); e(f"s_mul_i32 s54, s54, {112*4096}"); e("v_cndmask_b32 v8, v9, v8, vcc")
    e("s_and_b32 s55, s34, 15"); e("s_lshl_b32 s98, s31, 4"); e("s_add_u32 s55, s55, s98"); e(f"s_lshl_b32 s55, s55, {5 if p.h2lay==0 else 7}")
    e("s_add_u32 s54, s54, s55"); e(f"s_add_u32 s54, s54, {H2_OFF:#x}")
    nop(2)
    tag_insert(DO,VTAG)
    e(f"buffer_store_dwordx4 v[{DO}:{DO+3}], v8, s[36:39], s54 offen sc1")
    if not p.prof: stamp(7)
    if p.prof:
        if p.dyn: e("s_mov_b32 m0, s86"); e("v_writelane_b32 v1, s84, m0")
        else: e(f"v_writelane_b32 v1, s84, {NG//2}")
        e("v_writelane_b32 v1, s70, 63")
        e(f"s_add_u32 s64, s28, 0x1800000"); e("s_addc_u32 s65, s29, 0"); e("s_lshl_b32 s54, s2, 2"); e("s_add_u32 s54, s54, s3"); e("s_lshl_b32 s54, s54, 8")
        e("v_lshlrev_b32 v8, 2, v0"); e("v_add_u32 v8, s54, v8"); e("global_store_dword v8, v1, s[64:65]")
    if p.stamps:
        e("s_cmp_lg_u32 s3, 0"); e("s_cbranch_scc1 L_end")
        write_stamps(8,0)
    e("s_endpgm")

    e("L_helper:")
    e("s_setprio 3")
    e("v_mov_b32 v8, 0"); e(f"ds_write_b32 v8, v8 offset:{LDS_FL}")
    X=16
    WQ=64
    e("v_bfe_u32 v8, v0, 3, 1"); e("v_mul_u32_u24 v4, 896, v8"); e("v_mul_u32_u24 v8, 56, v3"); e("v_add_u32 v4, v4, v8")
    e(f"v_mul_u32_u24 v5, {28*8192}, v3"); e("v_lshl_add_u32 v5, v2, 4, v5")
    e("s_and_b32 s35, s34, 3"); e("s_mul_i32 s52, s35, 224")
    e(f"s_mul_i32 s53, s35, {112*8192}"); e("s_lshl_b32 s54, s31, 10"); e("s_add_u32 s53, s53, s54")
    e("s_bfe_u32 s54, s34, 0x20002"); e("s_lshl_b32 s54, s54, 8"); e("s_add_u32 s53, s53, s54")
    e("s_cmp_ge_u32 s34, 16")
    e("s_waitcnt lgkmcnt(0)")
    e("s_cselect_b32 s40, s14, s4"); e("s_cselect_b32 s41, s15, s5"); e("s_mov_b32 s42, 1792"); e("s_mov_b32 s43, 0x20000")
    e("s_cselect_b32 s44, s20, s10"); e("s_cselect_b32 s45, s21, s11"); e(f"s_mov_b32 s46, {0 if p.nowq else 448*8192:#x}"); e("s_mov_b32 s47, 0x20000")
    e(f"buffer_load_dwordx4 v[{X}:{X+3}], v4, s[40:43], s52 offen")
    e(f"buffer_load_dwordx4 v[{X+4}:{X+7}], v4, s[40:43], s52 offen offset:16")
    e(f"buffer_load_dwordx4 v[{X+8}:{X+11}], v4, s[40:43], s52 offen offset:32")
    e(f"buffer_load_dwordx2 v[{X+12}:{X+13}], v4, s[40:43], s52 offen offset:48")
    for t in range(28):
        e(f"buffer_load_dwordx4 v[{WQ+4*t}:{WQ+4*t+3}], v5, s[44:47], s53 offen {POL(p.polw)}")
        if t<27: e("s_add_u32 s53, s53, 8192")
    XT=0
    if p.dyn:
        XT=1
        srd(36,28,29,WS_SIZE)
        e("s_lshl_b32 s54, s32, 3"); e("s_add_u32 s54, s54, s31"); e(f"s_mul_i32 s54, s54, {4*p.cst}"); e(f"s_add_u32 s54, s54, {CNT_OFF:#x}")
        e(f"v_mul_u32_u24 v8, {p.cst}, v0"); e(f"v_mov_b32 v47, {0 if p.nos else 32}")
        e("s_cmp_eq_u32 s33, 0"); e("s_cselect_b32 s55, 0, 0x40000000"); e("v_add_u32 v8, s55, v8")
        e("s_mov_b64 exec, 15")
        e("buffer_atomic_swap v47, v8, s[36:39], s54 offen sc0 sc1")
        e("s_mov_b64 exec, -1")
    def pretouch():
        n=0
        e("v_and_b32 v9, 31, v0")
        e("s_mov_b32 exec_hi, 0")
        if p.ptm&1:
            e("v_lshlrev_b32 v8, 12, v9")
            e("s_lshl_b32 s54, s31, 17"); e("s_lshl_b32 s98, s34, 7"); e("s_add_u32 s54, s54, s98"); e(f"s_add_u32 s54, s54, {H1_OFF:#x}")
            e(f"buffer_load_dword v56, v8, s[36:39], s54 offen sc1"); n+=1
        if p.ptm&2:
            e("s_mov_b32 exec_lo, 0x0fffffff")
            e("v_lshlrev_b32 v57, 14, v9")
            e("s_lshr_b32 s54, s34, 4"); e(f"s_mul_i32 s54, s54, {112*4096}")
            e("s_and_b32 s55, s34, 15"); e("s_lshl_b32 s98, s31, 4"); e("s_add_u32 s55, s55, s98"); e("s_lshl_b32 s55, s55, 7")
            e("s_add_u32 s54, s54, s55"); e(f"s_add_u32 s54, s54, {H2_OFF:#x}")
            e(f"buffer_load_dword v57, v57, s[36:39], s54 offen sc1"); n+=1
        if p.ptm&4:
            e("s_mov_b32 exec_lo, 15")
            e("v_lshlrev_b32 v58, 12, v9")
            e("s_and_b32 s54, s2, 7"); e("s_lshr_b32 s98, s2, 5"); e("s_lshl_b32 s98, s98, 3"); e("s_add_u32 s54, s54, s98")
            e("s_lshl_b32 s54, s54, 14"); e(f"s_add_u32 s54, s54, {H2_OFF:#x}")
            e(f"buffer_load_dword v58, v58, s[36:39], s54 offen sc1"); n+=1
        if p.ptm&8:
            e("s_mov_b32 exec_lo, 1")
            e("global_load_dword v59, v0, s[24:25] sc1"); n+=1
        if p.ptm&16:
            e("s_mov_b32 exec_lo, 0xff")
            e("s_cmp_ge_u32 s34, 16"); e("s_cselect_b32 s92, s22, s12"); e("s_cselect_b32 s93, s23, s13")
            e("s_and_b32 s54, s34, 15"); e("s_lshl_b32 s54, s54, 5"); e("s_lshl_b32 s63, s31, 9"); e("s_add_u32 s63, s63, s54"); e("s_mul_i32 s63, s63, 896")
            e("v_mul_u32_u24 v60, 4092, v9"); e("v_add_u32 v60, s63, v60")
            e("global_load_dword v60, v60, s[92:93] nt"); n+=1
        e("s_mov_b64 exec, -1")
        return n
    NPT=0
    if p.pt and p.pte:
        srd(36,28,29,WS_SIZE); NPT+=pretouch()
    if p.ept:
        e("s_lshl_b32 s54, s32, 3"); e("s_add_u32 s54, s54, s31"); e("s_lshl_b32 s54, s54, 22")
        e("s_lshl_b32 s55, s33, 18"); e("s_add_u32 s55, s55, s54")
        e("v_and_b32 v8, 3, v0"); e("v_lshlrev_b32 v8, 16, v8"); e("v_add_u32 v8, s55, v8")
        e(f"s_add_u32 s54, s54, {6144*512:#x}")
        if p.dyn: e("v_lshlrev_b32 v9, 16, v2")
        else: e("s_lshl_b32 s55, s33, 16"); e("v_mov_b32 v9, s55")
        e("v_add_u32 v9, s54, v9")
        e(f"s_mov_b64 exec, {0xffff if p.ept>=2 else 1:#x}")
        e("global_load_dword v48, v8, s[8:9] nt"); e("global_load_dword v49, v9, s[16:17] nt"); e("global_load_dword v50, v9, s[18:19] nt")
        NPT+=3
        if p.ept>=2: e("global_load_dword v51, v8, s[6:7] nt"); NPT+=1
        e("s_mov_b64 exec, -1")
    if p.ep2:
        e("v_lshlrev_b32 v8, 20, v0"); e("s_lshl_b32 s54, s2, 7"); e("s_add_u32 s54, s54, 0x58000"); e("v_add_u32 v8, s54, v8")
        e("s_mov_b64 exec, 7"); e("global_load_dword v52, v8, s[28:29] sc1"); NPT+=1
        e("s_mov_b64 exec, 1")
        if p.ep2>=2: e("global_load_dword v53, v0, s[24:25] sc1"); NPT+=1
        if p.ep2>=3:
            e("s_cmp_ge_u32 s34, 16"); e("s_cselect_b32 s92, s22, s12"); e("s_cselect_b32 s93, s23, s13")
            e("s_and_b32 s54, s34, 15"); e("s_lshl_b32 s54, s54, 5"); e("s_lshl_b32 s63, s31, 9"); e("s_add_u32 s63, s63, s54"); e("s_mul_i32 s63, s63, 896")
            e("v_mov_b32 v9, s63"); e("global_load_dword v54, v9, s[92:93] nt"); NPT+=1
        e("s_mov_b64 exec, -1")
    XT+=NPT
    if p.bar0: e("s_barrier")
    e("s_load_dword s30, s[28:29], 0")
    srd(36,28,29,WS_SIZE)
    emit_masks(MK)
    e("s_mov_b32 s48, 0x01000100"); e("s_mov_b32 s49, 0x03020302")
    e("v_lshrrev_b32 v8, 5, v0"); e("v_lshlrev_b32 v6, 14, v8"); e("v_lshl_add_u32 v6, v2, 5, v6"); e("v_and_b32 v9, 1, v3"); e("v_lshl_add_u32 v6, v9, 4, v6")
    e("s_lshl_b32 s50, s31, 15"); e("s_lshl_b32 s54, s34, 9"); e("s_add_u32 s50, s50, s54"); e(f"s_add_u32 s50, s50, {H0_OFF:#x}")
    e("v_lshlrev_b32 v14, 11, v8"); e("v_and_b32 v9, 31, v0"); e("v_lshl_add_u32 v14, v9, 4, v14")
    e("s_lshl_b32 s51, s31, 1"); e("s_add_u32 s51, s51, s32"); e("s_lshl_b32 s51, s51, 14"); e(f"s_add_u32 s51, s51, {H0_OFF:#x}")
    e("v_lshlrev_b32 v15, 3, v0")
    e("s_waitcnt lgkmcnt(0)")
    emit_tagconsts()
    e(f"v_mov_b32 v{VTAG}, s30")
    e(f"s_waitcnt vmcnt({28+XT})")
    stamp(1)
    DQ=32; AQ=36
    def aq(t):
        a=AQ+4*(t%2)
        e(f"v_perm_b32 v8, v{X+t//2}, v{X+t//2}, s{48+(t&1)}")
        for c in range(4): e(f"v_and_b32 v{a+c}, v{MK+c}, v8")
    aq(0)
    for t in range(28):
        if t+1<28: aq(t+1)
        else: nop(2)
        e(f"s_waitcnt vmcnt({27-t+XT})")
        a=AQ+4*(t%2); c="0" if t==0 else f"v[{DQ}:{DQ+3}]"
        e(f"v_mfma_f32_16x16x32_bf16 v[{DQ}:{DQ+3}], v[{a}:{a+3}], v[{WQ+4*t}:{WQ+4*t+3}], {c}")
    nop(8)
    if p.dyn: e(f"s_waitcnt vmcnt({NPT})")
    tag_insert(DQ,VTAG)
    e(f"buffer_store_dwordx4 v[{DQ}:{DQ+3}], v6, s[36:39], s50 offen sc1")
    stamp(2)
    e(f"s_mov_b32 s62, {p.spin}")
    if p.first_delay: e(f"s_sleep {p.first_delay}")
    for i in range(p.fd2): e("s_sleep 127")
    GQ=64; BAD=44; T0=45; T1=46
    e("s_mov_b32 s35, 0xffff")
    if p.h0p!='sc1':
        for pi in range(4):
            e(f"s_add_u32 s54, s51, {pi*4096}")
            for kq in range(4):
                r=GQ+4*(pi*4+kq)
                e(f"buffer_load_dwordx4 v[{r}:{r+3}], v14, s[36:39], s54 offen offset:{kq*512} {POL(p.h0p)}")
        e("s_branch L_h0s15")
    e("L_h0:")
    for pi in range(4):
        e(f"s_add_u32 s54, s51, {pi*4096}")
        for kq in range(4):
            k=pi*4+kq; r=GQ+4*k
            e(f"s_bitcmp0_b32 s35, {k}"); e(f"s_cbranch_scc1 L_h0s{k}")
            e(f"buffer_load_dwordx4 v[{r}:{r+3}], v14, s[36:39], s54 offen offset:{kq*512} sc1")
            e(f"L_h0s{k}:")
    e("s_waitcnt vmcnt(0)")
    e("s_mov_b32 s35, 0")
    for k in range(16):
        tag_check(GQ+4*k,VTAG,BAD,T0,T1,True)
        e(f"v_cmp_ne_u32 vcc, 0, v{BAD}"); e("s_cmp_lg_u64 vcc, 0"); e(f"s_cselect_b32 s54, {1<<k}, 0"); e("s_or_b32 s35, s35, s54")
    e("s_cbranch_scc0 L_h0_done")
    e("s_sub_u32 s62, s62, 1"); e("s_cbranch_scc1 L_h0_done")
    if p.sleep0: e(f"s_sleep {p.sleep0}")
    e("s_branch L_h0")
    e("L_h0_done:")
    stamp(3)
    for pi in range(4):
        r=GQ+16*pi
        for c in range(4):
            e(f"v_add_f32 v{r+c}, v{r+c}, v{r+4+c}"); e(f"v_add_f32 v{r+8+c}, v{r+8+c}, v{r+12+c}")
        for c in range(4): e(f"v_add_f32 v{r+c}, v{r+c}, v{r+8+c}")
        e(f"v_cvt_pk_bf16_f32 v{r}, v{r}, v{r+1}"); e(f"v_cvt_pk_bf16_f32 v{r+1}, v{r+2}, v{r+3}")
        e(f"ds_write_b64 v15, v[{r}:{r+1}] offset:{LDS_Q+pi*512}")
    e("v_mov_b32 v8, 0"); e("v_mov_b32 v9, 1")
    e("s_waitcnt lgkmcnt(0)")
    e(f"ds_write_b32 v8, v9 offset:{LDS_FL}")
    stamp(4)
    if p.pt and not p.pte:
        for i in range(p.ptd): e("s_sleep 127")
        pretouch(); e("s_waitcnt vmcnt(0)")
    e("s_cmp_ge_u32 s2, 224"); e("s_cbranch_scc1 L_hend2")
    if p.cmap:
        e("s_and_b32 s35, s2, 7"); e("s_lshr_b32 s52, s2, 5"); e("s_lshl_b32 s52, s52, 3"); e("s_add_u32 s35, s35, s52"); e("s_lshl_b32 s35, s35, 2")
        e("s_bfe_u32 s52, s2, 0x20003"); e("s_add_u32 s35, s35, s52")
    else: e("s_mov_b32 s35, s2")
    if p.h2lay==0:
        e("v_lshlrev_b32 v4, 4, v0")
        e("s_lshl_b32 s51, s35, 12"); e(f"s_add_u32 s51, s51, {H2_OFF:#x}")
    else:
        e("v_lshrrev_b32 v4, 1, v0"); e(f"v_lshlrev_b32 v4, {9 if p.lmap else 7}, v4"); e("v_and_b32 v9, 1, v0"); e("v_lshl_add_u32 v4, v9, 4, v4")
        e("s_lshr_b32 s51, s35, 2"); e("s_lshl_b32 s51, s51, 14"); e("s_and_b32 s52, s35, 3"); e("s_lshl_b32 s52, s52, 5"); e("s_add_u32 s51, s51, s52"); e(f"s_add_u32 s51, s51, {H2_OFF:#x}")
        for i in range(1,4): e(f"s_add_u32 s{44+i}, s51, {i*(128 if p.lmap else 4096)}")
    e("s_mul_i32 s52, s35, 1171"); e("s_lshr_b32 s52, s52, 16")
    e("s_mul_i32 s53, s52, 56"); e("s_sub_u32 s53, s35, s53")
    e("s_lshl_b32 s53, s53, 4")
    e("s_and_b32 s54, s52, 1"); e("s_mul_i32 s54, s54, 1792"); e("s_add_u32 s53, s53, s54")
    e("s_lshr_b32 s54, s52, 1"); e("s_mul_i32 s54, s54, 896"); e("s_add_u32 s53, s53, s54")
    srd(40,24,25,3584)
    e(f"s_mov_b32 s62, {p.spin}")
    e("s_barrier")
    if p.h2e:
        for i in range(4): e(f"buffer_load_dword v{GQ+4*i}, v4, s[36:39], s{51 if i==0 else 44+i} offen sc1")
    e("s_barrier")
    stamp(5)
    if p.d2: e(f"s_sleep {p.d2}")
    e("L_h2:")
    for i in range(4):
        if p.h2lay==0: e(f"buffer_load_dwordx4 v[{GQ+4*i}:{GQ+4*i+3}], v4, s[36:39], s51 offen offset:{i*1024} sc1")
        else: e(f"buffer_load_dwordx4 v[{GQ+4*i}:{GQ+4*i+3}], v4, s[36:39], s{51 if i==0 else 44+i} offen sc1")
    e("s_waitcnt vmcnt(0)")
    for k in range(4): tag_check(GQ+4*k,VTAG,BAD,T0,T1,k==0)
    e(f"v_cmp_ne_u32 vcc, 0, v{BAD}")
    poll_tail_masked("L_h2",p.bk2)
    stamp(6)
    for c in range(4):
        e(f"v_add_f32 v{GQ+c}, v{GQ+c}, v{GQ+4+c}"); e(f"v_add_f32 v{GQ+8+c}, v{GQ+8+c}, v{GQ+12+c}")
    for c in range(4): e(f"v_add_f32 v{GQ+c}, v{GQ+c}, v{GQ+8+c}")
    for rr in (2,4,8):
        if rr==2: nop(1)
        for c in range(4): e(f"v_add_f32_dpp v{GQ+c}, v{GQ+c}, v{GQ+c} row_ror:{rr} row_mask:0xf bank_mask:0xf")
    for sw in ("v_permlane16_swap_b32","v_permlane32_swap_b32"):
        for c in range(4): e(f"v_mov_b32 v{GQ+4+c}, v{GQ+c}")
        nop(1)
        for c in range(4): e(f"{sw} v{GQ+c}, v{GQ+4+c}")
        nop(1)
        for c in range(4): e(f"v_add_f32 v{GQ+c}, v{GQ+c}, v{GQ+4+c}")
    e(f"v_cvt_pk_bf16_f32 v{GQ}, v{GQ}, v{GQ+1}"); e(f"v_cvt_pk_bf16_f32 v{GQ+1}, v{GQ+2}, v{GQ+3}")
    e("s_mov_b64 exec, 3")
    e(f"buffer_store_dwordx2 v[{GQ}:{GQ+1}], v15, s[40:43], s53 offen")
    e("s_cmp_lg_u32 s2, 0"); e("s_cbranch_scc1 L_hend")
    e("s_mov_b64 exec, 1")
    e(f"buffer_store_dword v{VTAG}, v15, s[36:39], 0 offen sc1")
    e("L_hend:")
    if p.padto:
        e("L_pad:"); e("s_memrealtime s[84:85]"); e("s_waitcnt lgkmcnt(0)"); e("s_sub_u32 s84, s84, s86")
        e(f"s_cmp_lt_u32 s84, {p.padto}"); e("s_cbranch_scc1 L_pad")
    e("L_hend2:")
    stamp(7)
    write_stamps(8,8)
    e("L_end:")
    e("s_endpgm")
    body="\n".join("    "+x if not x.endswith(":") else x for x in L)
    txt = HDR + f"""; Generated by gen/gen.py (hand-designed schedule). One workgroup per CU: wave 0 = helper, waves 1-4 = streamers.
; @launch grid=(256,1,1) block=(320,1,1) lds={LDS_SIZE}
.amdgcn_target "amdgcn-amd-amdhsa--gfx950"
.text
.globl {NAME}
.p2align 8
.type {NAME},@function
{NAME}:
{body}
.section .rodata,"a"
.p2align 6
.amdhsa_kernel {NAME}
  .amdhsa_next_free_vgpr 256
  .amdhsa_next_free_sgpr 102
  .amdhsa_accum_offset 256
  .amdhsa_group_segment_fixed_size 0
  .amdhsa_kernarg_size 104
  .amdhsa_user_sgpr_count 2
  .amdhsa_user_sgpr_kernarg_segment_ptr 1
  .amdhsa_system_sgpr_workgroup_id_x 1
.end_amdhsa_kernel
"""
    return txt

if __name__=="__main__":
    p=P()
    out=sys.argv[1]
    for kv in sys.argv[2:]:
        k,v=kv.split("=")
        setattr(p,k, v if k in ("order","pol","polw","h0p") else int(v))
    open(out,"w").write(gen(p))
```

```python
import sys, math
NAME = "concat_heads__gqa_block_cached__sliding_block_cached__decode_kernel"
HDR = open("concat_heads__gqa_block_cached__sliding_block_cached__decode.s.ref").read().split("; Override launch")[0]

H0_OFF  = 0x1000
H1L_OFF = 0x60000
H1_OFF  = 0x80000
H2_OFF  = 0x200000
CNT_OFF = 0x300000
WS_SIZE = 0x400000
STAMP_OFF = 0x1000000
LDS_Q = 0; LDS_O = 2048; LDS_ST = 2048+16384; LDS_OX = LDS_ST+128; LDS_FL = LDS_OX+256; LDS_SIZE = LDS_FL+16
TAGC = 0x3B5D7F91
CEXP = math.log2(math.e)/16.0
def f2u(x):
    import struct; return struct.unpack("<I", struct.pack("<f", x))[0]

class P:
    R=39; T=7; order="AK,BK,AV,BV"; mp=0; stamps=0; spin=100000; T0=5; sleep0=1; sleep1=1; sleep2=1
    first_delay=30; fine=1; h2lay=1; TE=0; NE=0; d2=0; padto=0; bk1=2; bk2=2; kpat=1; bar0=1; TI=5; pol='nt'; polw='nt'; pt=0; ptd=0; cmap=1; lmap=1; dyn=0; NU=128; fake=0; wol=0; nowq=0; fd2=0; sat=0; sm=0; rot=0; nos=0; dw=4; tl=5; ept=0; prof=0; h0p='sc1'; ep2=0; pte=0; ptm=31; h2e=0; TH=0; cont=0; skew=0; cst=128; diag=-1; fac=4

def POL(x): return '' if x=='none' else x.replace('+',' ')
def gen(p):
    L=[]; e=L.append
    def nop(n):
        if n>0: e(f"s_nop {n-1}")
    nst=[0]
    def stamp(i):
        if p.stamps or p.diag>=0: e(f"s_memrealtime s[{70+2*i}:{71+2*i}]")
    def srd(r, lo, hi, size):
        e(f"s_mov_b32 s{r}, s{lo}"); e(f"s_mov_b32 s{r+1}, s{hi}"); e(f"s_mov_b32 s{r+2}, {size:#x}"); e(f"s_mov_b32 s{r+3}, 0x20000")
    def write_stamps(n, slot0):
        if not p.stamps: return
        e("s_waitcnt lgkmcnt(0)")
        e(f"s_add_u32 s64, s28, {STAMP_OFF:#x}"); e("s_addc_u32 s65, s29, 0"); e("s_mov_b32 s66, 0x100000"); e("s_mov_b32 s67, 0x20000")
        e("s_lshl_b32 s68, s2, 7"); e(f"s_add_u32 s68, s68, {slot0*8}")
        e("s_mov_b64 exec, 1"); e("v_mov_b32 v1, 0")
        for i in range(n):
            e(f"v_mov_b32 v2, s{70+2*i}"); e(f"v_mov_b32 v3, s{71+2*i}")
            e(f"buffer_store_dwordx2 v[2:3], v1, s[64:67], s68 offen offset:{i*8}"); e("s_nop 1")
    stamp(0)
    if p.padto: e("s_memrealtime s[86:87]")
    e("s_cmp_ge_u32 s2, 256"); e("s_cbranch_scc1 L_end")
    e("s_load_dwordx16 s[4:19], s[0:1], 0")
    e("s_load_dwordx8 s[20:27], s[0:1], 64")
    e("s_load_dwordx2 s[28:29], s[0:1], 96")
    e("v_lshrrev_b32 v1, 6, v0")
    e("v_and_b32 v0, 63, v0")
    e("v_readfirstlane_b32 s3, v1")
    if p.mp==1:
        e("s_and_b32 s31, s2, 7"); e("s_bfe_u32 s32, s2, 0x10003"); e("s_lshr_b32 s33, s2, 4")
    elif p.mp==2:
        e("s_bfe_u32 s31, s2, 0x20001"); e("s_bfe_u32 s32, s2, 0x10006"); e("s_lshl_b32 s32, s32, 2"); e("s_or_b32 s31, s31, s32")
        e("s_bfe_u32 s33, s2, 0x30003"); e("s_lshl_b32 s33, s33, 1"); e("s_and_b32 s32, s2, 1"); e("s_or_b32 s33, s33, s32"); e("s_lshr_b32 s32, s2, 7")
    elif p.mp==3:
        e("s_bfe_u32 s31, s2, 0x10002"); e("s_bfe_u32 s32, s2, 0x20005"); e("s_lshl_b32 s32, s32, 1"); e("s_or_b32 s31, s31, s32")
        e("s_bfe_u32 s33, s2, 0x20003"); e("s_lshl_b32 s33, s33, 2"); e("s_and_b32 s32, s2, 3"); e("s_or_b32 s33, s33, s32"); e("s_lshr_b32 s32, s2, 7")
    else:
        e("s_bfe_u32 s31, s2, 0x30004"); e("s_lshr_b32 s32, s2, 7"); e("s_and_b32 s33, s2, 15")
    e("s_lshl_b32 s34, s32, 4"); e("s_add_u32 s34, s34, s33")
    e("v_and_b32 v2, 15, v0"); e("v_lshrrev_b32 v3, 4, v0")
    e("s_cmp_eq_u32 s3, 0"); e("s_cbranch_scc1 L_helper")

    def emit_masks(base):
        e("v_and_b32 v8, 1, v0"); e("v_lshlrev_b32 v8, 4, v8"); e("v_mov_b32 v9, 0xffff"); e("v_lshlrev_b32 v9, v8, v9")
        e("v_bfe_u32 v8, v0, 1, 2")
        for r in range(4):
            e(f"v_cmp_eq_u32 vcc, {r}, v8"); nop(2); e(f"v_cndmask_b32 v{base+r}, 0, v9, vcc")
    def emit_tagconsts():
        e(f"s_add_u32 s30, s30, {TAGC:#x}")
        for i in range(4): e(f"s_mov_b32 s{56+i}, {0x07060500+i:#x}")
        e("s_mov_b32 s60, 0x0c0c0400"); e("s_mov_b32 s61, 0x04000c0c")
    def tag_insert(r, vtag):
        for i in range(4): e(f"v_perm_b32 v{r+i}, v{r+i}, v{vtag}, s{56+i}")
    def tag_check(r, vtag, vbad, t0, t1, first):
        e(f"v_perm_b32 v{t0}, v{r+1}, v{r}, s60"); e(f"v_perm_b32 v{t1}, v{r+3}, v{r+2}, s61")
        if first: e(f"v_bitop3_b32 v{vbad}, v{t0}, v{t1}, v{vtag} bitop3:0x56")
        else:
            e(f"v_bitop3_b32 v{t0}, v{t0}, v{t1}, v{vtag} bitop3:0x56"); e(f"v_or_b32 v{vbad}, v{vbad}, v{t0}")
    def poll_tail(lbl, vbad, slp):
        e(f"v_cmp_ne_u32 vcc, 0, v{vbad}")
        e(f"s_cbranch_vccz {lbl}_done")
        e("s_sub_u32 s62, s62, 1"); e(f"s_cbranch_scc1 {lbl}_done")
        if slp: e(f"s_sleep {slp}")
        e(f"s_branch {lbl}")
        e(f"{lbl}_done:")
    def poll_tail_masked(lbl, bk):
        e("s_and_b64 exec, exec, vcc")
        e(f"s_cbranch_scc0 {lbl}_done")
        e("s_sub_u32 s62, s62, 1"); e(f"s_cbranch_scc1 {lbl}_done")
        e("s_bcnt1_i32_b64 s99, exec"); e(f"s_lshr_b32 s99, s99, {bk}")
        e(f"{lbl}_slp:")
        e("s_sub_u32 s99, s99, 1"); e(f"s_cbranch_scc1 {lbl}")
        e("s_sleep 1"); e(f"s_branch {lbl}_slp")
        e(f"{lbl}_done:")
        e("s_mov_b64 exec, -1")
    def allred_rows(op, x, t):
        e(f"v_mov_b32 v{t}, v{x}"); nop(2); e(f"v_permlane16_swap_b32 v{x}, v{t}"); nop(1); e(f"{op} v{x}, v{x}, v{t}")
        e(f"v_mov_b32 v{t}, v{x}"); nop(2); e(f"v_permlane32_swap_b32 v{x}, v{t}"); nop(1); e(f"{op} v{x}, v{x}, v{t}")

    VK,VV,VW=4,5,6; VTAG=7; MK=10
    Q=14
    Q=16
    S=32
    DT=52
    AO=68
    ACC=76
    MX=92
    LS=94
    TM=96
    RING=100
    R=p.R; assert RING+4*R<=256
    e("s_sub_u32 s3, s3, 1")
    e("v_lshrrev_b32 v8, 2, v2"); e(f"v_lshlrev_b32 v{VK}, 11, v8"); e(f"v_lshl_add_u32 v{VK}, v3, 6, v{VK}")
    e("v_and_b32 v8, 3, v0"); e(f"v_lshl_add_u32 v{VK}, v8, 4, v{VK}")
    e(f"v_lshlrev_b32 v{VV}, 11, v3"); e(f"v_lshl_add_u32 v{VV}, v2, 4, v{VV}")
    e("s_lshl_b32 s35, s32, 3"); e("s_add_u32 s35, s35, s31"); e("s_lshl_b32 s35, s35, 22")
    e("s_lshl_b32 s54, s3, 13"); e("s_add_u32 s35, s35, s54")
    e("s_lshl_b32 s52, s33, 18"); e("s_add_u32 s52, s52, s35")
    e("s_lshl_b32 s53, s33, 16"); e("s_add_u32 s53, s53, s35"); e(f"s_add_u32 s53, s53, {6144*512:#x}")
    e("s_waitcnt lgkmcnt(0)")
    SRD={"AK":40,"AV":44,"BK":48,"BV":36}
    SRD={"AK":40,"AV":44,"BK":48,"BV":88}
    order=("AK,AV" if p.dyn else p.order).split(",")
    ptr={"AK":6,"AV":8,"BK":16,"BV":18}
    srd(SRD[order[0]], ptr[order[0]], ptr[order[0]]+1, 0x4000000)
    loads=[]
    for ph in order:
        br=0 if ph[0]=="A" else 1
        nt=8 if br==0 else 2
        for t in range(nt):
            for r in range(4):
                for hf in range(2): loads.append((ph,br,t,r,hf))
    NKV=len(loads)
    if not(p.dyn and p.wol):
        for t in range(8): loads.append(("WO",0,t,0,0))
    VK2,VV2,TK=48,49,56
    if p.dyn:
        for un in range(2):
            for k in range(4): loads.append(("DU",1,un,k,0))
            if not p.sat: loads.append(("TK",1,un+2,0,0))
    N=len(loads)
    st={"issued":0,"cur":None}
    def slot(i): return RING+4*(i%R)
    def ubuf(j): return slot(NKV+8+4*(j%3))
    if p.dyn: assert (NKV+8)%R+12<=R
    def unit_load(j,k,so):
        d=ubuf(j)+4*k; ph="BK" if k<2 else "BV"
        e(f"buffer_load_dwordx4 v[{d}:{d+3}], v{VK2 if k<2 else VV2}, s[{SRD[ph]}:{SRD[ph]+3}], s{so} offen offset:{(k&1)*256} {POL(p.pol)}")
    def unit_addr(src):
        sh=11 if p.cont else 13
        if p.rot==0: e(f"s_lshl_b32 s54, s{src}, {sh}")
        else:
            if p.rot==1: e(f"s_add_u32 s54, s{src}, s35")
            elif p.rot==2: e(f"s_mul_i32 s54, s{src}, 37")
            else: e(f"s_mul_i32 s54, s{src}, 37"); e("s_add_u32 s54, s54, s35")
            e("s_and_b32 s54, s54, 127"); e(f"s_lshl_b32 s54, s54, {sh}")
        e("s_add_u32 s55, s54, s53")
    def ticket(j):
        e("s_mov_b64 exec, 1"); e(f"v_mov_b32 v{TK+j%3}, 1")
        if p.fake==1: e(f"buffer_load_dword v{TK+j%3}, off, s[36:39], s69 sc1")
        elif p.fake==2: e(f"buffer_load_dword v{TK+j%3}, off, s[36:39], s69")
        else: e(f"buffer_atomic_add v{TK+j%3}, off, s[36:39], s69 sc0 sc1")
        e("s_mov_b64 exec, -1")
    def issue(throttle=None):
        i=st["issued"]
        if i>=N: return
        ph,br,t,r,hf=loads[i]
        if throttle is not None and i>=throttle: e(f"s_waitcnt vmcnt({throttle-1})")
        if p.prof==2 and i%4==0 and i<=NKV:
            if i==0: e("v_mov_b32 v1, 0")
            else: e("s_waitcnt lgkmcnt(0)"); e(f"v_writelane_b32 v1, s84, {i//4-1}")
            e("s_memrealtime s[84:85]")
        if p.dyn and p.nos and i==N-8-p.tl:
            e("s_add_u32 s64, s28, s69"); e("s_addc_u32 s65, s29, 0"); e("s_mov_b32 s66, 1"); e("s_atomic_add s66, s[64:65], 0 glc")
        d=slot(i)
        if ph=="WO":
            key=("WO",t//4)
            if st["cur"]!=key:
                e(f"s_add_u32 s55, s63, {(t//4)*4*896}"); st["cur"]=key
            e(f"buffer_load_dwordx4 v[{d}:{d+3}], v{VW}, s[92:95], s55 offen offset:{(t%4)*896} {POL(p.polw)}")
        elif ph=="DU":
            key=("DU",t)
            if st["cur"]!=key:
                if p.nos:
                    e("s_waitcnt lgkmcnt(0)")
                    e(f"s_cmp_ge_u32 s66, {p.NU}"); e(f"s_cselect_b32 s{67+t}, 1, 0")
                    e(f"s_cselect_b32 s{SRD['BK']+2}, 0, 0x4000000"); e(f"s_cselect_b32 s{SRD['BV']+2}, 0, 0x4000000")
                    e("s_cselect_b32 s55, 0, s66"); e(f"s_cbranch_scc1 L_nodraw{t}")
                    e("s_mov_b32 s66, 1"); e("s_atomic_add s66, s[64:65], 0 glc")
                    e(f"L_nodraw{t}:")
                    unit_addr(55)
                else:
                    e(f"s_add_u32 s55, s33, {16*t}"); unit_addr(55)
                st["cur"]=key
            if p.skew:
                if r==2 and t==0: e(f"s_mov_b32 s{SRD['BV']+2}, 0")
                unit_load(t,r,55 if (r<2 or t==0) else 87)
                if r==3:
                    e("s_mov_b32 s87, s55")
                    if t==0: e(f"s_mov_b32 s{SRD['BV']+2}, 0x4000000")
            else: unit_load(t,r,55)
        elif ph=="TK":
            ticket(t)
        else:
            key=(br,t)
            if st["cur"]!=key:
                e(f"s_add_u32 s55, s{52+br}, {t*32768}"); st["cur"]=key
            vo=VK if (ph[1]=="K" and p.kpat) else VV
            e(f"buffer_load_dwordx4 v[{d}:{d+3}], v{vo}, s[{SRD[ph]}:{SRD[ph]+3}], s55 offen offset:{r*512+hf*256} {POL(p.pol)}")
        st["issued"]+=1
    if p.bar0: e("s_barrier")
    for i in range(p.T0): issue()
    e("s_load_dword s30, s[28:29], 0")
    for ph in ("AK","AV","BK","BV"):
        if ph!=order[0]: srd(SRD[ph], ptr[ph], ptr[ph]+1, 0x4000000)
    srd(36,28,29,WS_SIZE)
    if p.dyn:
        e("s_lshl_b32 s54, s32, 3"); e("s_add_u32 s54, s54, s31"); e("s_lshl_b32 s53, s54, 22"); e("s_lshl_b32 s35, s54, 3")
        e(f"s_lshl_b32 s69, s3, {18 if p.cont else 11}"); e("s_add_u32 s53, s53, s69"); e(f"s_add_u32 s53, s53, {6144*512:#x}")
        e("s_lshl_b32 s54, s54, 2"); e("s_add_u32 s54, s54, s3"); e(f"s_mul_i32 s69, s54, {p.cst}"); e(f"s_add_u32 s69, s69, {CNT_OFF:#x}")
        e("v_lshrrev_b32 v8, 2, v2"); e(f"v_lshlrev_b32 v{VK2}, 9, v8"); e(f"v_lshl_add_u32 v{VK2}, v3, 6, v{VK2}")
        e("v_and_b32 v8, 3, v0"); e(f"v_lshl_add_u32 v{VK2}, v8, 4, v{VK2}")
        e(f"v_lshlrev_b32 v{VV2}, 9, v3"); e(f"v_lshl_add_u32 v{VV2}, v2, 4, v{VV2}")
        for c in range(8): e(f"v_mov_b32 v{ACC+8+c}, 0")
        e("s_mov_b32 s100, 0xff00ff00"); e("s_mov_b32 s101, 0x00ff00ff")
    e("s_cmp_ge_u32 s34, 16"); e("s_cselect_b32 s92, s22, s12"); e("s_cselect_b32 s93, s23, s13")
    e(f"s_mov_b32 s94, {4096*896:#x}"); e("s_mov_b32 s95, 0x20000")
    e("s_and_b32 s54, s34, 15"); e("s_lshl_b32 s54, s54, 5"); e("s_lshl_b32 s63, s31, 9"); e("s_add_u32 s63, s63, s54"); e("s_mul_i32 s63, s63, 896")
    e(f"v_mul_u32_u24 v{VW}, {8*896}, v3"); e(f"v_lshl_add_u32 v{VW}, v2, 4, v{VW}")
    e("s_lshl_b32 s54, s3, 8"); e(f"v_add_u32 v{VW}, s54, v{VW}")
    e("s_lshl_b32 s54, s3, 4"); e("v_add_u32 v8, s54, v2")
    e("v_mov_b32 v14, v8")
    e("v_cmp_gt_u32 vcc, 56, v8"); e("v_mov_b32 v9, 0x40000000"); nop(1); e(f"v_cndmask_b32 v{VW}, v9, v{VW}, vcc")
    emit_masks(MK)
    e("v_bfe_u32 v8, v0, 3, 1"); e("v_lshlrev_b32 v15, 9, v8"); e("v_lshl_add_u32 v15, v3, 6, v15")
    e("v_and_b32 v8, 3, v0"); e("v_lshl_add_u32 v15, v8, 4, v15")
    for br in range(2):
        e(f"v_mov_b32 v{MX+br}, {0xf149f2ca if (br==1 and p.dyn) else 0xff800000:#x}"); e(f"v_mov_b32 v{LS+br}, 0")
    e(f"s_mov_b32 s96, {f2u(CEXP):#x}"); e("s_mov_b32 s97, 0xffff0000")
    while st["issued"]<R: issue(p.TI)
    e("s_waitcnt lgkmcnt(0)")
    emit_tagconsts()
    e(f"v_mov_b32 v{VTAG}, s30")
    if not p.dyn: stamp(1)
    e("v_mov_b32 v8, 0"); e(f"s_mov_b32 s62, {p.spin*16}")
    e("L_qw:")
    e(f"ds_read_b32 v9, v8 offset:{LDS_FL}"); e("s_waitcnt lgkmcnt(0)")
    e("v_cmp_ne_u32 vcc, 0, v9"); e("s_cbranch_vccnz L_qw_done")
    e("s_sub_u32 s62, s62, 1"); e("s_cbranch_scc1 L_qw_done")
    e("s_sleep 1"); e("s_branch L_qw")
    e("L_qw_done:")
    if not p.dyn: stamp(2)
    for br in range(2):
        for hf in range(2):
            q=Q+br*8+hf*4
            e(f"ds_read_b128 v[{q}:{q+3}], v15 offset:{LDS_Q+br*1024+hf*256}")
    e("s_waitcnt lgkmcnt(0)")
    if p.prof==1: e("v_mov_b32 v1, 0"); e("s_memrealtime s[84:85]")
    groups=[loads[i] for i in range(0,NKV,2)]
    NG=len(groups)
    def sreg(br,t,r): return S+(0 if br==0 else 16)+t*2+(r>>1)
    lastm={}
    def need(dist, idx):
        n=dist-(len(L)-idx-1)
        if n>0: nop(n)
    def k_post(gi):
        ph,br,t,r,_=groups[gi]; d0=DT+4*((gi-1)%4); d1=DT+4*(gi%4)
        def qp(c): return f"quad_perm:[{c},{c},{c},{c}] row_mask:0xf bank_mask:0xf"
        need(8,lastm[gi-1])
        e(f"v_mov_b32_dpp v{TM}, v{d0} {qp(0)}"); e(f"v_mov_b32_dpp v{TM+1}, v{d0+2} {qp(2)}")
        need(8,lastm[gi])
        e(f"v_mov_b32_dpp v{TM+2}, v{d1} {qp(0)}"); e(f"v_mov_b32_dpp v{TM+3}, v{d1+2} {qp(2)}")
        e(f"v_add_f32_dpp v{TM}, v{d0+1}, v{TM} {qp(1)}"); e(f"v_add_f32_dpp v{TM+1}, v{d0+3}, v{TM+1} {qp(3)}")
        e(f"v_add_f32_dpp v{TM+2}, v{d1+1}, v{TM+2} {qp(1)}"); e(f"v_add_f32_dpp v{TM+3}, v{d1+3}, v{TM+3} {qp(3)}")
        e(f"v_add_f32 v{TM}, v{TM}, v{TM+1}"); e(f"v_add_f32 v{TM+2}, v{TM+2}, v{TM+3}")
        s=sreg(br,t,r)
        e(f"v_cvt_pk_bf16_f32 v{s}, v{TM}, v{TM+2}")
        e(f"v_lshlrev_b32 v{TM}, 16, v{s}"); e(f"v_and_b32 v{TM+1}, s97, v{s}")
        e(f"v_max3_f32 v{MX+br}, v{TM}, v{TM+1}, v{MX+br}")
    def v_pre(gi):
        ph,br,t,r,_=groups[gi]; s=sreg(br,t,r); a=AO+4*(gi%2)
        if r&1: e(f"v_and_b32 v{TM}, s97, v{s}")
        else: e(f"v_lshlrev_b32 v{TM}, 16, v{s}")
        e(f"v_fma_f32 v{TM}, v{TM}, s96, -v{MX+br}")
        e(f"v_exp_f32 v{TM}, v{TM}"); nop(1)
        e(f"v_cvt_pk_bf16_f32 v{TM+1}, v{TM}, v{TM}")
        for c in range(4): e(f"v_and_b32 v{a+c}, v{MK+c}, v{TM+1}")
        e(f"v_add_f32 v{LS+br}, v{LS+br}, v{TM}")
    def fin_max(br):
        allred_rows("v_max_f32", MX+br, TM)
        e(f"v_mul_f32 v{MX+br}, s96, v{MX+br}")
    def fin_branch(br):
        allred_rows("v_add_f32", LS+br, TM)
        e(f"v_lshrrev_b32 v{TM}, 5, v0"); e(f"v_lshlrev_b32 v{TM}, 10, v{TM}"); e(f"v_lshl_add_u32 v{TM}, v2, 5, v{TM}")
        e(f"v_and_b32 v{TM+1}, 1, v3"); e(f"v_lshl_add_u32 v{TM}, v{TM+1}, 4, v{TM}")
        e("s_lshl_b32 s54, s3, 12"); e(f"v_add_u32 v{TM}, s54, v{TM}")
        for hf in range(2):
            a=ACC+br*8+hf*4
            e(f"ds_write_b128 v{TM}, v[{a}:{a+3}] offset:{LDS_O+br*2048+hf*512}")
        e(f"v_bfe_u32 v{TM}, v0, 3, 1"); e(f"v_lshlrev_b32 v{TM}, 5, v{TM}"); e("s_lshl_b32 s54, s3, 3"); e(f"v_add_u32 v{TM}, s54, v{TM}")
        e(f"v_mov_b32 v{TM+2}, v{MX+br}"); e(f"v_mov_b32 v{TM+3}, v{LS+br}")
        e(f"ds_write_b64 v{TM}, v[{TM+2}:{TM+3}] offset:{LDS_ST+br*64}")
    pend_k=[]
    maxdone=set(); predone=set(); pend_fin=[]
    def flush_k(keep):
        while len(pend_k)>keep: k_post(pend_k.pop(0))
    for gi in range(NG):
        ph,br,t,r,_=groups[gi]
        i0=2*gi
        if ph[1]=="V" and gi not in predone:
            if br not in maxdone:
                if any(groups[x][1]==br for x in pend_k):
                    flush_k(0)
                fin_max(br); maxdone.add(br)
            v_pre(gi); predone.add(gi); nop(2)
        for hf in range(2):
            i=i0+hf
            e(f"s_waitcnt vmcnt({st['issued']-i-1})")
            d=slot(i)
            if ph[1]=="K":
                D=DT+4*(gi%4); q=Q+br*8+hf*4
                c="0" if hf==0 else f"v[{D}:{D+3}]"
                e(f"v_mfma_f32_16x16x32_bf16 v[{D}:{D+3}], v[{d}:{d+3}], v[{q}:{q+3}], {c}")
            else:
                a=AO+4*(gi%2); D=ACC+br*8+hf*4
                c="0" if (t==0 and r==0) else f"v[{D}:{D+3}]"
                e(f"v_mfma_f32_16x16x32_bf16 v[{D}:{D+3}], v[{a}:{a+3}], v[{d}:{d+3}], {c}")
            lastm[gi]=len(L)-1
            Tc = p.TE if (p.TE and i>=NKV-p.NE) else p.T
            if p.fine and hf==0:
                while st["issued"]-(i+1)<Tc and st["issued"]<N: issue()
        consumed=i0+2
        if p.prof==1 and (gi+1)%2==0:
            k=(gi+1)//2
            e("s_waitcnt lgkmcnt(0)"); e(f"v_writelane_b32 v1, s84, {k-1}"); e("s_memrealtime s[84:85]")
        lag=st["issued"]-consumed
        if lag>=Tc: issue(Tc)
        else:
            while st["issued"]-consumed<Tc and st["issued"]<N: issue()
        flush_k(0)
        if ph[1]=="K" and (r&1): pend_k.append(gi)
        if pend_fin and pend_fin[0][1]<gi:
            fin_branch(pend_fin.pop(0)[0])
        if ph[1]=="V" and (gi+1==NG or groups[gi+1][0]!=ph): pend_fin.append((br,gi))
        if gi+1<NG:
            nph,nbr,_,_,_=groups[gi+1]
            if nph[1]=="V" and (nbr in maxdone or not any(groups[x][1]==nbr for x in pend_k)):
                if nbr not in maxdone: fin_max(nbr); maxdone.add(nbr)
                v_pre(gi+1); predone.add(gi+1)
    while st["issued"]<N: issue()
    if p.dyn:
        stamp(1)
        if p.sat and not p.nos:
            e("s_add_u32 s64, s28, s69"); e("s_addc_u32 s65, s29, 0"); e("s_mov_b32 s66, 1"); e("s_atomic_add s66, s[64:65], 0 glc")
        nop(4)
        while pend_fin: fin_branch(pend_fin.pop(0)[0])
        def process(j,lbl):
            b0=ubuf(j); D=DT; q=Q+8; a=AO
            def qp(c): return f"quad_perm:[{c},{c},{c},{c}] row_mask:0xf bank_mask:0xf"
            def pv():
                for hf in range(2):
                    A=ACC+8+4*hf
                    e(f"v_mfma_f32_16x16x32_bf16 v[{A}:{A+3}], v[{a}:{a+3}], v[{b0+8+4*hf}:{b0+11+4*hf}], v[{A}:{A+3}]")
            if p.skew:
                pv(); e("s_cmp_eq_u32 s68, 3"); e("s_cbranch_scc1 L_dyn_done")
            e(f"v_mfma_f32_16x16x32_bf16 v[{D}:{D+3}], v[{b0}:{b0+3}], v[{q}:{q+3}], 0")
            e(f"v_mfma_f32_16x16x32_bf16 v[{D}:{D+3}], v[{b0+4}:{b0+7}], v[{q+4}:{q+7}], v[{D}:{D+3}]")
            nop(8)
            e(f"v_mov_b32_dpp v{TM}, v{D} {qp(0)}"); e(f"v_mov_b32_dpp v{TM+1}, v{D+2} {qp(2)}")
            e(f"v_add_f32_dpp v{TM}, v{D+1}, v{TM} {qp(1)}"); e(f"v_add_f32_dpp v{TM+1}, v{D+3}, v{TM+1} {qp(3)}")
            e(f"v_add_f32 v{TM}, v{TM}, v{TM+1}")
            e(f"v_cvt_pk_bf16_f32 v{TM}, v{TM}, v{TM}"); e(f"v_and_b32 v{TM}, s97, v{TM}")
            e(f"v_mul_f32 v{TM+1}, s96, v{TM}")
            allred_rows("v_max_f32", TM+1, TM+2)
            e(f"v_cmp_gt_f32 vcc, v{TM+1}, v{MX+1}"); e(f"s_cbranch_vccz {lbl}_keep")
            e(f"v_max_f32 v{TM+1}, v{TM+1}, v{MX+1}"); e(f"v_sub_f32 v{TM+2}, v{MX+1}, v{TM+1}"); e(f"v_exp_f32 v{TM+2}, v{TM+2}")
            e(f"v_mov_b32 v{MX+1}, v{TM+1}"); nop(1)
            e(f"v_mul_f32 v{LS+1}, v{LS+1}, v{TM+2}")
            e(f"v_mov_b32_dpp v{TM+3}, v{TM+2} row_ror:8 row_mask:0xf bank_mask:0xf")
            e(f"v_cndmask_b32 v{TM+2}, v{TM+2}, v{TM+3}, s[100:101]")
            for c in range(8): e(f"v_mul_f32 v{ACC+8+c}, v{ACC+8+c}, v{TM+2}")
            e(f"{lbl}_keep:")
            e(f"v_fma_f32 v{TM}, v{TM}, s96, -v{MX+1}")
            e(f"v_exp_f32 v{TM}, v{TM}"); nop(1)
            e(f"v_cvt_pk_bf16_f32 v{TM+1}, v{TM}, v{TM}")
            for c in range(4): e(f"v_and_b32 v{a+c}, v{MK+c}, v{TM+1}")
            e(f"v_add_f32 v{LS+1}, v{LS+1}, v{TM}"); nop(1)
            if not p.skew: pv()
        if p.nos: e("s_cmp_lg_u32 s67, 0"); e("s_cbranch_scc1 L_dyn_done")
        else: e("s_mov_b32 s68, 0")
        if p.fake: e("s_add_u32 s67, s33, 16")
        if p.TH: e("s_mov_b32 s67, 0"); e("s_mov_b32 s98, 1")
        if p.prof==1: e(f"s_mov_b32 s86, {NG//2}"); e("s_waitcnt lgkmcnt(0)")
        e("L_dyn:")
        for i in ((1,2,3) if not p.sat else ()):
            e("s_cmp_eq_u32 s68, 0"); e(f"s_cbranch_scc1 L_dy{i}_draw")
            stamp(2)
            e("s_mov_b32 s68, 2"); e(f"s_waitcnt vmcnt({9 if p.wol==1 else 1})"); e(f"s_branch L_dy{i}_proc")
            if p.wol==1:
                e(f"L_dy{i}_empty:")
                for t in range(8):
                    if t%4==0: e(f"s_add_u32 s55, s63, {(t//4)*4*896}")
                    d=slot(NKV+t)
                    e(f"buffer_load_dwordx4 v[{d}:{d+3}], v{VW}, s[92:95], s55 offen offset:{(t%4)*896} {POL(p.polw)}")
                e(f"s_branch L_dy{i}_proc")
            e(f"L_dy{i}_draw:")
            e("s_waitcnt vmcnt(5)")
            e(f"v_readfirstlane_b32 s54, v{TK+(i+1)%3}")
            if p.fake: e("s_add_u32 s67, s67, 16"); e("s_mov_b32 s54, s67")
            e(f"s_cmp_ge_u32 s54, {p.NU}"); e("s_cselect_b32 s68, 1, 0"); e(f"s_cbranch_scc1 L_dy{i}_{'empty' if p.wol==1 else 'proc'}")
            unit_addr(54)
            for k in range(4): unit_load(i+1,k,55)
            ticket(i+3)
            e(f"L_dy{i}_proc:")
            process(i-1,f"L_dy{i}")
            e("s_cmp_eq_u32 s68, 2")
            e("s_cbranch_scc1 L_dyn_done" if i<3 else "s_cbranch_scc0 L_dyn")
        if p.sat:
            for i in (1,2,3):
                e("s_cmp_eq_u32 s68, 0"); e(f"s_cbranch_scc1 L_dy{i}_draw")
                if p.skew:
                    e("s_add_u32 s68, s68, 1"); e("s_waitcnt vmcnt(2) lgkmcnt(0)")
                    e("s_cmp_eq_u32 s68, 2"); e(f"s_cbranch_scc1 L_dy{i}_proc")
                    e("s_waitcnt vmcnt(0)"); e(f"s_branch L_dy{i}_proc")
                    e(f"L_dy{i}_empty:")
                    stamp(2)
                    for k in (2,3): unit_load(i+1,k,87)
                    e("s_waitcnt vmcnt(6)"); e(f"s_branch L_dy{i}_proc")
                else:
                    stamp(2)
                    e("s_mov_b32 s68, 2"); e("s_waitcnt vmcnt(0) lgkmcnt(0)"); e(f"s_branch L_dy{i}_proc")
                    e(f"L_dy{i}_empty:"); e("s_waitcnt vmcnt(4)"); e(f"s_branch L_dy{i}_proc")
                e(f"L_dy{i}_draw:")
                if not p.TH:
                    e(f"s_waitcnt vmcnt({p.dw+2 if p.sm else p.dw}) lgkmcnt(0)")
                    e(f"s_cmp_ge_u32 s66, {p.NU}"); e("s_cselect_b32 s68, 1, 0"); e(f"s_cbranch_scc1 L_dy{i}_empty")
                    unit_addr(66)
                    e("s_mov_b32 s66, 1"); e("s_atomic_add s66, s[64:65], 0 glc")
                else:
                    e(f"s_waitcnt vmcnt({p.dw+2 if p.sm else p.dw})")
                    e("s_add_u32 s99, s99, 1")
                    e("s_sub_u32 s67, s67, 1"); e(f"s_cbranch_scc0 L_dy{i}_have")
                    e("s_waitcnt lgkmcnt(0)")
                    e("s_mov_b32 s99, s66"); e("s_sub_u32 s67, s98, 1")
                    e(f"s_cmp_ge_u32 s99, {p.NU}"); e(f"s_cbranch_scc1 L_dy{i}_have")
                    e(f"s_cmp_lt_u32 s99, {p.TH}"); e("s_cselect_b32 s98, 2, 1")
                    e("s_mov_b32 s66, s98"); e("s_atomic_add s66, s[64:65], 0 glc")
                    e(f"L_dy{i}_have:")
                    e(f"s_cmp_ge_u32 s99, {p.NU}"); e("s_cselect_b32 s68, 1, 0"); e(f"s_cbranch_scc1 L_dy{i}_empty")
                    unit_addr(99)
                for k in range(4):
                    if p.sm and k==2: e(f"s_waitcnt vmcnt({p.dw+2})")
                    unit_load(i+1,k,87 if (p.skew and k>=2) else 55)
                if p.skew: e("s_mov_b32 s87, s55")
                if p.dw>4: e("s_waitcnt vmcnt(8)")
                e(f"L_dy{i}_proc:")
                process(i-1,f"L_dy{i}")
                if p.prof==1: e("s_mov_b32 m0, s86"); e("v_writelane_b32 v1, s84, m0"); e("s_add_u32 s86, s86, 1"); e("s_memrealtime s[84:85]")
                if p.skew:
                    if i==3: e("s_branch L_dyn")
                else:
                    e("s_cmp_eq_u32 s68, 2")
                    e("s_cbranch_scc1 L_dyn_done" if i<3 else "s_cbranch_scc0 L_dyn")
        e("L_dyn_done:")
        stamp(3)
        def wo_loads():
            for t in range(8):
                if t%4==0: e(f"s_add_u32 s55, s63, {(t//4)*4*896}")
                d=slot(NKV+t)
                e(f"buffer_load_dwordx4 v[{d}:{d+3}], v{VW}, s[92:95], s55 offen offset:{(t%4)*896} {POL(p.polw)}")
        if p.wol==2: wo_loads()
        fin_branch(1)
    else:
        stamp(3)
        while pend_fin: fin_branch(pend_fin.pop(0)[0])
    e("s_waitcnt lgkmcnt(0)")
    e("s_barrier")
    stamp(4)
    if p.dyn and p.wol==3: wo_loads()
    G=16
    e(f"v_lshlrev_b32 v8, 4, v0"); e("s_lshl_b32 s54, s3, 10"); e("v_add_u32 v8, s54, v8")
    e("s_lshl_b32 s54, s3, 5"); e("v_mov_b32 v9, s54")
    e(f"ds_read_b128 v[{G}:{G+3}], v9 offset:{LDS_ST}"); e(f"ds_read_b128 v[{G+4}:{G+7}], v9 offset:{LDS_ST+16}")
    for w in range(4): e(f"ds_read_b128 v[{G+8+4*w}:{G+11+4*w}], v8 offset:{LDS_O+w*4096}")
    e("v_lshrrev_b32 v8, 3, v0"); e("v_lshlrev_b32 v8, 12, v8"); e("v_and_b32 v9, 7, v0"); e("v_lshl_add_u32 v8, v9, 4, v8")
    e("s_lshl_b32 s54, s31, 2"); e("s_add_u32 s54, s54, s3")
    e("s_lshl_b32 s55, s54, 15"); e("s_lshl_b32 s98, s34, 7"); e("s_add_u32 s55, s55, s98"); e(f"s_add_u32 s55, s55, {H1_OFF:#x}")
    e("s_waitcnt lgkmcnt(0)" if (p.stamps or p.diag>=0) else "s_waitcnt lgkmcnt(4)")
    M=G+24
    e(f"v_max3_f32 v{M}, v{G}, v{G+2}, v{G+4}"); e(f"v_max_f32 v{M}, v{M}, v{G+6}")
    for w in range(4): e(f"v_sub_f32 v{G+2*w}, v{G+2*w}, v{M}")
    for w in range(4): e(f"v_exp_f32 v{G+2*w}, v{G+2*w}")
    nop(1)
    e(f"v_mul_f32 v{M+1}, v{G}, v{G+1}")
    for w in range(1,4): e(f"v_fmac_f32 v{M+1}, v{G+2*w}, v{G+2*w+1}")
    if p.dyn: e(f"v_max_f32 v{M+1}, 0x0da24260, v{M+1}")
    e(f"v_rcp_f32 v{M+2}, v{M+1}"); e(f"v_log_f32 v{M+3}, v{M+1}"); nop(1)
    for w in range(4): e(f"v_mul_f32 v{G+2*w}, v{G+2*w}, v{M+2}")
    PB=M+4
    e(f"v_add_f32 v{PB+2}, v{M}, v{M+3}"); e(f"v_mov_b32 v{PB+3}, v{VTAG}")
    e("s_waitcnt lgkmcnt(0)")
    O=M+8
    for c in range(4): e(f"v_mul_f32 v{O+c}, v{G}, v{G+8+c}")
    for w in range(1,4):
        for c in range(4): e(f"v_fmac_f32 v{O+c}, v{G+2*w}, v{G+8+4*w+c}")
    e(f"v_cvt_pk_bf16_f32 v{PB}, v{O}, v{O+1}"); e(f"v_cvt_pk_bf16_f32 v{PB+1}, v{O+2}, v{O+3}")
    e(f"buffer_store_dwordx4 v[{PB}:{PB+3}], v8, s[36:39], s55 offen sc1")
    stamp(5)
    e("v_lshrrev_b32 v9, 1, v0"); e("v_lshlrev_b32 v8, 7, v9"); e("v_and_b32 v9, 1, v0"); e("v_lshl_add_u32 v8, v9, 4, v8")
    e("s_lshl_b32 s55, s31, 5"); e("s_add_u32 s55, s55, s34"); e("s_lshl_b32 s55, s55, 12"); e(f"s_add_u32 s55, s55, {H1_OFF:#x}")
    e("s_lshl_b32 s98, s3, 5"); e("s_add_u32 s55, s55, s98")
    e("v_lshrrev_b32 v20, 5, v0"); e("v_lshlrev_b32 v20, 7, v20"); e("v_lshl_add_u32 v20, v9, 4, v20"); e("v_add_u32 v20, s98, v20")
    e("v_bfe_u32 v21, v0, 3, 1"); e("v_lshlrev_b32 v21, 7, v21"); e("v_lshl_add_u32 v21, v3, 5, v21")
    e(f"s_mov_b32 s62, {p.spin}")
    GA=16
    e("L_h1:")
    e(f"buffer_load_dwordx4 v[{GA}:{GA+3}], v8, s[36:39], s55 offen sc1")
    e("s_waitcnt vmcnt(0)")
    e(f"v_cmp_ne_u32 vcc, v{GA+3}, v{VTAG}")
    poll_tail_masked("L_h1",p.bk1)
    stamp(6)
    def ror(op,x,n): return f"{op}_dpp v{x}, v{x}, v{x} row_ror:{n} row_mask:0xf bank_mask:0xf"
    MXX=22; A0=24; W=28; TT=32
    e(f"v_mov_b32 v{MXX}, v{GA+2}")
    e(f"v_lshlrev_b32 v{A0}, 16, v{GA}"); e(f"v_and_b32 v{A0+1}, s97, v{GA}")
    e(ror("v_max_f32",MXX,2))
    e(f"v_lshlrev_b32 v{A0+2}, 16, v{GA+1}"); e(f"v_and_b32 v{A0+3}, s97, v{GA+1}")
    e(ror("v_max_f32",MXX,4)); nop(2)
    e(ror("v_max_f32",MXX,8))
    e(f"v_mov_b32 v{TT}, v{MXX}"); nop(2); e(f"v_permlane16_swap_b32 v{MXX}, v{TT}"); nop(1); e(f"v_max_f32 v{MXX}, v{MXX}, v{TT}")
    e(f"v_sub_f32 v{W}, v{GA+2}, v{MXX}"); e(f"v_exp_f32 v{W}, v{W}"); nop(1)
    for c in range(4): e(f"v_mul_f32 v{A0+c}, v{W}, v{A0+c}")
    regs=[W]+[A0+c for c in range(4)]
    for n in (2,4,8):
        for x in regs: e(ror("v_add_f32",x,n))
    for i,x in enumerate(regs): e(f"v_mov_b32 v{TT+i}, v{x}")
    for i,x in enumerate(regs): e(f"v_permlane16_swap_b32 v{x}, v{TT+i}")
    for i,x in enumerate(regs): e(f"v_add_f32 v{x}, v{x}, v{TT+i}")
    e(f"v_rcp_f32 v{W}, v{W}"); nop(1)
    for c in range(4): e(f"v_mul_f32 v{A0+c}, v{W}, v{A0+c}")
    for c in range(4): e(f"v_cvt_pk_bf16_f32 v{A0+c}, v{A0+c}, v{A0+c}")
    e("s_mov_b32 exec_lo, 3"); e("s_mov_b32 exec_hi, 3")
    e(f"ds_write_b128 v20, v[{A0}:{A0+3}] offset:{LDS_OX}")
    e("s_mov_b64 exec, -1")
    e("s_waitcnt lgkmcnt(0)")
    e("s_barrier")
    A0=24
    e(f"ds_read_b128 v[{A0}:{A0+3}], v21 offset:{LDS_OX}"); e(f"ds_read_b128 v[{A0+4}:{A0+7}], v21 offset:{LDS_OX+16}")
    e("s_waitcnt lgkmcnt(0)")
    DO=44
    AB=48
    for t in range(8):
        for c in range(4): e(f"v_and_b32 v{AB+4*t+c}, v{MK+c}, v{A0+t}")
    if p.h2lay==0:
        e("v_lshrrev_b32 v8, 5, v0"); e("v_mul_u32_u24 v8, 56, v8"); e("v_add_u32 v8, v8, v14"); e("v_lshlrev_b32 v8, 12, v8")
    else:
        e("v_lshrrev_b32 v8, 5, v0"); e("v_mul_u32_u24 v8, 14, v8"); e("v_lshrrev_b32 v9, 2, v14"); e("v_add_u32 v8, v8, v9"); e("v_lshlrev_b32 v8, 14, v8")
        e("v_and_b32 v9, 3, v14"); e("v_lshl_add_u32 v8, v9, 5, v8")
    for t in range(8):
        d=slot(NKV+t); c="0" if t==0 else f"v[{DO}:{DO+3}]"
        e(f"v_mfma_f32_16x16x32_bf16 v[{DO}:{DO+3}], v[{AB+4*t}:{AB+4*t+3}], v[{d}:{d+3}], {c}")
    e("v_and_b32 v9, 1, v3"); e("v_lshl_add_u32 v8, v9, 4, v8")
    e("v_cmp_gt_u32 vcc, 56, v14"); e("v_mov_b32 v9, 0x40000000")
    e("s_lshr_b32 s54, s34, 4"); e(f"s_mul_i32 s54, s54, {112*4096}"); e("v_cndmask_b32 v8, v9, v8, vcc")
    e("s_and_b32 s55, s34, 15"); e("s_lshl_b32 s98, s31, 4"); e("s_add_u32 s55, s55, s98"); e(f"s_lshl_b32 s55, s55, {5 if p.h2lay==0 else 7}")
    e("s_add_u32 s54, s54, s55"); e(f"s_add_u32 s54, s54, {H2_OFF:#x}")
    nop(2)
    tag_insert(DO,VTAG)
    e(f"buffer_store_dwordx4 v[{DO}:{DO+3}], v8, s[36:39], s54 offen sc1")
    if not p.prof: stamp(7)
    if p.prof:
        if p.dyn: e("s_mov_b32 m0, s86"); e("v_writelane_b32 v1, s84, m0")
        else: e(f"v_writelane_b32 v1, s84, {NG//2}")
        e("v_writelane_b32 v1, s70, 63")
        e(f"s_add_u32 s64, s28, 0x1800000"); e("s_addc_u32 s65, s29, 0"); e("s_lshl_b32 s54, s2, 2"); e("s_add_u32 s54, s54, s3"); e("s_lshl_b32 s54, s54, 8")
        e("v_lshlrev_b32 v8, 2, v0"); e("v_add_u32 v8, s54, v8"); e("global_store_dword v8, v1, s[64:65]")
    if p.stamps:
        e("s_cmp_lg_u32 s3, 0"); e("s_cbranch_scc1 L_end")
        write_stamps(8,0)
    e("s_endpgm")

    e("L_helper:")
    e("s_setprio 3")
    e("v_mov_b32 v8, 0"); e(f"ds_write_b32 v8, v8 offset:{LDS_FL}")
    X=16
    WQ=64
    e("v_bfe_u32 v8, v0, 3, 1"); e("v_mul_u32_u24 v4, 896, v8"); e("v_mul_u32_u24 v8, 56, v3"); e("v_add_u32 v4, v4, v8")
    e(f"v_mul_u32_u24 v5, {28*8192}, v3"); e("v_lshl_add_u32 v5, v2, 4, v5")
    e("s_and_b32 s35, s34, 3"); e("s_mul_i32 s52, s35, 224")
    e(f"s_mul_i32 s53, s35, {112*8192}"); e("s_lshl_b32 s54, s31, 10"); e("s_add_u32 s53, s53, s54")
    e("s_bfe_u32 s54, s34, 0x20002"); e("s_lshl_b32 s54, s54, 8"); e("s_add_u32 s53, s53, s54")
    e("s_cmp_ge_u32 s34, 16")
    e("s_waitcnt lgkmcnt(0)")
    e("s_cselect_b32 s40, s14, s4"); e("s_cselect_b32 s41, s15, s5"); e("s_mov_b32 s42, 1792"); e("s_mov_b32 s43, 0x20000")
    e("s_cselect_b32 s44, s20, s10"); e("s_cselect_b32 s45, s21, s11"); e(f"s_mov_b32 s46, {0 if p.nowq else 448*8192:#x}"); e("s_mov_b32 s47, 0x20000")
    e(f"buffer_load_dwordx4 v[{X}:{X+3}], v4, s[40:43], s52 offen")
    e(f"buffer_load_dwordx4 v[{X+4}:{X+7}], v4, s[40:43], s52 offen offset:16")
    e(f"buffer_load_dwordx4 v[{X+8}:{X+11}], v4, s[40:43], s52 offen offset:32")
    e(f"buffer_load_dwordx2 v[{X+12}:{X+13}], v4, s[40:43], s52 offen offset:48")
    for t in range(28):
        e(f"buffer_load_dwordx4 v[{WQ+4*t}:{WQ+4*t+3}], v5, s[44:47], s53 offen {POL(p.polw)}")
        if t<27: e("s_add_u32 s53, s53, 8192")
    XT=0
    if p.dyn:
        XT=1
        srd(36,28,29,WS_SIZE)
        e("s_lshl_b32 s54, s32, 3"); e("s_add_u32 s54, s54, s31"); e(f"s_mul_i32 s54, s54, {4*p.cst}"); e(f"s_add_u32 s54, s54, {CNT_OFF:#x}")
        e(f"v_mul_u32_u24 v8, {p.cst}, v0"); e(f"v_mov_b32 v47, {0 if p.nos else 32}")
        e("s_cmp_eq_u32 s33, 0"); e("s_cselect_b32 s55, 0, 0x40000000"); e("v_add_u32 v8, s55, v8")
        e("s_mov_b64 exec, 15")
        e("buffer_atomic_swap v47, v8, s[36:39], s54 offen sc0 sc1")
        e("s_mov_b64 exec, -1")
    def pretouch():
        n=0
        e("v_and_b32 v9, 31, v0")
        e("s_mov_b32 exec_hi, 0")
        if p.ptm&1:
            e("v_lshlrev_b32 v8, 12, v9")
            e("s_lshl_b32 s54, s31, 17"); e("s_lshl_b32 s98, s34, 7"); e("s_add_u32 s54, s54, s98"); e(f"s_add_u32 s54, s54, {H1_OFF:#x}")
            e(f"buffer_load_dword v56, v8, s[36:39], s54 offen sc1"); n+=1
        if p.ptm&2:
            e("s_mov_b32 exec_lo, 0x0fffffff")
            e("v_lshlrev_b32 v57, 14, v9")
            e("s_lshr_b32 s54, s34, 4"); e(f"s_mul_i32 s54, s54, {112*4096}")
            e("s_and_b32 s55, s34, 15"); e("s_lshl_b32 s98, s31, 4"); e("s_add_u32 s55, s55, s98"); e("s_lshl_b32 s55, s55, 7")
            e("s_add_u32 s54, s54, s55"); e(f"s_add_u32 s54, s54, {H2_OFF:#x}")
            e(f"buffer_load_dword v57, v57, s[36:39], s54 offen sc1"); n+=1
        if p.ptm&4:
            e("s_mov_b32 exec_lo, 15")
            e("v_lshlrev_b32 v58, 12, v9")
            e("s_and_b32 s54, s2, 7"); e("s_lshr_b32 s98, s2, 5"); e("s_lshl_b32 s98, s98, 3"); e("s_add_u32 s54, s54, s98")
            e("s_lshl_b32 s54, s54, 14"); e(f"s_add_u32 s54, s54, {H2_OFF:#x}")
            e(f"buffer_load_dword v58, v58, s[36:39], s54 offen sc1"); n+=1
        if p.ptm&8:
            e("s_mov_b32 exec_lo, 1")
            e("global_load_dword v59, v0, s[24:25] sc1"); n+=1
        if p.ptm&16:
            e("s_mov_b32 exec_lo, 0xff")
            e("s_cmp_ge_u32 s34, 16"); e("s_cselect_b32 s92, s22, s12"); e("s_cselect_b32 s93, s23, s13")
            e("s_and_b32 s54, s34, 15"); e("s_lshl_b32 s54, s54, 5"); e("s_lshl_b32 s63, s31, 9"); e("s_add_u32 s63, s63, s54"); e("s_mul_i32 s63, s63, 896")
            e("v_mul_u32_u24 v60, 4092, v9"); e("v_add_u32 v60, s63, v60")
            e("global_load_dword v60, v60, s[92:93] nt"); n+=1
        e("s_mov_b64 exec, -1")
        return n
    NPT=0
    if p.pt and p.pte:
        srd(36,28,29,WS_SIZE); NPT+=pretouch()
    if p.ept:
        e("s_lshl_b32 s54, s32, 3"); e("s_add_u32 s54, s54, s31"); e("s_lshl_b32 s54, s54, 22")
        e("s_lshl_b32 s55, s33, 18"); e("s_add_u32 s55, s55, s54")
        e("v_and_b32 v8, 3, v0"); e("v_lshlrev_b32 v8, 16, v8"); e("v_add_u32 v8, s55, v8")
        e(f"s_add_u32 s54, s54, {6144*512:#x}")
        if p.dyn: e("v_lshlrev_b32 v9, 16, v2")
        else: e("s_lshl_b32 s55, s33, 16"); e("v_mov_b32 v9, s55")
        e("v_add_u32 v9, s54, v9")
        e(f"s_mov_b64 exec, {0xffff if p.ept>=2 else 1:#x}")
        e("global_load_dword v48, v8, s[8:9] nt"); e("global_load_dword v49, v9, s[16:17] nt"); e("global_load_dword v50, v9, s[18:19] nt")
        NPT+=3
        if p.ept>=2: e("global_load_dword v51, v8, s[6:7] nt"); NPT+=1
        e("s_mov_b64 exec, -1")
    if p.ep2:
        e("v_lshlrev_b32 v8, 20, v0"); e("s_lshl_b32 s54, s2, 7"); e("s_add_u32 s54, s54, 0x58000"); e("v_add_u32 v8, s54, v8")
        e("s_mov_b64 exec, 7"); e("global_load_dword v52, v8, s[28:29] sc1"); NPT+=1
        e("s_mov_b64 exec, 1")
        if p.ep2>=2: e("global_load_dword v53, v0, s[24:25] sc1"); NPT+=1
        if p.ep2>=3:
            e("s_cmp_ge_u32 s34, 16"); e("s_cselect_b32 s92, s22, s12"); e("s_cselect_b32 s93, s23, s13")
            e("s_and_b32 s54, s34, 15"); e("s_lshl_b32 s54, s54, 5"); e("s_lshl_b32 s63, s31, 9"); e("s_add_u32 s63, s63, s54"); e("s_mul_i32 s63, s63, 896")
            e("v_mov_b32 v9, s63"); e("global_load_dword v54, v9, s[92:93] nt"); NPT+=1
        e("s_mov_b64 exec, -1")
    XT+=NPT
    if p.bar0: e("s_barrier")
    e("s_load_dword s30, s[28:29], 0")
    srd(36,28,29,WS_SIZE)
    emit_masks(MK)
    e("s_mov_b32 s48, 0x01000100"); e("s_mov_b32 s49, 0x03020302")
    e("v_lshrrev_b32 v8, 5, v0"); e("v_lshlrev_b32 v6, 14, v8"); e("v_lshl_add_u32 v6, v2, 5, v6"); e("v_and_b32 v9, 1, v3"); e("v_lshl_add_u32 v6, v9, 4, v6")
    e("s_lshl_b32 s50, s31, 15"); e("s_lshl_b32 s54, s34, 9"); e("s_add_u32 s50, s50, s54"); e(f"s_add_u32 s50, s50, {H0_OFF:#x}")
    e("v_lshlrev_b32 v14, 11, v8"); e("v_and_b32 v9, 31, v0"); e("v_lshl_add_u32 v14, v9, 4, v14")
    e("s_lshl_b32 s51, s31, 1"); e("s_add_u32 s51, s51, s32"); e("s_lshl_b32 s51, s51, 14"); e(f"s_add_u32 s51, s51, {H0_OFF:#x}")
    e("v_lshlrev_b32 v15, 3, v0")
    e("s_waitcnt lgkmcnt(0)")
    emit_tagconsts()
    e(f"v_mov_b32 v{VTAG}, s30")
    e(f"s_waitcnt vmcnt({28+XT})")
    stamp(1)
    DQ=32; AQ=36
    def aq(t):
        a=AQ+4*(t%2)
        e(f"v_perm_b32 v8, v{X+t//2}, v{X+t//2}, s{48+(t&1)}")
        for c in range(4): e(f"v_and_b32 v{a+c}, v{MK+c}, v8")
    aq(0)
    for t in range(28):
        if t+1<28: aq(t+1)
        else: nop(2)
        e(f"s_waitcnt vmcnt({27-t+XT})")
        a=AQ+4*(t%2); c="0" if t==0 else f"v[{DQ}:{DQ+3}]"
        e(f"v_mfma_f32_16x16x32_bf16 v[{DQ}:{DQ+3}], v[{a}:{a+3}], v[{WQ+4*t}:{WQ+4*t+3}], {c}")
    nop(8)
    if p.dyn: e(f"s_waitcnt vmcnt({NPT})")
    tag_insert(DQ,VTAG)
    e(f"buffer_store_dwordx4 v[{DQ}:{DQ+3}], v6, s[36:39], s50 offen sc1")
    stamp(2)
    e(f"s_mov_b32 s62, {p.spin}")
    if p.first_delay: e(f"s_sleep {p.first_delay}")
    for i in range(p.fd2): e("s_sleep 127")
    GQ=64; BAD=44; T0=45; T1=46
    e("s_mov_b32 s35, 0xffff")
    if p.h0p!='sc1':
        for pi in range(4):
            e(f"s_add_u32 s54, s51, {pi*4096}")
            for kq in range(4):
                r=GQ+4*(pi*4+kq)
                e(f"buffer_load_dwordx4 v[{r}:{r+3}], v14, s[36:39], s54 offen offset:{kq*512} {POL(p.h0p)}")
        e("s_branch L_h0s15")
    e("L_h0:")
    for pi in range(4):
        e(f"s_add_u32 s54, s51, {pi*4096}")
        for kq in range(4):
            k=pi*4+kq; r=GQ+4*k
            e(f"s_bitcmp0_b32 s35, {k}"); e(f"s_cbranch_scc1 L_h0s{k}")
            e(f"buffer_load_dwordx4 v[{r}:{r+3}], v14, s[36:39], s54 offen offset:{kq*512} sc1")
            e(f"L_h0s{k}:")
    e("s_waitcnt vmcnt(0)")
    e("s_mov_b32 s35, 0")
    for k in range(16):
        tag_check(GQ+4*k,VTAG,BAD,T0,T1,True)
        e(f"v_cmp_ne_u32 vcc, 0, v{BAD}"); e("s_cmp_lg_u64 vcc, 0"); e(f"s_cselect_b32 s54, {1<<k}, 0"); e("s_or_b32 s35, s35, s54")
    e("s_cbranch_scc0 L_h0_done")
    e("s_sub_u32 s62, s62, 1"); e("s_cbranch_scc1 L_h0_done")
    if p.sleep0: e(f"s_sleep {p.sleep0}")
    e("s_branch L_h0")
    e("L_h0_done:")
    stamp(3)
    for pi in range(4):
        r=GQ+16*pi
        for c in range(4):
            e(f"v_add_f32 v{r+c}, v{r+c}, v{r+4+c}"); e(f"v_add_f32 v{r+8+c}, v{r+8+c}, v{r+12+c}")
        for c in range(4): e(f"v_add_f32 v{r+c}, v{r+c}, v{r+8+c}")
        e(f"v_cvt_pk_bf16_f32 v{r}, v{r}, v{r+1}"); e(f"v_cvt_pk_bf16_f32 v{r+1}, v{r+2}, v{r+3}")
        e(f"ds_write_b64 v15, v[{r}:{r+1}] offset:{LDS_Q+pi*512}")
    e("v_mov_b32 v8, 0"); e("v_mov_b32 v9, 1")
    e("s_waitcnt lgkmcnt(0)")
    e(f"ds_write_b32 v8, v9 offset:{LDS_FL}")
    stamp(4)
    if p.pt and not p.pte:
        for i in range(p.ptd): e("s_sleep 127")
        pretouch(); e("s_waitcnt vmcnt(0)")
    e("s_cmp_ge_u32 s2, 224"); e("s_cbranch_scc1 L_hend2")
    if p.cmap:
        e("s_and_b32 s35, s2, 7"); e("s_lshr_b32 s52, s2, 5"); e("s_lshl_b32 s52, s52, 3"); e("s_add_u32 s35, s35, s52"); e("s_lshl_b32 s35, s35, 2")
        e("s_bfe_u32 s52, s2, 0x20003"); e("s_add_u32 s35, s35, s52")
    else: e("s_mov_b32 s35, s2")
    if p.h2lay==0:
        e("v_lshlrev_b32 v4, 4, v0")
        e("s_lshl_b32 s51, s35, 12"); e(f"s_add_u32 s51, s51, {H2_OFF:#x}")
    else:
        e("v_lshrrev_b32 v4, 1, v0"); e(f"v_lshlrev_b32 v4, {9 if p.lmap else 7}, v4"); e("v_and_b32 v9, 1, v0"); e("v_lshl_add_u32 v4, v9, 4, v4")
        e("s_lshr_b32 s51, s35, 2"); e("s_lshl_b32 s51, s51, 14"); e("s_and_b32 s52, s35, 3"); e("s_lshl_b32 s52, s52, 5"); e("s_add_u32 s51, s51, s52"); e(f"s_add_u32 s51, s51, {H2_OFF:#x}")
        for i in range(1,4): e(f"s_add_u32 s{44+i}, s51, {i*(128 if p.lmap else 4096)}")
    e("s_mul_i32 s52, s35, 1171"); e("s_lshr_b32 s52, s52, 16")
    e("s_mul_i32 s53, s52, 56"); e("s_sub_u32 s53, s35, s53")
    e("s_lshl_b32 s53, s53, 4")
    e("s_and_b32 s54, s52, 1"); e("s_mul_i32 s54, s54, 1792"); e("s_add_u32 s53, s53, s54")
    e("s_lshr_b32 s54, s52, 1"); e("s_mul_i32 s54, s54, 896"); e("s_add_u32 s53, s53, s54")
    srd(40,24,25,3584)
    e(f"s_mov_b32 s62, {p.spin}")
    e("s_barrier")
    stamp(9)
    if p.h2e:
        for i in range(4): e(f"buffer_load_dword v{GQ+4*i}, v4, s[36:39], s{51 if i==0 else 44+i} offen sc1")
    e("s_barrier")
    stamp(5)
    if p.d2: e(f"s_sleep {p.d2}")
    e("L_h2:")
    for i in range(4):
        if p.h2lay==0: e(f"buffer_load_dwordx4 v[{GQ+4*i}:{GQ+4*i+3}], v4, s[36:39], s51 offen offset:{i*1024} sc1")
        else: e(f"buffer_load_dwordx4 v[{GQ+4*i}:{GQ+4*i+3}], v4, s[36:39], s{51 if i==0 else 44+i} offen sc1")
    e("s_waitcnt vmcnt(0)")
    for k in range(4): tag_check(GQ+4*k,VTAG,BAD,T0,T1,k==0)
    e(f"v_cmp_ne_u32 vcc, 0, v{BAD}")
    poll_tail_masked("L_h2",p.bk2)
    stamp(6)
    for c in range(4):
        e(f"v_add_f32 v{GQ+c}, v{GQ+c}, v{GQ+4+c}"); e(f"v_add_f32 v{GQ+8+c}, v{GQ+8+c}, v{GQ+12+c}")
    for c in range(4): e(f"v_add_f32 v{GQ+c}, v{GQ+c}, v{GQ+8+c}")
    for rr in (2,4,8):
        if rr==2: nop(1)
        for c in range(4): e(f"v_add_f32_dpp v{GQ+c}, v{GQ+c}, v{GQ+c} row_ror:{rr} row_mask:0xf bank_mask:0xf")
    for sw in ("v_permlane16_swap_b32","v_permlane32_swap_b32"):
        for c in range(4): e(f"v_mov_b32 v{GQ+4+c}, v{GQ+c}")
        nop(1)
        for c in range(4): e(f"{sw} v{GQ+c}, v{GQ+4+c}")
        nop(1)
        for c in range(4): e(f"v_add_f32 v{GQ+c}, v{GQ+c}, v{GQ+4+c}")
    e(f"v_cvt_pk_bf16_f32 v{GQ}, v{GQ}, v{GQ+1}"); e(f"v_cvt_pk_bf16_f32 v{GQ+1}, v{GQ+2}, v{GQ+3}")
    e("s_mov_b64 exec, 3")
    e(f"buffer_store_dwordx2 v[{GQ}:{GQ+1}], v15, s[40:43], s53 offen")
    e("s_cmp_lg_u32 s2, 0"); e("s_cbranch_scc1 L_hend")
    e("s_mov_b64 exec, 1")
    e(f"buffer_store_dword v{VTAG}, v15, s[36:39], 0 offen sc1")
    e("L_hend:")
    if p.diag>=0:
        e("s_waitcnt lgkmcnt(0)")
        e(f"s_sub_u32 s90, s{70+2*p.diag}, s70"); e(f"s_mul_i32 s90, s90, {p.fac}"); e("s_add_u32 s90, s90, 4000")
        e("L_pad:"); e("s_memrealtime s[84:85]"); e("s_waitcnt lgkmcnt(0)"); e("s_sub_u32 s84, s84, s70")
        e(f"s_cmp_lt_u32 s84, s90"); e("s_cbranch_scc1 L_pad")
    if p.padto:
        e("L_pad:"); e("s_memrealtime s[84:85]"); e("s_waitcnt lgkmcnt(0)"); e("s_sub_u32 s84, s84, s86")
        e(f"s_cmp_lt_u32 s84, {p.padto}"); e("s_cbranch_scc1 L_pad")
    e("L_hend2:")
    stamp(7)
    write_stamps(8,8)
    e("L_end:")
    e("s_endpgm")
    body="\n".join("    "+x if not x.endswith(":") else x for x in L)
    txt = HDR + f"""; Generated by gen/gen.py (hand-designed schedule). One workgroup per CU: wave 0 = helper, waves 1-4 = streamers.
; @launch grid=(256,1,1) block=(320,1,1) lds={LDS_SIZE}
.amdgcn_target "amdgcn-amd-amdhsa--gfx950"
.text
.globl {NAME}
.p2align 8
.type {NAME},@function
{NAME}:
{body}
.section .rodata,"a"
.p2align 6
.amdhsa_kernel {NAME}
  .amdhsa_next_free_vgpr 256
  .amdhsa_next_free_sgpr 102
  .amdhsa_accum_offset 256
  .amdhsa_group_segment_fixed_size 0
  .amdhsa_kernarg_size 104
  .amdhsa_user_sgpr_count 2
  .amdhsa_user_sgpr_kernarg_segment_ptr 1
  .amdhsa_system_sgpr_workgroup_id_x 1
.end_amdhsa_kernel
"""
    return txt

if __name__=="__main__":
    p=P()
    out=sys.argv[1]
    for kv in sys.argv[2:]:
        k,v=kv.split("=")
        setattr(p,k, v if k in ("order","pol","polw","h0p") else int(v))
    open(out,"w").write(gen(p))
```

```python
import sys, math
NAME = "concat_heads__gqa_block_cached__sliding_block_cached__decode_kernel"
HDR = open("concat_heads__gqa_block_cached__sliding_block_cached__decode.s.ref").read().split("; Override launch")[0]

H0_OFF  = 0x1000
H1L_OFF = 0x60000
H1_OFF  = 0x80000
H2_OFF  = 0x200000
CNT_OFF = 0x300000
WS_SIZE = 0x400000
STAMP_OFF = 0x1000000
LDS_Q = 0; LDS_O = 2048; LDS_ST = 2048+16384; LDS_OX = LDS_ST+128; LDS_FL = LDS_OX+256; LDS_SIZE = LDS_FL+16
TAGC = 0x3B5D7F91
CEXP = math.log2(math.e)/16.0
def f2u(x):
    import struct; return struct.unpack("<I", struct.pack("<f", x))[0]

class P:
    R=39; T=7; order="AK,BK,AV,BV"; mp=0; stamps=0; spin=100000; T0=5; sleep0=1; sleep1=1; sleep2=1
    first_delay=30; fine=1; h2lay=1; TE=0; NE=0; d2=0; padto=0; bk1=2; bk2=2; kpat=1; bar0=1; TI=5; pol='nt'; polw='nt'; pt=0; ptd=0; cmap=1; lmap=1; dyn=0; NU=128; fake=0; wol=0; nowq=0; fd2=0; sat=0; sm=0; rot=0; nos=0; dw=4; tl=5; ept=0; prof=0; h0p='sc1'; ep2=0; pte=0; ptm=31; h2e=0; TH=0; cont=0; skew=0; cst=128; diag=-1; fac=4; trot=0; wrot=0; bst=0; pp1=0; pp2=0; stg=3; ntl=0; d1=0; hs=0; hl=0; ilv=0; ipos=4

def POL(x): return '' if x=='none' else x.replace('+',' ')
def gen(p):
    if p.dyn and p.bst: p.NU=64
    L=[]; e=L.append
    def nop(n):
        if n>0: e(f"s_nop {n-1}")
    nst=[0]
    def stamp(i):
        if p.stamps or p.diag>=0: e(f"s_memrealtime s[{70+2*i}:{71+2*i}]")
    def srd(r, lo, hi, size):
        e(f"s_mov_b32 s{r}, s{lo}"); e(f"s_mov_b32 s{r+1}, s{hi}"); e(f"s_mov_b32 s{r+2}, {size:#x}"); e(f"s_mov_b32 s{r+3}, 0x20000")
    def write_stamps(n, slot0):
        if not p.stamps: return
        e("s_waitcnt lgkmcnt(0)")
        e(f"s_add_u32 s64, s28, {STAMP_OFF:#x}"); e("s_addc_u32 s65, s29, 0"); e("s_mov_b32 s66, 0x100000"); e("s_mov_b32 s67, 0x20000")
        e("s_lshl_b32 s68, s2, 7"); e(f"s_add_u32 s68, s68, {slot0*8}")
        e("s_mov_b64 exec, 1"); e("v_mov_b32 v1, 0")
        for i in range(n):
            e(f"v_mov_b32 v2, s{70+2*i}"); e(f"v_mov_b32 v3, s{71+2*i}")
            e(f"buffer_store_dwordx2 v[2:3], v1, s[64:67], s68 offen offset:{i*8}"); e("s_nop 1")
    stamp(0)
    if p.padto: e("s_memrealtime s[86:87]")
    e("s_cmp_ge_u32 s2, 256"); e("s_cbranch_scc1 L_end")
    e("s_load_dwordx16 s[4:19], s[0:1], 0")
    e("s_load_dwordx8 s[20:27], s[0:1], 64")
    e("s_load_dwordx2 s[28:29], s[0:1], 96")
    e("v_lshrrev_b32 v1, 6, v0")
    e("v_and_b32 v0, 63, v0")
    e("v_readfirstlane_b32 s3, v1")
    if p.mp==1:
        e("s_and_b32 s31, s2, 7"); e("s_bfe_u32 s32, s2, 0x10003"); e("s_lshr_b32 s33, s2, 4")
    elif p.mp==2:
        e("s_bfe_u32 s31, s2, 0x20001"); e("s_bfe_u32 s32, s2, 0x10006"); e("s_lshl_b32 s32, s32, 2"); e("s_or_b32 s31, s31, s32")
        e("s_bfe_u32 s33, s2, 0x30003"); e("s_lshl_b32 s33, s33, 1"); e("s_and_b32 s32, s2, 1"); e("s_or_b32 s33, s33, s32"); e("s_lshr_b32 s32, s2, 7")
    elif p.mp==3:
        e("s_bfe_u32 s31, s2, 0x10002"); e("s_bfe_u32 s32, s2, 0x20005"); e("s_lshl_b32 s32, s32, 1"); e("s_or_b32 s31, s31, s32")
        e("s_bfe_u32 s33, s2, 0x20003"); e("s_lshl_b32 s33, s33, 2"); e("s_and_b32 s32, s2, 3"); e("s_or_b32 s33, s33, s32"); e("s_lshr_b32 s32, s2, 7")
    else:
        e("s_bfe_u32 s31, s2, 0x30004"); e("s_lshr_b32 s32, s2, 7"); e("s_and_b32 s33, s2, 15")
    e("s_lshl_b32 s34, s32, 4"); e("s_add_u32 s34, s34, s33")
    e("v_and_b32 v2, 15, v0"); e("v_lshrrev_b32 v3, 4, v0")
    e("s_cmp_eq_u32 s3, 0"); e("s_cbranch_scc1 L_helper")

    def emit_masks(base):
        e("v_and_b32 v8, 1, v0"); e("v_lshlrev_b32 v8, 4, v8"); e("v_mov_b32 v9, 0xffff"); e("v_lshlrev_b32 v9, v8, v9")
        e("v_bfe_u32 v8, v0, 1, 2")
        for r in range(4):
            e(f"v_cmp_eq_u32 vcc, {r}, v8"); nop(2); e(f"v_cndmask_b32 v{base+r}, 0, v9, vcc")
    def emit_tagconsts():
        e(f"s_add_u32 s30, s30, {TAGC:#x}")
        for i in range(4): e(f"s_mov_b32 s{56+i}, {0x07060500+i:#x}")
        e("s_mov_b32 s60, 0x0c0c0400"); e("s_mov_b32 s61, 0x04000c0c")
    def tag_insert(r, vtag):
        for i in range(4): e(f"v_perm_b32 v{r+i}, v{r+i}, v{vtag}, s{56+i}")
    def tag_check(r, vtag, vbad, t0, t1, first):
        e(f"v_perm_b32 v{t0}, v{r+1}, v{r}, s60"); e(f"v_perm_b32 v{t1}, v{r+3}, v{r+2}, s61")
        if first: e(f"v_bitop3_b32 v{vbad}, v{t0}, v{t1}, v{vtag} bitop3:0x56")
        else:
            e(f"v_bitop3_b32 v{t0}, v{t0}, v{t1}, v{vtag} bitop3:0x56"); e(f"v_or_b32 v{vbad}, v{vbad}, v{t0}")
    def poll_tail(lbl, vbad, slp):
        e(f"v_cmp_ne_u32 vcc, 0, v{vbad}")
        e(f"s_cbranch_vccz {lbl}_done")
        e("s_sub_u32 s62, s62, 1"); e(f"s_cbranch_scc1 {lbl}_done")
        if slp: e(f"s_sleep {slp}")
        e(f"s_branch {lbl}")
        e(f"{lbl}_done:")
    def poll_tail_masked(lbl, bk):
        e("s_and_b64 exec, exec, vcc")
        e(f"s_cbranch_scc0 {lbl}_done")
        e("s_sub_u32 s62, s62, 1"); e(f"s_cbranch_scc1 {lbl}_done")
        e("s_bcnt1_i32_b64 s99, exec"); e(f"s_lshr_b32 s99, s99, {bk}")
        e(f"{lbl}_slp:")
        e("s_sub_u32 s99, s99, 1"); e(f"s_cbranch_scc1 {lbl}")
        e("s_sleep 1"); e(f"s_branch {lbl}_slp")
        e(f"{lbl}_done:")
        e("s_mov_b64 exec, -1")
    def poll_piped(lbl, nset, nld, issue_set, check_set, take_set, bk):
        for j in range(nset):
            issue_set(j)
            if j+1<nset and p.stg: e(f"s_sleep {p.stg}")
        e(f"{lbl}:")
        for j in range(nset):
            e(f"s_waitcnt vmcnt({(nset-1)*nld})")
            check_set(j)
            e("s_andn2_b64 s[64:65], exec, vcc")
            e("s_mov_b64 exec, vcc"); take_set(j); e("s_mov_b64 exec, s[64:65]")
            e(f"s_cbranch_scc0 {lbl}_done")
            e("s_sub_u32 s62, s62, 1"); e(f"s_cbranch_scc1 {lbl}_done")
            e("s_bcnt1_i32_b64 s99, exec"); e(f"s_lshr_b32 s99, s99, {bk}")
            e(f"{lbl}_slp{j}:")
            e("s_sub_u32 s99, s99, 1"); e(f"s_cbranch_scc1 {lbl}_go{j}")
            e("s_sleep 1"); e(f"s_branch {lbl}_slp{j}")
            e(f"{lbl}_go{j}:")
            issue_set(j)
        e(f"s_branch {lbl}")
        e(f"{lbl}_done:")
        e("s_mov_b64 exec, -1")
    def allred_rows(op, x, t):
        e(f"v_mov_b32 v{t}, v{x}"); nop(2); e(f"v_permlane16_swap_b32 v{x}, v{t}"); nop(1); e(f"{op} v{x}, v{x}, v{t}")
        e(f"v_mov_b32 v{t}, v{x}"); nop(2); e(f"v_permlane32_swap_b32 v{x}, v{t}"); nop(1); e(f"{op} v{x}, v{x}, v{t}")

    VK,VV,VW=4,5,6; VTAG=7; MK=10
    Q=14
    Q=16
    S=32
    DT=52
    AO=68
    ACC=76
    MX=92
    LS=94
    TM=96
    RING=100
    R=p.R; assert RING+4*R<=256
    e("s_sub_u32 s3, s3, 1")
    e("v_lshrrev_b32 v8, 2, v2"); e(f"v_lshlrev_b32 v{VK}, 11, v8"); e(f"v_lshl_add_u32 v{VK}, v3, 6, v{VK}")
    e("v_and_b32 v8, 3, v0"); e(f"v_lshl_add_u32 v{VK}, v8, 4, v{VK}")
    e(f"v_lshlrev_b32 v{VV}, 11, v3"); e(f"v_lshl_add_u32 v{VV}, v2, 4, v{VV}")
    e("s_lshl_b32 s35, s32, 3"); e("s_add_u32 s35, s35, s31"); e("s_lshl_b32 s35, s35, 22")
    if p.wrot:
        e(f"s_lshr_b32 s54, s2, {p.wrot-1}"); e("s_add_u32 s54, s54, s3"); e("s_and_b32 s54, s54, 3"); e("s_lshl_b32 s54, s54, 13")
    else: e("s_lshl_b32 s54, s3, 13")
    e("s_add_u32 s35, s35, s54")
    if p.trot: e(f"s_lshr_b32 s87, s2, {p.trot-1}"); e("s_lshl_b32 s87, s87, 15")
    e("s_lshl_b32 s52, s33, 18"); e("s_add_u32 s52, s52, s35")
    e(f"s_lshl_b32 s53, s33, {15 if (p.dyn and p.bst) else 16}"); e("s_add_u32 s53, s53, s35"); e(f"s_add_u32 s53, s53, {6144*512:#x}")
    e("s_waitcnt lgkmcnt(0)")
    SRD={"AK":40,"AV":44,"BK":48,"BV":36}
    SRD={"AK":40,"AV":44,"BK":48,"BV":88}
    order=("AK,AV" if (p.dyn and not p.bst) else p.order).split(",")
    ptr={"AK":6,"AV":8,"BK":16,"BV":18}
    srd(SRD[order[0]], ptr[order[0]], ptr[order[0]]+1, 0x4000000)
    loads=[]
    for ph in order:
        br=0 if ph[0]=="A" else 1
        nt=8 if br==0 else (1 if (p.dyn and p.bst) else 2)
        for t in range(nt):
            for r in range(4):
                for hf in range(2): loads.append((ph,br,t,r,hf))
    if p.ilv:
        u=8 if p.ilv==1 else 4
        nl=[]
        for kv in "KV":
            a=[x for x in loads if x[0]=="A"+kv]; b=[x for x in loads if x[0]=="B"+kv]
            nb=len(b)//u; per=len(a)//u//nb
            for j in range(nb):
                seg=a[j*per*u:(j+1)*per*u]; k=min(p.ipos,per)*u
                nl+=seg[:k]+b[j*u:(j+1)*u]+seg[k:]
        loads=nl
    NKV=len(loads)
    if not(p.dyn and p.wol):
        for t in range(8): loads.append(("WO",0,t,0,0))
    VK2,VV2,TK=50,51,56
    if p.dyn:
        for un in range(2):
            for k in range(4): loads.append(("DU",1,un,k,0))
            if not p.sat: loads.append(("TK",1,un+2,0,0))
    N=len(loads)
    st={"issued":0,"cur":None}
    def slot(i): return RING+4*(i%R)
    def ubuf(j): return slot(NKV+8+4*(j%3))
    if p.dyn: assert all((NKV+8+4*j)%R+4<=R for j in range(3))
    def unit_load(j,k,so):
        d=ubuf(j)+4*k; ph="BK" if k<2 else "BV"
        e(f"buffer_load_dwordx4 v[{d}:{d+3}], v{VK2 if k<2 else VV2}, s[{SRD[ph]}:{SRD[ph]+3}], s{so} offen offset:{(k&1)*256} {POL(p.pol)}")
    def unit_addr(src):
        sh=11 if p.cont else 13
        if p.rot==0: e(f"s_lshl_b32 s54, s{src}, {sh}")
        else:
            if p.rot==1: e(f"s_add_u32 s54, s{src}, s35")
            elif p.rot==2: e(f"s_mul_i32 s54, s{src}, 37")
            else: e(f"s_mul_i32 s54, s{src}, 37"); e("s_add_u32 s54, s54, s35")
            e(f"s_and_b32 s54, s54, {p.NU-1}"); e(f"s_lshl_b32 s54, s54, {sh}")
        e("s_add_u32 s55, s54, s4")
    def ticket(j):
        e("s_mov_b64 exec, 1"); e(f"v_mov_b32 v{TK+j%3}, 1")
        if p.fake==1: e(f"buffer_load_dword v{TK+j%3}, off, s[36:39], s69 sc1")
        elif p.fake==2: e(f"buffer_load_dword v{TK+j%3}, off, s[36:39], s69")
        else: e(f"buffer_atomic_add v{TK+j%3}, off, s[36:39], s69 sc0 sc1")
        e("s_mov_b64 exec, -1")
    def issue(throttle=None):
        i=st["issued"]
        if i>=N: return
        ph,br,t,r,hf=loads[i]
        if throttle is not None and i>=throttle: e(f"s_waitcnt vmcnt({throttle-1})")
        if p.prof==2 and i%4==0 and i<=NKV:
            if i==0: e("v_mov_b32 v1, 0")
            else: e("s_waitcnt lgkmcnt(0)"); e(f"v_writelane_b32 v1, s84, {i//4-1}")
            e("s_memrealtime s[84:85]")
        if p.dyn and p.nos and i==N-8-p.tl:
            e("s_add_u32 s64, s28, s69"); e("s_addc_u32 s65, s29, 0"); e("s_mov_b32 s66, 1"); e("s_atomic_add s66, s[64:65], 0 glc")
        d=slot(i)
        if ph=="WO":
            key=("WO",t//4)
            if st["cur"]!=key:
                e(f"s_add_u32 s55, s63, {(t//4)*4*896}"); st["cur"]=key
            e(f"buffer_load_dwordx4 v[{d}:{d+3}], v{VW}, s[92:95], s55 offen offset:{(t%4)*896} {POL(p.polw)}")
        elif ph=="DU":
            key=("DU",t)
            if st["cur"]!=key:
                if p.nos:
                    e("s_waitcnt lgkmcnt(0)")
                    e(f"s_cmp_ge_u32 s66, {p.NU}"); e(f"s_cselect_b32 s{67+t}, 1, 0")
                    e(f"s_cselect_b32 s{SRD['BK']+2}, 0, 0x4000000"); e(f"s_cselect_b32 s{SRD['BV']+2}, 0, 0x4000000")
                    e("s_cselect_b32 s55, 0, s66"); e(f"s_cbranch_scc1 L_nodraw{t}")
                    e("s_mov_b32 s66, 1"); e("s_atomic_add s66, s[64:65], 0 glc")
                    e(f"L_nodraw{t}:")
                    unit_addr(55)
                else:
                    e(f"s_add_u32 s55, s33, {16*t}"); unit_addr(55)
                st["cur"]=key
            if p.skew:
                if r==2 and t==0: e(f"s_mov_b32 s{SRD['BV']+2}, 0")
                unit_load(t,r,55 if (r<2 or t==0) else 87)
                if r==3:
                    e("s_mov_b32 s87, s55")
                    if t==0: e(f"s_mov_b32 s{SRD['BV']+2}, 0x4000000")
            else: unit_load(t,r,55)
        elif ph=="TK":
            ticket(t)
        else:
            key=(br,t)
            if st["cur"]!=key:
                if p.trot and br==0:
                    e(f"s_add_u32 s55, s87, {t*32768}"); e(f"s_and_b32 s55, s55, {7*32768:#x}"); e("s_add_u32 s55, s55, s52")
                else: e(f"s_add_u32 s55, s{52+br}, {t*32768}")
                st["cur"]=key
            vo=VK if (ph[1]=="K" and p.kpat) else VV
            e(f"buffer_load_dwordx4 v[{d}:{d+3}], v{vo}, s[{SRD[ph]}:{SRD[ph]+3}], s55 offen offset:{r*512+hf*256} {POL(p.pol)}")
        st["issued"]+=1
    if p.bar0: e("s_barrier")
    for i in range(p.T0): issue()
    e("s_load_dword s30, s[28:29], 0")
    for ph in ("AK","AV","BK","BV"):
        if ph!=order[0]: srd(SRD[ph], ptr[ph], ptr[ph]+1, 0x4000000)
    srd(36,28,29,WS_SIZE)
    if p.dyn:
        e("s_lshl_b32 s54, s32, 3"); e("s_add_u32 s54, s54, s31"); e("s_lshl_b32 s4, s54, 22"); e(f"s_lshl_b32 s35, s54, {2 if p.bst else 3}")
        e(f"s_lshl_b32 s69, s3, {18 if p.cont else 11}"); e("s_add_u32 s4, s4, s69"); e(f"s_add_u32 s4, s4, {(6144+(1024 if p.bst else 0))*512:#x}")
        e("s_lshl_b32 s54, s54, 2"); e("s_add_u32 s54, s54, s3"); e(f"s_mul_i32 s69, s54, {p.cst}"); e(f"s_add_u32 s69, s69, {CNT_OFF:#x}")
        e("v_lshrrev_b32 v8, 2, v2"); e(f"v_lshlrev_b32 v{VK2}, 9, v8"); e(f"v_lshl_add_u32 v{VK2}, v3, 6, v{VK2}")
        e("v_and_b32 v8, 3, v0"); e(f"v_lshl_add_u32 v{VK2}, v8, 4, v{VK2}")
        e(f"v_lshlrev_b32 v{VV2}, 9, v3"); e(f"v_lshl_add_u32 v{VV2}, v2, 4, v{VV2}")
        for c in range(8): e(f"v_mov_b32 v{ACC+8+c}, 0")
        e("s_mov_b32 s100, 0xff00ff00"); e("s_mov_b32 s101, 0x00ff00ff")
    e("s_cmp_ge_u32 s34, 16"); e("s_cselect_b32 s92, s22, s12"); e("s_cselect_b32 s93, s23, s13")
    e(f"s_mov_b32 s94, {4096*896:#x}"); e("s_mov_b32 s95, 0x20000")
    e("s_and_b32 s54, s34, 15"); e("s_lshl_b32 s54, s54, 5"); e("s_lshl_b32 s63, s31, 9"); e("s_add_u32 s63, s63, s54"); e("s_mul_i32 s63, s63, 896")
    e(f"v_mul_u32_u24 v{VW}, {8*896}, v3"); e(f"v_lshl_add_u32 v{VW}, v2, 4, v{VW}")
    e("s_lshl_b32 s54, s3, 8"); e(f"v_add_u32 v{VW}, s54, v{VW}")
    e("s_lshl_b32 s54, s3, 4"); e("v_add_u32 v8, s54, v2")
    e("v_mov_b32 v14, v8")
    e("v_cmp_gt_u32 vcc, 56, v8"); e("v_mov_b32 v9, 0x40000000"); nop(1); e(f"v_cndmask_b32 v{VW}, v9, v{VW}, vcc")
    emit_masks(MK)
    e("v_bfe_u32 v8, v0, 3, 1"); e("v_lshlrev_b32 v15, 9, v8"); e("v_lshl_add_u32 v15, v3, 6, v15")
    e("v_and_b32 v8, 3, v0"); e("v_lshl_add_u32 v15, v8, 4, v15")
    for br in range(2):
        e(f"v_mov_b32 v{MX+br}, {0xf149f2ca if (br==1 and p.dyn and not p.bst) else 0xff800000:#x}"); e(f"v_mov_b32 v{LS+br}, 0")
    e(f"s_mov_b32 s96, {f2u(CEXP):#x}"); e("s_mov_b32 s97, 0xffff0000")
    while st["issued"]<R: issue(p.TI)
    e("s_waitcnt lgkmcnt(0)")
    emit_tagconsts()
    e(f"v_mov_b32 v{VTAG}, s30")
    if not p.dyn: stamp(1)
    e("v_mov_b32 v8, 0"); e(f"s_mov_b32 s62, {p.spin*16}")
    e("L_qw:")
    e(f"ds_read_b32 v9, v8 offset:{LDS_FL}"); e("s_waitcnt lgkmcnt(0)")
    e("v_cmp_ne_u32 vcc, 0, v9"); e("s_cbranch_vccnz L_qw_done")
    e("s_sub_u32 s62, s62, 1"); e("s_cbranch_scc1 L_qw_done")
    e("s_sleep 1"); e("s_branch L_qw")
    e("L_qw_done:")
    if not p.dyn: stamp(2)
    for br in range(2):
        for hf in range(2):
            q=Q+br*8+hf*4
            e(f"ds_read_b128 v[{q}:{q+3}], v15 offset:{LDS_Q+br*1024+hf*256}")
    e("s_waitcnt lgkmcnt(0)")
    if p.prof==1: e("v_mov_b32 v1, 0"); e("s_memrealtime s[84:85]")
    groups=[loads[i] for i in range(0,NKV,2)]
    NG=len(groups)
    def sreg(br,t,r): return S+(0 if br==0 else 16)+t*2+(r>>1)
    lastm={}
    def need(dist, idx):
        n=dist-(len(L)-idx-1)
        if n>0: nop(n)
    def k_post(gi):
        ph,br,t,r,_=groups[gi]; d0=DT+4*((gi-1)%4); d1=DT+4*(gi%4)
        def qp(c): return f"quad_perm:[{c},{c},{c},{c}] row_mask:0xf bank_mask:0xf"
        need(8,lastm[gi-1])
        e(f"v_mov_b32_dpp v{TM}, v{d0} {qp(0)}"); e(f"v_mov_b32_dpp v{TM+1}, v{d0+2} {qp(2)}")
        need(8,lastm[gi])
        e(f"v_mov_b32_dpp v{TM+2}, v{d1} {qp(0)}"); e(f"v_mov_b32_dpp v{TM+3}, v{d1+2} {qp(2)}")
        e(f"v_add_f32_dpp v{TM}, v{d0+1}, v{TM} {qp(1)}"); e(f"v_add_f32_dpp v{TM+1}, v{d0+3}, v{TM+1} {qp(3)}")
        e(f"v_add_f32_dpp v{TM+2}, v{d1+1}, v{TM+2} {qp(1)}"); e(f"v_add_f32_dpp v{TM+3}, v{d1+3}, v{TM+3} {qp(3)}")
        e(f"v_add_f32 v{TM}, v{TM}, v{TM+1}"); e(f"v_add_f32 v{TM+2}, v{TM+2}, v{TM+3}")
        s=sreg(br,t,r)
        e(f"v_cvt_pk_bf16_f32 v{s}, v{TM}, v{TM+2}")
        e(f"v_lshlrev_b32 v{TM}, 16, v{s}"); e(f"v_and_b32 v{TM+1}, s97, v{s}")
        e(f"v_max3_f32 v{MX+br}, v{TM}, v{TM+1}, v{MX+br}")
    def v_pre(gi):
        ph,br,t,r,_=groups[gi]; s=sreg(br,t,r); a=AO+4*(gi%2)
        if r&1: e(f"v_and_b32 v{TM}, s97, v{s}")
        else: e(f"v_lshlrev_b32 v{TM}, 16, v{s}")
        e(f"v_fma_f32 v{TM}, v{TM}, s96, -v{MX+br}")
        e(f"v_exp_f32 v{TM}, v{TM}"); nop(1)
        e(f"v_cvt_pk_bf16_f32 v{TM+1}, v{TM}, v{TM}")
        for c in range(4): e(f"v_and_b32 v{a+c}, v{MK+c}, v{TM+1}")
        e(f"v_add_f32 v{LS+br}, v{LS+br}, v{TM}")
    def fin_max(br):
        allred_rows("v_max_f32", MX+br, TM)
        e(f"v_mul_f32 v{MX+br}, s96, v{MX+br}")
    def fin_branch(br):
        allred_rows("v_add_f32", LS+br, TM)
        e(f"v_lshrrev_b32 v{TM}, 5, v0"); e(f"v_lshlrev_b32 v{TM}, 10, v{TM}"); e(f"v_lshl_add_u32 v{TM}, v2, 5, v{TM}")
        e(f"v_and_b32 v{TM+1}, 1, v3"); e(f"v_lshl_add_u32 v{TM}, v{TM+1}, 4, v{TM}")
        e("s_lshl_b32 s54, s3, 12"); e(f"v_add_u32 v{TM}, s54, v{TM}")
        for hf in range(2):
            a=ACC+br*8+hf*4
            e(f"ds_write_b128 v{TM}, v[{a}:{a+3}] offset:{LDS_O+br*2048+hf*512}")
        e(f"v_bfe_u32 v{TM}, v0, 3, 1"); e(f"v_lshlrev_b32 v{TM}, 5, v{TM}"); e("s_lshl_b32 s54, s3, 3"); e(f"v_add_u32 v{TM}, s54, v{TM}")
        e(f"v_mov_b32 v{TM+2}, v{MX+br}"); e(f"v_mov_b32 v{TM+3}, v{LS+br}")
        e(f"ds_write_b64 v{TM}, v[{TM+2}:{TM+3}] offset:{LDS_ST+br*64}")
    PA=59
    def precompute_tail():
        e(f"v_lshrrev_b32 v8, 5, v0"); e(f"v_lshlrev_b32 v{PA}, 10, v8"); e(f"v_lshl_add_u32 v{PA}, v2, 5, v{PA}")
        e(f"v_and_b32 v9, 1, v3"); e(f"v_lshl_add_u32 v{PA}, v9, 4, v{PA}"); e("s_lshl_b32 s54, s3, 12"); e(f"v_add_u32 v{PA}, s54, v{PA}")
        e(f"v_mul_u32_u24 v{PA+8}, 14, v8"); e(f"v_lshrrev_b32 v{PA+1}, 2, v14"); e(f"v_add_u32 v{PA+8}, v{PA+8}, v{PA+1}"); e(f"v_lshlrev_b32 v{PA+8}, 14, v{PA+8}")
        e(f"v_lshl_add_u32 v{PA+8}, v9, 4, v{PA+8}"); e("v_and_b32 v9, 3, v14"); e(f"v_lshl_add_u32 v{PA+8}, v9, 5, v{PA+8}")
        e("v_cmp_gt_u32 vcc, 56, v14"); e("v_mov_b32 v9, 0x40000000")
        e("s_lshr_b32 s11, s34, 4"); e(f"s_mul_i32 s11, s11, {112*4096}"); e(f"v_cndmask_b32 v{PA+8}, v9, v{PA+8}, vcc")
        e("s_and_b32 s54, s34, 15"); e("s_lshl_b32 s5, s31, 4"); e("s_add_u32 s54, s54, s5"); e("s_lshl_b32 s54, s54, 7")
        e("s_add_u32 s11, s11, s54"); e(f"s_add_u32 s11, s11, {H2_OFF:#x}")
        e("s_lshl_b32 s54, s3, 5")
        e(f"v_lshlrev_b32 v{PA+6}, 7, v8"); e("v_and_b32 v9, 1, v0"); e(f"v_lshl_add_u32 v{PA+6}, v9, 4, v{PA+6}"); e(f"v_add_u32 v{PA+6}, s54, v{PA+6}")
        e(f"v_mov_b32 v{PA+3}, s54")
        e("v_lshrrev_b32 v8, 1, v0"); e(f"v_lshlrev_b32 v{PA+5}, 7, v8"); e(f"v_lshl_add_u32 v{PA+5}, v9, 4, v{PA+5}")
        e("s_lshl_b32 s10, s31, 5"); e("s_add_u32 s10, s10, s34"); e("s_lshl_b32 s10, s10, 12"); e(f"s_add_u32 s10, s10, {H1_OFF:#x}"); e("s_add_u32 s10, s10, s54")
        e("v_bfe_u32 v8, v0, 3, 1"); e(f"v_lshlrev_b32 v{PA+7}, 7, v8"); e(f"v_lshl_add_u32 v{PA+7}, v3, 5, v{PA+7}")
        e(f"v_lshlrev_b32 v{PA+1}, 5, v8"); e("s_lshl_b32 s54, s3, 3"); e(f"v_add_u32 v{PA+1}, s54, v{PA+1}")
        e(f"v_lshlrev_b32 v{PA+2}, 4, v0"); e("s_lshl_b32 s54, s3, 10"); e(f"v_add_u32 v{PA+2}, s54, v{PA+2}")
        e("v_lshrrev_b32 v8, 3, v0"); e(f"v_lshlrev_b32 v{PA+4}, 12, v8"); e("v_and_b32 v9, 7, v0"); e(f"v_lshl_add_u32 v{PA+4}, v9, 4, v{PA+4}")
        e("s_lshl_b32 s54, s31, 2"); e("s_add_u32 s54, s54, s3"); e("s_lshl_b32 s5, s54, 15"); e("s_lshl_b32 s54, s34, 7"); e("s_add_u32 s5, s5, s54"); e(f"s_add_u32 s5, s5, {H1_OFF:#x}")
    def fin_stats(br):
        allred_rows("v_add_f32", LS+br, TM)
        e(f"v_mov_b32 v{TM+2}, v{MX+br}"); e(f"v_mov_b32 v{TM+3}, v{LS+br}")
        e(f"ds_write_b64 v{PA+1}, v[{TM+2}:{TM+3}] offset:{LDS_ST+br*64}")
    def fin_acc(br):
        for hf in range(2):
            a=ACC+br*8+hf*4
            e(f"ds_write_b128 v{PA}, v[{a}:{a+3}] offset:{LDS_O+br*2048+hf*512}")
    statdone=set()
    if p.ntl:
        assert p.h2lay==1 and (p.sat or not p.dyn)
        def fin_branch(br):
            if br not in statdone: fin_stats(br)
            else: nop(7)
            fin_acc(br)
    lastK=max(i for i in range(NG) if groups[i][0][1]=="K")
    pend_k=[]
    maxdone=set(); predone=set(); pend_fin=[]
    def flush_k(keep):
        while len(pend_k)>keep: k_post(pend_k.pop(0))
    for gi in range(NG):
        ph,br,t,r,_=groups[gi]
        i0=2*gi
        if ph[1]=="V" and gi not in predone:
            if br not in maxdone:
                if any(groups[x][1]==br for x in pend_k):
                    flush_k(0)
                fin_max(br); maxdone.add(br)
            v_pre(gi); predone.add(gi); nop(2)
        for hf in range(2):
            i=i0+hf
            e(f"s_waitcnt vmcnt({st['issued']-i-1})")
            d=slot(i)
            if ph[1]=="K":
                D=DT+4*(gi%4); q=Q+br*8+hf*4
                c="0" if hf==0 else f"v[{D}:{D+3}]"
                e(f"v_mfma_f32_16x16x32_bf16 v[{D}:{D+3}], v[{d}:{d+3}], v[{q}:{q+3}], {c}")
            else:
                a=AO+4*(gi%2); D=ACC+br*8+hf*4
                c="0" if (t==0 and r==0) else f"v[{D}:{D+3}]"
                e(f"v_mfma_f32_16x16x32_bf16 v[{D}:{D+3}], v[{a}:{a+3}], v[{d}:{d+3}], {c}")
            lastm[gi]=len(L)-1
            Tc = p.TE if (p.TE and i>=NKV-p.NE) else p.T
            if p.fine and hf==0:
                while st["issued"]-(i+1)<Tc and st["issued"]<N: issue()
        consumed=i0+2
        if p.prof==1 and (gi+1)%2==0:
            k=(gi+1)//2
            e("s_waitcnt lgkmcnt(0)"); e(f"v_writelane_b32 v1, s84, {k-1}"); e("s_memrealtime s[84:85]")
        lag=st["issued"]-consumed
        if lag>=Tc: issue(Tc)
        else:
            while st["issued"]-consumed<Tc and st["issued"]<N: issue()
        flush_k(0)
        if ph[1]=="K" and (r&1): pend_k.append(gi)
        if pend_fin and pend_fin[0][1]<gi:
            fin_branch(pend_fin.pop(0)[0])
        if ph[1]=="V" and not any(g[0]==ph for g in groups[gi+1:]) and not (p.dyn and br==1): pend_fin.append((br,gi))
        if gi+1<NG:
            nph,nbr,_,_,_=groups[gi+1]
            if nph[1]=="V" and (nbr in maxdone or not any(groups[x][1]==nbr for x in pend_k)):
                if nbr not in maxdone: fin_max(nbr); maxdone.add(nbr)
                v_pre(gi+1); predone.add(gi+1)
                if p.ntl and gi+2==NG and not (p.dyn and nbr==1): fin_stats(nbr); statdone.add(nbr)
        if p.ntl and gi==lastK+2: precompute_tail()
    while st["issued"]<N: issue()
    if p.dyn:
        stamp(1)
        if p.sat and not p.nos:
            e("s_add_u32 s64, s28, s69"); e("s_addc_u32 s65, s29, 0"); e("s_mov_b32 s66, 1"); e("s_atomic_add s66, s[64:65], 0 glc")
        nop(4)
        while pend_fin: fin_branch(pend_fin.pop(0)[0])
        def process(j,lbl):
            b0=ubuf(j); D=DT; q=Q+8; a=AO
            def qp(c): return f"quad_perm:[{c},{c},{c},{c}] row_mask:0xf bank_mask:0xf"
            def pv():
                for hf in range(2):
                    A=ACC+8+4*hf
                    e(f"v_mfma_f32_16x16x32_bf16 v[{A}:{A+3}], v[{a}:{a+3}], v[{b0+8+4*hf}:{b0+11+4*hf}], v[{A}:{A+3}]")
            if p.skew:
                pv(); e("s_cmp_eq_u32 s68, 3"); e("s_cbranch_scc1 L_dyn_done")
            e(f"v_mfma_f32_16x16x32_bf16 v[{D}:{D+3}], v[{b0}:{b0+3}], v[{q}:{q+3}], 0")
            e(f"v_mfma_f32_16x16x32_bf16 v[{D}:{D+3}], v[{b0+4}:{b0+7}], v[{q+4}:{q+7}], v[{D}:{D+3}]")
            nop(8)
            e(f"v_mov_b32_dpp v{TM}, v{D} {qp(0)}"); e(f"v_mov_b32_dpp v{TM+1}, v{D+2} {qp(2)}")
            e(f"v_add_f32_dpp v{TM}, v{D+1}, v{TM} {qp(1)}"); e(f"v_add_f32_dpp v{TM+1}, v{D+3}, v{TM+1} {qp(3)}")
            e(f"v_add_f32 v{TM}, v{TM}, v{TM+1}")
            e(f"v_cvt_pk_bf16_f32 v{TM}, v{TM}, v{TM}"); e(f"v_and_b32 v{TM}, s97, v{TM}")
            e(f"v_mul_f32 v{TM+1}, s96, v{TM}")
            allred_rows("v_max_f32", TM+1, TM+2)
            e(f"v_cmp_gt_f32 vcc, v{TM+1}, v{MX+1}"); e(f"s_cbranch_vccz {lbl}_keep")
            e(f"v_max_f32 v{TM+1}, v{TM+1}, v{MX+1}"); e(f"v_sub_f32 v{TM+2}, v{MX+1}, v{TM+1}"); e(f"v_exp_f32 v{TM+2}, v{TM+2}")
            e(f"v_mov_b32 v{MX+1}, v{TM+1}"); nop(1)
            e(f"v_mul_f32 v{LS+1}, v{LS+1}, v{TM+2}")
            e(f"v_mov_b32_dpp v{TM+3}, v{TM+2} row_ror:8 row_mask:0xf bank_mask:0xf")
            e(f"v_cndmask_b32 v{TM+2}, v{TM+2}, v{TM+3}, s[100:101]")
            for c in range(8): e(f"v_mul_f32 v{ACC+8+c}, v{ACC+8+c}, v{TM+2}")
            e(f"{lbl}_keep:")
            e(f"v_fma_f32 v{TM}, v{TM}, s96, -v{MX+1}")
            e(f"v_exp_f32 v{TM}, v{TM}"); nop(1)
            e(f"v_cvt_pk_bf16_f32 v{TM+1}, v{TM}, v{TM}")
            for c in range(4): e(f"v_and_b32 v{a+c}, v{MK+c}, v{TM+1}")
            e(f"v_add_f32 v{LS+1}, v{LS+1}, v{TM}"); nop(1)
            if not p.skew: pv()
        if p.nos: e("s_cmp_lg_u32 s67, 0"); e("s_cbranch_scc1 L_dyn_done")
        else: e("s_mov_b32 s68, 0")
        if p.fake: e("s_add_u32 s67, s33, 16")
        if p.TH: e("s_mov_b32 s67, 0"); e("s_mov_b32 s98, 1")
        if p.prof==1: e(f"s_mov_b32 s86, {NG//2}"); e("s_waitcnt lgkmcnt(0)")
        e("L_dyn:")
        for i in ((1,2,3) if not p.sat else ()):
            e("s_cmp_eq_u32 s68, 0"); e(f"s_cbranch_scc1 L_dy{i}_draw")
            stamp(2)
            e("s_mov_b32 s68, 2"); e(f"s_waitcnt vmcnt({9 if p.wol==1 else 1})"); e(f"s_branch L_dy{i}_proc")
            if p.wol==1:
                e(f"L_dy{i}_empty:")
                for t in range(8):
                    if t%4==0: e(f"s_add_u32 s55, s63, {(t//4)*4*896}")
                    d=slot(NKV+t)
                    e(f"buffer_load_dwordx4 v[{d}:{d+3}], v{VW}, s[92:95], s55 offen offset:{(t%4)*896} {POL(p.polw)}")
                e(f"s_branch L_dy{i}_proc")
            e(f"L_dy{i}_draw:")
            e("s_waitcnt vmcnt(5)")
            e(f"v_readfirstlane_b32 s54, v{TK+(i+1)%3}")
            if p.fake: e("s_add_u32 s67, s67, 16"); e("s_mov_b32 s54, s67")
            e(f"s_cmp_ge_u32 s54, {p.NU}"); e("s_cselect_b32 s68, 1, 0"); e(f"s_cbranch_scc1 L_dy{i}_{'empty' if p.wol==1 else 'proc'}")
            unit_addr(54)
            for k in range(4): unit_load(i+1,k,55)
            ticket(i+3)
            e(f"L_dy{i}_proc:")
            process(i-1,f"L_dy{i}")
            e("s_cmp_eq_u32 s68, 2")
            e("s_cbranch_scc1 L_dyn_done" if i<3 else "s_cbranch_scc0 L_dyn")
        if p.sat:
            for i in (1,2,3):
                e("s_cmp_eq_u32 s68, 0"); e(f"s_cbranch_scc1 L_dy{i}_draw")
                if p.skew:
                    e("s_add_u32 s68, s68, 1"); e("s_waitcnt vmcnt(2) lgkmcnt(0)")
                    e("s_cmp_eq_u32 s68, 2"); e(f"s_cbranch_scc1 L_dy{i}_proc")
                    e("s_waitcnt vmcnt(0)"); e(f"s_branch L_dy{i}_proc")
                    e(f"L_dy{i}_empty:")
                    stamp(2)
                    for k in (2,3): unit_load(i+1,k,87)
                    e("s_waitcnt vmcnt(6)"); e(f"s_branch L_dy{i}_proc")
                else:
                    stamp(2)
                    e("s_mov_b32 s68, 2"); e("s_waitcnt vmcnt(0) lgkmcnt(0)"); e(f"s_branch L_dy{i}_proc")
                    e(f"L_dy{i}_empty:"); e("s_waitcnt vmcnt(4)"); e(f"s_branch L_dy{i}_proc")
                e(f"L_dy{i}_draw:")
                if not p.TH:
                    e(f"s_waitcnt vmcnt({p.dw+2 if p.sm else p.dw}) lgkmcnt(0)")
                    e(f"s_cmp_ge_u32 s66, {p.NU}"); e("s_cselect_b32 s68, 1, 0"); e(f"s_cbranch_scc1 L_dy{i}_empty")
                    unit_addr(66)
                    e("s_mov_b32 s66, 1"); e("s_atomic_add s66, s[64:65], 0 glc")
                else:
                    e(f"s_waitcnt vmcnt({p.dw+2 if p.sm else p.dw})")
                    e("s_add_u32 s99, s99, 1")
                    e("s_sub_u32 s67, s67, 1"); e(f"s_cbranch_scc0 L_dy{i}_have")
                    e("s_waitcnt lgkmcnt(0)")
                    e("s_mov_b32 s99, s66"); e("s_sub_u32 s67, s98, 1")
                    e(f"s_cmp_ge_u32 s99, {p.NU}"); e(f"s_cbranch_scc1 L_dy{i}_have")
                    e(f"s_cmp_lt_u32 s99, {p.TH}"); e("s_cselect_b32 s98, 2, 1")
                    e("s_mov_b32 s66, s98"); e("s_atomic_add s66, s[64:65], 0 glc")
                    e(f"L_dy{i}_have:")
                    e(f"s_cmp_ge_u32 s99, {p.NU}"); e("s_cselect_b32 s68, 1, 0"); e(f"s_cbranch_scc1 L_dy{i}_empty")
                    unit_addr(99)
                for k in range(4):
                    if p.sm and k==2: e(f"s_waitcnt vmcnt({p.dw+2})")
                    unit_load(i+1,k,87 if (p.skew and k>=2) else 55)
                if p.skew: e("s_mov_b32 s87, s55")
                if p.dw>4: e("s_waitcnt vmcnt(8)")
                e(f"L_dy{i}_proc:")
                process(i-1,f"L_dy{i}")
                if p.prof==1: e("s_mov_b32 m0, s86"); e("v_writelane_b32 v1, s84, m0"); e("s_add_u32 s86, s86, 1"); e("s_memrealtime s[84:85]")
                if p.skew:
                    if i==3: e("s_branch L_dyn")
                else:
                    e("s_cmp_eq_u32 s68, 2")
                    e("s_cbranch_scc1 L_dyn_done" if i<3 else "s_cbranch_scc0 L_dyn")
        e("L_dyn_done:")
        stamp(3)
        def wo_loads():
            for t in range(8):
                if t%4==0: e(f"s_add_u32 s55, s63, {(t//4)*4*896}")
                d=slot(NKV+t)
                e(f"buffer_load_dwordx4 v[{d}:{d+3}], v{VW}, s[92:95], s55 offen offset:{(t%4)*896} {POL(p.polw)}")
        if p.wol==2: wo_loads()
        fin_branch(1)
    else:
        stamp(3)
        while pend_fin: fin_branch(pend_fin.pop(0)[0])
    e("s_waitcnt lgkmcnt(0)")
    e("s_barrier")
    stamp(4)
    if p.dyn and p.wol==3: wo_loads()
    def new_tail():
        G=16
        e(f"ds_read_b128 v[{G}:{G+3}], v{PA+3} offset:{LDS_ST}"); e(f"ds_read_b128 v[{G+4}:{G+7}], v{PA+3} offset:{LDS_ST+16}")
        for w in range(4): e(f"ds_read_b128 v[{G+8+4*w}:{G+11+4*w}], v{PA+2} offset:{LDS_O+w*4096}")
        M=G+24; PB=M+4; O=M+8
        e(f"v_mov_b32 v{PB+3}, v{VTAG}"); e(f"s_mov_b32 s62, {p.spin}")
        e("s_waitcnt lgkmcnt(0)" if (p.stamps or p.diag>=0) else "s_waitcnt lgkmcnt(4)")
        e(f"v_max3_f32 v{M}, v{G}, v{G+2}, v{G+4}"); e(f"v_max_f32 v{M}, v{M}, v{G+6}")
        for w in range(4): e(f"v_sub_f32 v{G+2*w}, v{G+2*w}, v{M}")
        for w in range(4): e(f"v_exp_f32 v{G+2*w}, v{G+2*w}")
        e(f"v_mul_f32 v{M+1}, v{G}, v{G+1}")
        for w in range(1,4): e(f"v_fmac_f32 v{M+1}, v{G+2*w}, v{G+2*w+1}")
        if p.dyn and not p.bst: e(f"v_max_f32 v{M+1}, 0x0da24260, v{M+1}")
        e(f"v_rcp_f32 v{M+2}, v{M+1}"); e(f"v_log_f32 v{M+3}, v{M+1}")
        e("s_waitcnt lgkmcnt(0)")
        for c in range(4): e(f"v_mul_f32 v{O+c}, v{G}, v{G+8+c}")
        for w in range(1,4):
            for c in range(4): e(f"v_fmac_f32 v{O+c}, v{G+2*w}, v{G+8+4*w+c}")
        e(f"v_add_f32 v{PB+2}, v{M}, v{M+3}")
        for c in range(4): e(f"v_mul_f32 v{O+c}, v{O+c}, v{M+2}")
        e(f"v_cvt_pk_bf16_f32 v{PB}, v{O}, v{O+1}"); e(f"v_cvt_pk_bf16_f32 v{PB+1}, v{O+2}, v{O+3}")
        e(f"buffer_store_dwordx4 v[{PB}:{PB+3}], v{PA+4}, s[36:39], s5 offen sc1")
        stamp(5)
        if p.dyn and p.wol==4: wo_loads()
        if p.d1==99: e("s_barrier")
        elif p.d1: e(f"s_sleep {p.d1}")
        GA=16
        e("L_h1:")
        e(f"buffer_load_dwordx4 v[{GA}:{GA+3}], v{PA+5}, s[36:39], s10 offen sc1")
        e("s_waitcnt vmcnt(0)")
        e(f"v_cmp_ne_u32 vcc, v{GA+3}, v{VTAG}")
        poll_tail_masked("L_h1",p.bk1)
        stamp(6)
        def ror(op,x,n,src=None): return f"{op}_dpp v{x}, v{x if src is None else src}, v{x if src is None else src} row_ror:{n} row_mask:0xf bank_mask:0xf"
        MXX=22; A0=24; W=28; TT=32
        e(ror("v_max_f32",MXX,2,GA+2))
        e(f"v_lshlrev_b32 v{A0}, 16, v{GA}"); e(f"v_and_b32 v{A0+1}, s97, v{GA}")
        e(ror("v_max_f32",MXX,4))
        e(f"v_lshlrev_b32 v{A0+2}, 16, v{GA+1}"); e(f"v_and_b32 v{A0+3}, s97, v{GA+1}")
        e(ror("v_max_f32",MXX,8))
        e(f"v_mov_b32 v{TT}, v{MXX}"); nop(2); e(f"v_permlane16_swap_b32 v{MXX}, v{TT}"); nop(1); e(f"v_max_f32 v{MXX}, v{MXX}, v{TT}")
        e(f"v_sub_f32 v{W}, v{GA+2}, v{MXX}"); e(f"v_exp_f32 v{W}, v{W}"); nop(1)
        for c in range(4): e(f"v_mul_f32 v{A0+c}, v{W}, v{A0+c}")
        regs=[W]+[A0+c for c in range(4)]
        for n in (2,4,8):
            for x in regs: e(ror("v_add_f32",x,n))
        for i,x in enumerate(regs): e(f"v_mov_b32 v{TT+i}, v{x}")
        for i,x in enumerate(regs): e(f"v_permlane16_swap_b32 v{x}, v{TT+i}")
        for i,x in enumerate(regs):
            e(f"v_add_f32 v{x}, v{x}, v{TT+i}")
            if i==0: e(f"v_rcp_f32 v{W}, v{W}")
        e("s_mov_b32 exec_lo, 3"); e("s_mov_b32 exec_hi, 3")
        for c in range(4): e(f"v_mul_f32 v{A0+c}, v{W}, v{A0+c}")
        for c in range(4): e(f"v_cvt_pk_bf16_f32 v{A0+c}, v{A0+c}, v{A0+c}")
        e(f"ds_write_b128 v{PA+6}, v[{A0}:{A0+3}] offset:{LDS_OX}")
        e("s_mov_b64 exec, -1")
        e("s_waitcnt lgkmcnt(0)")
        e("s_barrier")
        e(f"ds_read_b128 v[{A0}:{A0+3}], v{PA+7} offset:{LDS_OX}"); e(f"ds_read_b128 v[{A0+4}:{A0+7}], v{PA+7} offset:{LDS_OX+16}")
        DO=44; AB=68
        def ands(t):
            for c in range(4): e(f"v_and_b32 v{AB+4*(t%6)+c}, v{MK+c}, v{A0+t}")
        e("s_waitcnt lgkmcnt(0)" if (p.stamps or p.diag>=0) else "s_waitcnt lgkmcnt(1)")
        ands(0)
        for t in range(8):
            if t==3: e("s_waitcnt lgkmcnt(0)")
            if t<7: ands(t+1)
            else: nop(2)
            d=slot(NKV+t); c="0" if t==0 else f"v[{DO}:{DO+3}]"; a=AB+4*(t%6)
            e(f"v_mfma_f32_16x16x32_bf16 v[{DO}:{DO+3}], v[{a}:{a+3}], v[{d}:{d+3}], {c}")
        nop(8)
        tag_insert(DO,VTAG)
        e(f"buffer_store_dwordx4 v[{DO}:{DO+3}], v{PA+8}, s[36:39], s11 offen sc1")
        stamp(7)
        if p.ntl>=2:
            e("s_cmp_ge_u32 s2, 56"); e("s_cbranch_scc1 L_send")
            GQ=16; BAD=32; T0=33; T1=34
            e("v_lshrrev_b32 v8, 3, v0"); e("v_lshlrev_b32 v4, 9, v8"); e("v_and_b32 v9, 7, v0"); e("v_lshl_add_u32 v4, v9, 4, v4")
            e("s_lshl_b32 s14, s2, 14"); e("s_lshl_b32 s54, s3, 12"); e("s_add_u32 s14, s14, s54"); e(f"s_add_u32 s14, s14, {H2_OFF:#x}")
            e("v_lshlrev_b32 v5, 4, v9"); e("s_lshl_b32 s54, s3, 7"); e("v_add_u32 v6, s54, v5"); e("v_lshlrev_b32 v15, 3, v9")
            e("s_mul_i32 s52, s2, 4682"); e("s_lshr_b32 s52, s52, 16")
            e("s_mul_i32 s53, s52, 14"); e("s_sub_u32 s53, s2, s53"); e("s_lshl_b32 s53, s53, 6")
            e("s_and_b32 s54, s52, 1"); e("s_mul_i32 s54, s54, 1792"); e("s_add_u32 s53, s53, s54")
            e("s_lshr_b32 s54, s52, 1"); e("s_mul_i32 s54, s54, 896"); e("s_add_u32 s53, s53, s54")
            srd(40,24,25,3584)
            e(f"s_mov_b32 s62, {p.spin}")
            if p.d2: e(f"s_sleep {p.d2}")
            e("L_h2:")
            for i in range(4): e(f"buffer_load_dwordx4 v[{GQ+4*i}:{GQ+4*i+3}], v4, s[36:39], s14 offen offset:{i*128} sc1")
            e("s_waitcnt vmcnt(0)")
            for k in range(4): tag_check(GQ+4*k,VTAG,BAD,T0,T1,k==0)
            e(f"v_cmp_ne_u32 vcc, 0, v{BAD}")
            poll_tail_masked("L_h2",p.bk2)
            for c in range(4):
                e(f"v_add_f32 v{GQ+c}, v{GQ+c}, v{GQ+4+c}"); e(f"v_add_f32 v{GQ+8+c}, v{GQ+8+c}, v{GQ+12+c}")
            for c in range(4): e(f"v_add_f32 v{GQ+c}, v{GQ+c}, v{GQ+8+c}")
            for c in range(4): e(f"v_add_f32_dpp v{GQ+c}, v{GQ+c}, v{GQ+c} row_ror:8 row_mask:0xf bank_mask:0xf")
            for sw in ("v_permlane16_swap_b32","v_permlane32_swap_b32"):
                for c in range(4): e(f"v_mov_b32 v{GQ+4+c}, v{GQ+c}")
                for c in range(4): e(f"{sw} v{GQ+c}, v{GQ+4+c}")
                for c in range(4): e(f"v_add_f32 v{GQ+c}, v{GQ+c}, v{GQ+4+c}")
            e("s_mov_b64 exec, 0xff")
            e(f"ds_write_b128 v6, v[{GQ}:{GQ+3}] offset:{LDS_Q}")
            e("s_waitcnt lgkmcnt(0)")
            e("s_barrier")
            e("s_cmp_lg_u32 s3, 0"); e("s_cbranch_scc1 L_end")
            if p.stamps or p.diag>=0: e("s_memrealtime s[88:89]")
            for w in range(1,4): e(f"ds_read_b128 v[{GQ+4*w}:{GQ+4*w+3}], v5 offset:{LDS_Q+w*128}")
            e("s_waitcnt lgkmcnt(0)")
            for c in range(4):
                e(f"v_add_f32 v{GQ+c}, v{GQ+c}, v{GQ+4+c}"); e(f"v_add_f32 v{GQ+8+c}, v{GQ+8+c}, v{GQ+12+c}")
            for c in range(4): e(f"v_add_f32 v{GQ+c}, v{GQ+c}, v{GQ+8+c}")
            e(f"v_cvt_pk_bf16_f32 v{GQ}, v{GQ}, v{GQ+1}"); e(f"v_cvt_pk_bf16_f32 v{GQ+1}, v{GQ+2}, v{GQ+3}")
            e(f"buffer_store_dwordx2 v[{GQ}:{GQ+1}], v15, s[40:43], s53 offen")
            e("s_cmp_lg_u32 s2, 0"); e("s_cbranch_scc1 L_send2")
            e("s_mov_b64 exec, 1")
            e(f"buffer_store_dword v{VTAG}, v15, s[36:39], 0 offen sc1")
            e("L_send2:")
            if p.stamps:
                e("s_memrealtime s[90:91]"); e("s_waitcnt lgkmcnt(0)")
                e(f"s_add_u32 s64, s28, {STAMP_OFF:#x}"); e("s_addc_u32 s65, s29, 0"); e("s_lshl_b32 s68, s2, 7")
                e("s_mov_b64 exec, 1"); e("v_mov_b32 v1, s68")
                for i in range(4): e(f"v_mov_b32 v{4+i}, s{88+i}")
                e("global_store_dwordx4 v1, v[4:7], s[64:65] offset:112")
            e("L_send:")
        if p.stamps:
            e("s_cmp_lg_u32 s3, 0"); e("s_cbranch_scc1 L_end")
            write_stamps(8,0)
        e("s_endpgm")
    def old_tail():
        G=16
        e(f"v_lshlrev_b32 v8, 4, v0"); e("s_lshl_b32 s54, s3, 10"); e("v_add_u32 v8, s54, v8")
        e("s_lshl_b32 s54, s3, 5"); e("v_mov_b32 v9, s54")
        e(f"ds_read_b128 v[{G}:{G+3}], v9 offset:{LDS_ST}"); e(f"ds_read_b128 v[{G+4}:{G+7}], v9 offset:{LDS_ST+16}")
        for w in range(4): e(f"ds_read_b128 v[{G+8+4*w}:{G+11+4*w}], v8 offset:{LDS_O+w*4096}")
        e("v_lshrrev_b32 v8, 3, v0"); e("v_lshlrev_b32 v8, 12, v8"); e("v_and_b32 v9, 7, v0"); e("v_lshl_add_u32 v8, v9, 4, v8")
        e("s_lshl_b32 s54, s31, 2"); e("s_add_u32 s54, s54, s3")
        e("s_lshl_b32 s55, s54, 15"); e("s_lshl_b32 s98, s34, 7"); e("s_add_u32 s55, s55, s98"); e(f"s_add_u32 s55, s55, {H1_OFF:#x}")
        e("s_waitcnt lgkmcnt(0)" if (p.stamps or p.diag>=0) else "s_waitcnt lgkmcnt(4)")
        M=G+24
        e(f"v_max3_f32 v{M}, v{G}, v{G+2}, v{G+4}"); e(f"v_max_f32 v{M}, v{M}, v{G+6}")
        for w in range(4): e(f"v_sub_f32 v{G+2*w}, v{G+2*w}, v{M}")
        for w in range(4): e(f"v_exp_f32 v{G+2*w}, v{G+2*w}")
        nop(1)
        e(f"v_mul_f32 v{M+1}, v{G}, v{G+1}")
        for w in range(1,4): e(f"v_fmac_f32 v{M+1}, v{G+2*w}, v{G+2*w+1}")
        if p.dyn and not p.bst: e(f"v_max_f32 v{M+1}, 0x0da24260, v{M+1}")
        e(f"v_rcp_f32 v{M+2}, v{M+1}"); e(f"v_log_f32 v{M+3}, v{M+1}"); nop(1)
        for w in range(4): e(f"v_mul_f32 v{G+2*w}, v{G+2*w}, v{M+2}")
        PB=M+4
        e(f"v_add_f32 v{PB+2}, v{M}, v{M+3}"); e(f"v_mov_b32 v{PB+3}, v{VTAG}")
        e("s_waitcnt lgkmcnt(0)")
        O=M+8
        for c in range(4): e(f"v_mul_f32 v{O+c}, v{G}, v{G+8+c}")
        for w in range(1,4):
            for c in range(4): e(f"v_fmac_f32 v{O+c}, v{G+2*w}, v{G+8+4*w+c}")
        e(f"v_cvt_pk_bf16_f32 v{PB}, v{O}, v{O+1}"); e(f"v_cvt_pk_bf16_f32 v{PB+1}, v{O+2}, v{O+3}")
        e(f"buffer_store_dwordx4 v[{PB}:{PB+3}], v8, s[36:39], s55 offen sc1")
        stamp(5)
        e("v_lshrrev_b32 v9, 1, v0"); e("v_lshlrev_b32 v8, 7, v9"); e("v_and_b32 v9, 1, v0"); e("v_lshl_add_u32 v8, v9, 4, v8")
        e("s_lshl_b32 s55, s31, 5"); e("s_add_u32 s55, s55, s34"); e("s_lshl_b32 s55, s55, 12"); e(f"s_add_u32 s55, s55, {H1_OFF:#x}")
        e("s_lshl_b32 s98, s3, 5"); e("s_add_u32 s55, s55, s98")
        e("v_lshrrev_b32 v20, 5, v0"); e("v_lshlrev_b32 v20, 7, v20"); e("v_lshl_add_u32 v20, v9, 4, v20"); e("v_add_u32 v20, s98, v20")
        e("v_bfe_u32 v21, v0, 3, 1"); e("v_lshlrev_b32 v21, 7, v21"); e("v_lshl_add_u32 v21, v3, 5, v21")
        e(f"s_mov_b32 s62, {p.spin}")
        GA=16
        if p.pp1:
            PS=80
            poll_piped("L_h1",p.pp1,1,
                lambda j: e(f"buffer_load_dwordx4 v[{PS+4*j}:{PS+4*j+3}], v8, s[36:39], s55 offen sc1"),
                lambda j: e(f"v_cmp_eq_u32 vcc, v{PS+4*j+3}, v{VTAG}"),
                lambda j: [e(f"v_mov_b32 v{GA+c}, v{PS+4*j+c}") for c in range(3)], p.bk1)
        else:
            e("L_h1:")
            e(f"buffer_load_dwordx4 v[{GA}:{GA+3}], v8, s[36:39], s55 offen sc1")
            e("s_waitcnt vmcnt(0)")
            e(f"v_cmp_ne_u32 vcc, v{GA+3}, v{VTAG}")
            poll_tail_masked("L_h1",p.bk1)
        stamp(6)
        def ror(op,x,n): return f"{op}_dpp v{x}, v{x}, v{x} row_ror:{n} row_mask:0xf bank_mask:0xf"
        MXX=22; A0=24; W=28; TT=32
        e(f"v_mov_b32 v{MXX}, v{GA+2}")
        e(f"v_lshlrev_b32 v{A0}, 16, v{GA}"); e(f"v_and_b32 v{A0+1}, s97, v{GA}")
        e(ror("v_max_f32",MXX,2))
        e(f"v_lshlrev_b32 v{A0+2}, 16, v{GA+1}"); e(f"v_and_b32 v{A0+3}, s97, v{GA+1}")
        e(ror("v_max_f32",MXX,4)); nop(2)
        e(ror("v_max_f32",MXX,8))
        e(f"v_mov_b32 v{TT}, v{MXX}"); nop(2); e(f"v_permlane16_swap_b32 v{MXX}, v{TT}"); nop(1); e(f"v_max_f32 v{MXX}, v{MXX}, v{TT}")
        e(f"v_sub_f32 v{W}, v{GA+2}, v{MXX}"); e(f"v_exp_f32 v{W}, v{W}"); nop(1)
        for c in range(4): e(f"v_mul_f32 v{A0+c}, v{W}, v{A0+c}")
        regs=[W]+[A0+c for c in range(4)]
        for n in (2,4,8):
            for x in regs: e(ror("v_add_f32",x,n))
        for i,x in enumerate(regs): e(f"v_mov_b32 v{TT+i}, v{x}")
        for i,x in enumerate(regs): e(f"v_permlane16_swap_b32 v{x}, v{TT+i}")
        for i,x in enumerate(regs): e(f"v_add_f32 v{x}, v{x}, v{TT+i}")
        e(f"v_rcp_f32 v{W}, v{W}"); nop(1)
        for c in range(4): e(f"v_mul_f32 v{A0+c}, v{W}, v{A0+c}")
        for c in range(4): e(f"v_cvt_pk_bf16_f32 v{A0+c}, v{A0+c}, v{A0+c}")
        e("s_mov_b32 exec_lo, 3"); e("s_mov_b32 exec_hi, 3")
        e(f"ds_write_b128 v20, v[{A0}:{A0+3}] offset:{LDS_OX}")
        e("s_mov_b64 exec, -1")
        e("s_waitcnt lgkmcnt(0)")
        e("s_barrier")
        A0=24
        e(f"ds_read_b128 v[{A0}:{A0+3}], v21 offset:{LDS_OX}"); e(f"ds_read_b128 v[{A0+4}:{A0+7}], v21 offset:{LDS_OX+16}")
        e("s_waitcnt lgkmcnt(0)")
        DO=44
        AB=48
        for t in range(8):
            for c in range(4): e(f"v_and_b32 v{AB+4*t+c}, v{MK+c}, v{A0+t}")
        if p.h2lay==0:
            e("v_lshrrev_b32 v8, 5, v0"); e("v_mul_u32_u24 v8, 56, v8"); e("v_add_u32 v8, v8, v14"); e("v_lshlrev_b32 v8, 12, v8")
        else:
            e("v_lshrrev_b32 v8, 5, v0"); e("v_mul_u32_u24 v8, 14, v8"); e("v_lshrrev_b32 v9, 2, v14"); e("v_add_u32 v8, v8, v9"); e("v_lshlrev_b32 v8, 14, v8")
            e("v_and_b32 v9, 3, v14"); e("v_lshl_add_u32 v8, v9, 5, v8")
        for t in range(8):
            d=slot(NKV+t); c="0" if t==0 else f"v[{DO}:{DO+3}]"
            e(f"v_mfma_f32_16x16x32_bf16 v[{DO}:{DO+3}], v[{AB+4*t}:{AB+4*t+3}], v[{d}:{d+3}], {c}")
        e("v_and_b32 v9, 1, v3"); e("v_lshl_add_u32 v8, v9, 4, v8")
        e("v_cmp_gt_u32 vcc, 56, v14"); e("v_mov_b32 v9, 0x40000000")
        e("s_lshr_b32 s54, s34, 4"); e(f"s_mul_i32 s54, s54, {112*4096}"); e("v_cndmask_b32 v8, v9, v8, vcc")
        e("s_and_b32 s55, s34, 15"); e("s_lshl_b32 s98, s31, 4"); e("s_add_u32 s55, s55, s98"); e(f"s_lshl_b32 s55, s55, {5 if p.h2lay==0 else 7}")
        e("s_add_u32 s54, s54, s55"); e(f"s_add_u32 s54, s54, {H2_OFF:#x}")
        nop(2)
        tag_insert(DO,VTAG)
        e(f"buffer_store_dwordx4 v[{DO}:{DO+3}], v8, s[36:39], s54 offen sc1")
        if not p.prof: stamp(7)
        if p.prof:
            if p.dyn: e("s_mov_b32 m0, s86"); e("v_writelane_b32 v1, s84, m0")
            else: e(f"v_writelane_b32 v1, s84, {NG//2}")
            e("v_writelane_b32 v1, s70, 63")
            e(f"s_add_u32 s64, s28, 0x1800000"); e("s_addc_u32 s65, s29, 0"); e("s_lshl_b32 s54, s2, 2"); e("s_add_u32 s54, s54, s3"); e("s_lshl_b32 s54, s54, 8")
            e("v_lshlrev_b32 v8, 2, v0"); e("v_add_u32 v8, s54, v8"); e("global_store_dword v8, v1, s[64:65]")
        if p.stamps:
            e("s_cmp_lg_u32 s3, 0"); e("s_cbranch_scc1 L_end")
            write_stamps(8,0)
        e("s_endpgm")
    if p.ntl: new_tail()
    else: old_tail()

    e("L_helper:")
    e("s_setprio 3")
    e("v_mov_b32 v8, 0"); e(f"ds_write_b32 v8, v8 offset:{LDS_FL}")
    X=16
    WQ=64
    e("v_bfe_u32 v8, v0, 3, 1"); e("v_mul_u32_u24 v4, 896, v8"); e("v_mul_u32_u24 v8, 56, v3"); e("v_add_u32 v4, v4, v8")
    e(f"v_mul_u32_u24 v5, {28*8192}, v3"); e("v_lshl_add_u32 v5, v2, 4, v5")
    e("s_and_b32 s35, s34, 3"); e("s_mul_i32 s52, s35, 224")
    e(f"s_mul_i32 s53, s35, {112*8192}"); e("s_lshl_b32 s54, s31, 10"); e("s_add_u32 s53, s53, s54")
    e("s_bfe_u32 s54, s34, 0x20002"); e("s_lshl_b32 s54, s54, 8"); e("s_add_u32 s53, s53, s54")
    e("s_cmp_ge_u32 s34, 16")
    e("s_waitcnt lgkmcnt(0)")
    e("s_cselect_b32 s40, s14, s4"); e("s_cselect_b32 s41, s15, s5"); e("s_mov_b32 s42, 1792"); e("s_mov_b32 s43, 0x20000")
    e("s_cselect_b32 s44, s20, s10"); e("s_cselect_b32 s45, s21, s11"); e(f"s_mov_b32 s46, {0 if p.nowq else 448*8192:#x}"); e("s_mov_b32 s47, 0x20000")
    e(f"buffer_load_dwordx4 v[{X}:{X+3}], v4, s[40:43], s52 offen")
    e(f"buffer_load_dwordx4 v[{X+4}:{X+7}], v4, s[40:43], s52 offen offset:16")
    e(f"buffer_load_dwordx4 v[{X+8}:{X+11}], v4, s[40:43], s52 offen offset:32")
    e(f"buffer_load_dwordx2 v[{X+12}:{X+13}], v4, s[40:43], s52 offen offset:48")
    for t in range(28):
        e(f"buffer_load_dwordx4 v[{WQ+4*t}:{WQ+4*t+3}], v5, s[44:47], s53 offen {POL(p.polw)}")
        if t<27: e("s_add_u32 s53, s53, 8192")
    XT=0
    if p.dyn:
        XT=1
        srd(36,28,29,WS_SIZE)
        e("s_lshl_b32 s54, s32, 3"); e("s_add_u32 s54, s54, s31"); e(f"s_mul_i32 s54, s54, {4*p.cst}"); e(f"s_add_u32 s54, s54, {CNT_OFF:#x}")
        e(f"v_mul_u32_u24 v8, {p.cst}, v0"); e(f"v_mov_b32 v47, {0 if p.nos else 32}")
        e("s_cmp_eq_u32 s33, 0"); e("s_cselect_b32 s55, 0, 0x40000000"); e("v_add_u32 v8, s55, v8")
        e("s_mov_b64 exec, 15")
        e("buffer_atomic_swap v47, v8, s[36:39], s54 offen sc0 sc1")
        e("s_mov_b64 exec, -1")
    def pretouch():
        n=0
        e("v_and_b32 v9, 31, v0")
        e("s_mov_b32 exec_hi, 0")
        if p.ptm&1:
            e("v_lshlrev_b32 v8, 12, v9")
            e("s_lshl_b32 s54, s31, 17"); e("s_lshl_b32 s98, s34, 7"); e("s_add_u32 s54, s54, s98"); e(f"s_add_u32 s54, s54, {H1_OFF:#x}")
            e(f"buffer_load_dword v56, v8, s[36:39], s54 offen sc1"); n+=1
        if p.ptm&2:
            e("s_mov_b32 exec_lo, 0x0fffffff")
            e("v_lshlrev_b32 v57, 14, v9")
            e("s_lshr_b32 s54, s34, 4"); e(f"s_mul_i32 s54, s54, {112*4096}")
            e("s_and_b32 s55, s34, 15"); e("s_lshl_b32 s98, s31, 4"); e("s_add_u32 s55, s55, s98"); e("s_lshl_b32 s55, s55, 7")
            e("s_add_u32 s54, s54, s55"); e(f"s_add_u32 s54, s54, {H2_OFF:#x}")
            e(f"buffer_load_dword v57, v57, s[36:39], s54 offen sc1"); n+=1
        if p.ptm&4:
            e("s_mov_b32 exec_lo, 15")
            e("v_lshlrev_b32 v58, 12, v9")
            e("s_and_b32 s54, s2, 7"); e("s_lshr_b32 s98, s2, 5"); e("s_lshl_b32 s98, s98, 3"); e("s_add_u32 s54, s54, s98")
            e("s_lshl_b32 s54, s54, 14"); e(f"s_add_u32 s54, s54, {H2_OFF:#x}")
            e(f"buffer_load_dword v58, v58, s[36:39], s54 offen sc1"); n+=1
        if p.ptm&8:
            e("s_mov_b32 exec_lo, 1")
            e("global_load_dword v59, v0, s[24:25] sc1"); n+=1
        if p.ptm&16:
            e("s_mov_b32 exec_lo, 0xff")
            e("s_cmp_ge_u32 s34, 16"); e("s_cselect_b32 s92, s22, s12"); e("s_cselect_b32 s93, s23, s13")
            e("s_and_b32 s54, s34, 15"); e("s_lshl_b32 s54, s54, 5"); e("s_lshl_b32 s63, s31, 9"); e("s_add_u32 s63, s63, s54"); e("s_mul_i32 s63, s63, 896")
            e("v_mul_u32_u24 v60, 4092, v9"); e("v_add_u32 v60, s63, v60")
            e("global_load_dword v60, v60, s[92:93] nt"); n+=1
        e("s_mov_b64 exec, -1")
        return n
    NPT=0
    if p.pt and p.pte:
        srd(36,28,29,WS_SIZE); NPT+=pretouch()
    if p.ept:
        e("s_lshl_b32 s54, s32, 3"); e("s_add_u32 s54, s54, s31"); e("s_lshl_b32 s54, s54, 22")
        e("s_lshl_b32 s55, s33, 18"); e("s_add_u32 s55, s55, s54")
        e("v_and_b32 v8, 3, v0"); e("v_lshlrev_b32 v8, 16, v8"); e("v_add_u32 v8, s55, v8")
        e(f"s_add_u32 s54, s54, {6144*512:#x}")
        if p.dyn: e("v_lshlrev_b32 v9, 16, v2")
        else: e("s_lshl_b32 s55, s33, 16"); e("v_mov_b32 v9, s55")
        e("v_add_u32 v9, s54, v9")
        e(f"s_mov_b64 exec, {0xffff if p.ept>=2 else 1:#x}")
        e("global_load_dword v48, v8, s[8:9] nt"); e("global_load_dword v49, v9, s[16:17] nt"); e("global_load_dword v50, v9, s[18:19] nt")
        NPT+=3
        if p.ept>=2: e("global_load_dword v51, v8, s[6:7] nt"); NPT+=1
        e("s_mov_b64 exec, -1")
    if p.ep2:
        e("v_lshlrev_b32 v8, 20, v0"); e("s_lshl_b32 s54, s2, 7"); e("s_add_u32 s54, s54, 0x58000"); e("v_add_u32 v8, s54, v8")
        e("s_mov_b64 exec, 7"); e("global_load_dword v52, v8, s[28:29] sc1"); NPT+=1
        e("s_mov_b64 exec, 1")
        if p.ep2>=2: e("global_load_dword v53, v0, s[24:25] sc1"); NPT+=1
        if p.ep2>=3:
            e("s_cmp_ge_u32 s34, 16"); e("s_cselect_b32 s92, s22, s12"); e("s_cselect_b32 s93, s23, s13")
            e("s_and_b32 s54, s34, 15"); e("s_lshl_b32 s54, s54, 5"); e("s_lshl_b32 s63, s31, 9"); e("s_add_u32 s63, s63, s54"); e("s_mul_i32 s63, s63, 896")
            e("v_mov_b32 v9, s63"); e("global_load_dword v54, v9, s[92:93] nt"); NPT+=1
        e("s_mov_b64 exec, -1")
    XT+=NPT
    if p.bar0: e("s_barrier")
    e("s_load_dword s30, s[28:29], 0")
    srd(36,28,29,WS_SIZE)
    emit_masks(MK)
    e("s_mov_b32 s48, 0x01000100"); e("s_mov_b32 s49, 0x03020302")
    e("v_lshrrev_b32 v8, 5, v0"); e("v_lshlrev_b32 v6, 14, v8"); e("v_lshl_add_u32 v6, v2, 5, v6"); e("v_and_b32 v9, 1, v3"); e("v_lshl_add_u32 v6, v9, 4, v6")
    e("s_lshl_b32 s50, s31, 15"); e("s_lshl_b32 s54, s34, 9"); e("s_add_u32 s50, s50, s54"); e(f"s_add_u32 s50, s50, {H0_OFF:#x}")
    e("v_lshlrev_b32 v14, 11, v8"); e("v_and_b32 v9, 31, v0"); e("v_lshl_add_u32 v14, v9, 4, v14")
    e("s_lshl_b32 s51, s31, 1"); e("s_add_u32 s51, s51, s32"); e("s_lshl_b32 s51, s51, 14"); e(f"s_add_u32 s51, s51, {H0_OFF:#x}")
    e("v_lshlrev_b32 v15, 3, v0")
    e("s_waitcnt lgkmcnt(0)")
    emit_tagconsts()
    e(f"v_mov_b32 v{VTAG}, s30")
    e(f"s_waitcnt vmcnt({28+XT})")
    stamp(1)
    DQ=32; AQ=36
    def aq(t):
        a=AQ+4*(t%2)
        e(f"v_perm_b32 v8, v{X+t//2}, v{X+t//2}, s{48+(t&1)}")
        for c in range(4): e(f"v_and_b32 v{a+c}, v{MK+c}, v8")
    aq(0)
    for t in range(28):
        if t+1<28: aq(t+1)
        else: nop(2)
        e(f"s_waitcnt vmcnt({27-t+XT})")
        a=AQ+4*(t%2); c="0" if t==0 else f"v[{DQ}:{DQ+3}]"
        e(f"v_mfma_f32_16x16x32_bf16 v[{DQ}:{DQ+3}], v[{a}:{a+3}], v[{WQ+4*t}:{WQ+4*t+3}], {c}")
    nop(8)
    if p.dyn: e(f"s_waitcnt vmcnt({NPT})")
    tag_insert(DQ,VTAG)
    e(f"buffer_store_dwordx4 v[{DQ}:{DQ+3}], v6, s[36:39], s50 offen sc1")
    stamp(2)
    e(f"s_mov_b32 s62, {p.spin}")
    if p.first_delay: e(f"s_sleep {p.first_delay}")
    for i in range(p.fd2): e("s_sleep 127")
    GQ=64; BAD=44; T0=45; T1=46
    e("s_mov_b32 s35, 0xffff")
    if p.h0p!='sc1':
        for pi in range(4):
            e(f"s_add_u32 s54, s51, {pi*4096}")
            for kq in range(4):
                r=GQ+4*(pi*4+kq)
                e(f"buffer_load_dwordx4 v[{r}:{r+3}], v14, s[36:39], s54 offen offset:{kq*512} {POL(p.h0p)}")
        e("s_branch L_h0s15")
    e("L_h0:")
    for pi in range(4):
        e(f"s_add_u32 s54, s51, {pi*4096}")
        for kq in range(4):
            k=pi*4+kq; r=GQ+4*k
            e(f"s_bitcmp0_b32 s35, {k}"); e(f"s_cbranch_scc1 L_h0s{k}")
            e(f"buffer_load_dwordx4 v[{r}:{r+3}], v14, s[36:39], s54 offen offset:{kq*512} sc1")
            e(f"L_h0s{k}:")
    e("s_waitcnt vmcnt(0)")
    e("s_mov_b32 s35, 0")
    for k in range(16):
        tag_check(GQ+4*k,VTAG,BAD,T0,T1,True)
        e(f"v_cmp_ne_u32 vcc, 0, v{BAD}"); e("s_cmp_lg_u64 vcc, 0"); e(f"s_cselect_b32 s54, {1<<k}, 0"); e("s_or_b32 s35, s35, s54")
    e("s_cbranch_scc0 L_h0_done")
    e("s_sub_u32 s62, s62, 1"); e("s_cbranch_scc1 L_h0_done")
    if p.sleep0: e(f"s_sleep {p.sleep0}")
    e("s_branch L_h0")
    e("L_h0_done:")
    stamp(3)
    for pi in range(4):
        r=GQ+16*pi
        for c in range(4):
            e(f"v_add_f32 v{r+c}, v{r+c}, v{r+4+c}"); e(f"v_add_f32 v{r+8+c}, v{r+8+c}, v{r+12+c}")
        for c in range(4): e(f"v_add_f32 v{r+c}, v{r+c}, v{r+8+c}")
        e(f"v_cvt_pk_bf16_f32 v{r}, v{r}, v{r+1}"); e(f"v_cvt_pk_bf16_f32 v{r+1}, v{r+2}, v{r+3}")
        e(f"ds_write_b64 v15, v[{r}:{r+1}] offset:{LDS_Q+pi*512}")
    e("v_mov_b32 v8, 0"); e("v_mov_b32 v9, 1")
    e("s_waitcnt lgkmcnt(0)")
    e(f"ds_write_b32 v8, v9 offset:{LDS_FL}")
    stamp(4)
    if p.pt and not p.pte:
        for i in range(p.ptd): e("s_sleep 127")
        pretouch(); e("s_waitcnt vmcnt(0)")
    if p.ntl>=2:
        write_stamps(5,8); e("s_endpgm"); Lkeep=len(L)
    e("s_cmp_ge_u32 s2, 224"); e("s_cbranch_scc1 L_hend2")
    if p.cmap:
        e("s_and_b32 s35, s2, 7"); e("s_lshr_b32 s52, s2, 5"); e("s_lshl_b32 s52, s52, 3"); e("s_add_u32 s35, s35, s52"); e("s_lshl_b32 s35, s35, 2")
        e("s_bfe_u32 s52, s2, 0x20003"); e("s_add_u32 s35, s35, s52")
    else: e("s_mov_b32 s35, s2")
    if p.h2lay==0:
        e("v_lshlrev_b32 v4, 4, v0")
        e("s_lshl_b32 s51, s35, 12"); e(f"s_add_u32 s51, s51, {H2_OFF:#x}")
    else:
        e("v_lshrrev_b32 v4, 1, v0"); e(f"v_lshlrev_b32 v4, {9 if p.lmap else 7}, v4"); e("v_and_b32 v9, 1, v0"); e("v_lshl_add_u32 v4, v9, 4, v4")
        e("s_lshr_b32 s51, s35, 2"); e("s_lshl_b32 s51, s51, 14"); e("s_and_b32 s52, s35, 3"); e("s_lshl_b32 s52, s52, 5"); e("s_add_u32 s51, s51, s52"); e(f"s_add_u32 s51, s51, {H2_OFF:#x}")
        for i in range(1,4): e(f"s_add_u32 s{44+i}, s51, {i*(128 if p.lmap else 4096)}")
    e("s_mul_i32 s52, s35, 1171"); e("s_lshr_b32 s52, s52, 16")
    e("s_mul_i32 s53, s52, 56"); e("s_sub_u32 s53, s35, s53")
    e("s_lshl_b32 s53, s53, 4")
    e("s_and_b32 s54, s52, 1"); e("s_mul_i32 s54, s54, 1792"); e("s_add_u32 s53, s53, s54")
    e("s_lshr_b32 s54, s52, 1"); e("s_mul_i32 s54, s54, 896"); e("s_add_u32 s53, s53, s54")
    srd(40,24,25,3584)
    e(f"s_mov_b32 s62, {p.spin}")
    e("s_barrier")
    stamp(9)
    if p.h2e:
        for i in range(4): e(f"buffer_load_dword v{GQ+4*i}, v4, s[36:39], s{51 if i==0 else 44+i} offen sc1")
    e("s_barrier")
    stamp(5)
    if p.d2: e(f"s_sleep {p.d2}")
    if p.pp2:
        PS=80
        def iss(j):
            for i in range(4): e(f"buffer_load_dwordx4 v[{PS+16*j+4*i}:{PS+16*j+4*i+3}], v4, s[36:39], s{51 if i==0 else 44+i} offen sc1")
        def chk(j):
            for k in range(4): tag_check(PS+16*j+4*k,VTAG,BAD,T0,T1,k==0)
            e(f"v_cmp_eq_u32 vcc, 0, v{BAD}")
        def tak(j):
            b=PS+16*j
            for c in range(4):
                e(f"v_add_f32 v{GQ+c}, v{b+c}, v{b+4+c}"); e(f"v_add_f32 v{GQ+8+c}, v{b+8+c}, v{b+12+c}")
            for c in range(4): e(f"v_add_f32 v{GQ+c}, v{GQ+c}, v{GQ+8+c}")
        poll_piped("L_h2",p.pp2,4,iss,chk,tak,p.bk2)
        stamp(6)
    else:
        e("L_h2:")
        for i in range(4):
            if p.h2lay==0: e(f"buffer_load_dwordx4 v[{GQ+4*i}:{GQ+4*i+3}], v4, s[36:39], s51 offen offset:{i*1024} sc1")
            else: e(f"buffer_load_dwordx4 v[{GQ+4*i}:{GQ+4*i+3}], v4, s[36:39], s{51 if i==0 else 44+i} offen sc1")
        e("s_waitcnt vmcnt(0)")
        for k in range(4): tag_check(GQ+4*k,VTAG,BAD,T0,T1,k==0)
        e(f"v_cmp_ne_u32 vcc, 0, v{BAD}")
        poll_tail_masked("L_h2",p.bk2)
        stamp(6)
        for c in range(4):
            e(f"v_add_f32 v{GQ+c}, v{GQ+c}, v{GQ+4+c}"); e(f"v_add_f32 v{GQ+8+c}, v{GQ+8+c}, v{GQ+12+c}")
        for c in range(4): e(f"v_add_f32 v{GQ+c}, v{GQ+c}, v{GQ+8+c}")
    for rr in (2,4,8):
        if rr==2: nop(1)
        for c in range(4): e(f"v_add_f32_dpp v{GQ+c}, v{GQ+c}, v{GQ+c} row_ror:{rr} row_mask:0xf bank_mask:0xf")
    for sw in ("v_permlane16_swap_b32","v_permlane32_swap_b32"):
        for c in range(4): e(f"v_mov_b32 v{GQ+4+c}, v{GQ+c}")
        nop(1)
        for c in range(4): e(f"{sw} v{GQ+c}, v{GQ+4+c}")
        nop(1)
        for c in range(4): e(f"v_add_f32 v{GQ+c}, v{GQ+c}, v{GQ+4+c}")
    e(f"v_cvt_pk_bf16_f32 v{GQ}, v{GQ}, v{GQ+1}"); e(f"v_cvt_pk_bf16_f32 v{GQ+1}, v{GQ+2}, v{GQ+3}")
    e("s_mov_b64 exec, 3")
    e(f"buffer_store_dwordx2 v[{GQ}:{GQ+1}], v15, s[40:43], s53 offen")
    e("s_cmp_lg_u32 s2, 0"); e("s_cbranch_scc1 L_hend")
    e("s_mov_b64 exec, 1")
    e(f"buffer_store_dword v{VTAG}, v15, s[36:39], 0 offen sc1")
    e("L_hend:")
    if p.diag>=0:
        e("s_waitcnt lgkmcnt(0)")
        e(f"s_sub_u32 s90, s{70+2*p.diag}, s70"); e(f"s_mul_i32 s90, s90, {p.fac}"); e("s_add_u32 s90, s90, 4000")
        e("L_pad:"); e("s_memrealtime s[84:85]"); e("s_waitcnt lgkmcnt(0)"); e("s_sub_u32 s84, s84, s70")
        e(f"s_cmp_lt_u32 s84, s90"); e("s_cbranch_scc1 L_pad")
    if p.padto:
        e("L_pad:"); e("s_memrealtime s[84:85]"); e("s_waitcnt lgkmcnt(0)"); e("s_sub_u32 s84, s84, s86")
        e(f"s_cmp_lt_u32 s84, {p.padto}"); e("s_cbranch_scc1 L_pad")
    e("L_hend2:")
    stamp(7)
    write_stamps(8,8)
    if p.ntl>=2: del L[Lkeep:]
    e("L_end:")
    e("s_endpgm")
    for i,x in enumerate(L):
        if x.endswith(" sc1") and "sc0" not in x:
            if (p.hs and x.startswith("buffer_store_dwordx4")) or (p.hl and x.startswith("buffer_load_dwordx4")): L[i]=x[:-4]+" sc0 sc1"
    body="\n".join("    "+x if not x.endswith(":") else x for x in L)
    txt = HDR + f"""; Generated by gen/gen.py (hand-designed schedule). One workgroup per CU: wave 0 = helper, waves 1-4 = streamers.
; @launch grid=(256,1,1) block=(320,1,1) lds={LDS_SIZE}
.amdgcn_target "amdgcn-amd-amdhsa--gfx950"
.text
.globl {NAME}
.p2align 8
.type {NAME},@function
{NAME}:
{body}
.section .rodata,"a"
.p2align 6
.amdhsa_kernel {NAME}
  .amdhsa_next_free_vgpr 256
  .amdhsa_next_free_sgpr 102
  .amdhsa_accum_offset 256
  .amdhsa_group_segment_fixed_size 0
  .amdhsa_kernarg_size 104
  .amdhsa_user_sgpr_count 2
  .amdhsa_user_sgpr_kernarg_segment_ptr 1
  .amdhsa_system_sgpr_workgroup_id_x 1
.end_amdhsa_kernel
"""
    return txt

if __name__=="__main__":
    p=P()
    out=sys.argv[1]
    for kv in sys.argv[2:]:
        k,v=kv.split("=")
        setattr(p,k, v if k in ("order","pol","polw","h0p") else int(v))
    open(out,"w").write(gen(p))
```

```python
import sys, math
NAME = "concat_heads__gqa_block_cached__sliding_block_cached__decode_kernel"
HDR = open("concat_heads__gqa_block_cached__sliding_block_cached__decode.s.ref").read().split("; Override launch")[0]

H0_OFF  = 0x1000
H1L_OFF = 0x60000
H1_OFF  = 0x80000
H2_OFF  = 0x200000
CNT_OFF = 0x300000
WS_SIZE = 0x400000
STAMP_OFF = 0x1000000
LDS_Q = 0; LDS_O = 2048; LDS_ST = 2048+16384; LDS_OX = LDS_ST+128; LDS_FL = LDS_OX+256; LDS_SIZE = LDS_FL+16
TAGC = 0x3B5D7F91
CEXP = math.log2(math.e)/16.0
def f2u(x):
    import struct; return struct.unpack("<I", struct.pack("<f", x))[0]

class P:
    R=39; T=7; order="AK,BK,AV,BV"; mp=0; stamps=0; spin=100000; T0=5; sleep0=1; sleep1=1; sleep2=1
    ost='none'; pubp=0; loc=0; K0=12; K1=16; h0s='sc1'; h1s='sc1'; h1l='sc1'; alt1=0; first_delay=30; fine=1; h2lay=1; TE=0; NE=0; d2=0; padto=0; bk1=2; bk2=2; kpat=1; bar0=1; TI=5; pol='nt'; polw='nt'; pt=0; ptd=0; cmap=1; lmap=1; dyn=0; NU=128; fake=0; wol=0; nowq=0; fd2=0; sat=0; sm=0; rot=0; nos=0; dw=4; tl=5; ept=0; prof=0; h0p='sc1'; ep2=0; pte=0; ptm=31; h2e=0; TH=0; cont=0; skew=0; cst=128; diag=-1; fac=4; trot=0; wrot=0; bst=0; pp1=0; pp2=0; stg=3; ntl=0; d1=0; hs=0; hl=0; ilv=0; ipos=4

def POL(x): return '' if x=='none' else x.replace('+',' ')
def gen(p):
    if p.dyn and p.bst: p.NU=64
    L=[]; e=L.append
    def nop(n):
        if n>0: e(f"s_nop {n-1}")
    nst=[0]
    def stamp(i):
        if p.stamps or p.diag>=0: e(f"s_memrealtime s[{70+2*i}:{71+2*i}]")
    def srd(r, lo, hi, size):
        e(f"s_mov_b32 s{r}, s{lo}"); e(f"s_mov_b32 s{r+1}, s{hi}"); e(f"s_mov_b32 s{r+2}, {size:#x}"); e(f"s_mov_b32 s{r+3}, 0x20000")
    def write_stamps(n, slot0):
        if not p.stamps: return
        e("s_waitcnt lgkmcnt(0)")
        e(f"s_add_u32 s64, s28, {STAMP_OFF:#x}"); e("s_addc_u32 s65, s29, 0"); e("s_mov_b32 s66, 0x100000"); e("s_mov_b32 s67, 0x20000")
        e("s_lshl_b32 s68, s2, 7"); e(f"s_add_u32 s68, s68, {slot0*8}")
        e("s_mov_b64 exec, 1"); e("v_mov_b32 v1, 0")
        for i in range(n):
            e(f"v_mov_b32 v2, s{70+2*i}"); e(f"v_mov_b32 v3, s{71+2*i}")
            e(f"buffer_store_dwordx2 v[2:3], v1, s[64:67], s68 offen offset:{i*8}"); e("s_nop 1")
    stamp(0)
    if p.padto: e("s_memrealtime s[86:87]")
    e("s_cmp_ge_u32 s2, 256"); e("s_cbranch_scc1 L_end")
    e("s_load_dwordx16 s[4:19], s[0:1], 0")
    e("s_load_dwordx8 s[20:27], s[0:1], 64")
    e("s_load_dwordx2 s[28:29], s[0:1], 96")
    e("v_lshrrev_b32 v1, 6, v0")
    e("v_and_b32 v0, 63, v0")
    e("v_readfirstlane_b32 s3, v1")
    if p.mp==1:
        e("s_and_b32 s31, s2, 7"); e("s_bfe_u32 s32, s2, 0x10003"); e("s_lshr_b32 s33, s2, 4")
    elif p.mp==2:
        e("s_bfe_u32 s31, s2, 0x20001"); e("s_bfe_u32 s32, s2, 0x10006"); e("s_lshl_b32 s32, s32, 2"); e("s_or_b32 s31, s31, s32")
        e("s_bfe_u32 s33, s2, 0x30003"); e("s_lshl_b32 s33, s33, 1"); e("s_and_b32 s32, s2, 1"); e("s_or_b32 s33, s33, s32"); e("s_lshr_b32 s32, s2, 7")
    elif p.mp==3:
        e("s_bfe_u32 s31, s2, 0x10002"); e("s_bfe_u32 s32, s2, 0x20005"); e("s_lshl_b32 s32, s32, 1"); e("s_or_b32 s31, s31, s32")
        e("s_bfe_u32 s33, s2, 0x20003"); e("s_lshl_b32 s33, s33, 2"); e("s_and_b32 s32, s2, 3"); e("s_or_b32 s33, s33, s32"); e("s_lshr_b32 s32, s2, 7")
    else:
        e("s_bfe_u32 s31, s2, 0x30004"); e("s_lshr_b32 s32, s2, 7"); e("s_and_b32 s33, s2, 15")
    e("s_lshl_b32 s34, s32, 4"); e("s_add_u32 s34, s34, s33")
    e("v_and_b32 v2, 15, v0"); e("v_lshrrev_b32 v3, 4, v0")
    e("s_cmp_eq_u32 s3, 0"); e("s_cbranch_scc1 L_helper")

    def emit_masks(base):
        e("v_and_b32 v8, 1, v0"); e("v_lshlrev_b32 v8, 4, v8"); e("v_mov_b32 v9, 0xffff"); e("v_lshlrev_b32 v9, v8, v9")
        e("v_bfe_u32 v8, v0, 1, 2")
        for r in range(4):
            e(f"v_cmp_eq_u32 vcc, {r}, v8"); nop(2); e(f"v_cndmask_b32 v{base+r}, 0, v9, vcc")
    def emit_tagconsts():
        e(f"s_add_u32 s30, s30, {TAGC:#x}")
        for i in range(4): e(f"s_mov_b32 s{56+i}, {0x07060500+i:#x}")
        e("s_mov_b32 s60, 0x0c0c0400"); e("s_mov_b32 s61, 0x04000c0c")
    def tag_insert(r, vtag):
        for i in range(4): e(f"v_perm_b32 v{r+i}, v{r+i}, v{vtag}, s{56+i}")
    def tag_check(r, vtag, vbad, t0, t1, first):
        e(f"v_perm_b32 v{t0}, v{r+1}, v{r}, s60"); e(f"v_perm_b32 v{t1}, v{r+3}, v{r+2}, s61")
        if first: e(f"v_bitop3_b32 v{vbad}, v{t0}, v{t1}, v{vtag} bitop3:0x56")
        else:
            e(f"v_bitop3_b32 v{t0}, v{t0}, v{t1}, v{vtag} bitop3:0x56"); e(f"v_or_b32 v{vbad}, v{vbad}, v{t0}")
    def poll_tail(lbl, vbad, slp):
        e(f"v_cmp_ne_u32 vcc, 0, v{vbad}")
        e(f"s_cbranch_vccz {lbl}_done")
        e("s_sub_u32 s62, s62, 1"); e(f"s_cbranch_scc1 {lbl}_done")
        if slp: e(f"s_sleep {slp}")
        e(f"s_branch {lbl}")
        e(f"{lbl}_done:")
    def poll_tail_masked(lbl, bk, pub=None):
        e("s_and_b64 exec, exec, vcc")
        e(f"s_cbranch_scc0 {lbl}_done")
        e("s_sub_u32 s62, s62, 1"); e(f"s_cbranch_scc1 {lbl}_done")
        if pub:
            e(f"s_cmp_lg_u32 s62, {p.spin-pub[0]}"); e(f"s_cbranch_scc1 {lbl}_nopub")
            e("s_mov_b64 exec, -1"); e(pub[1]); e("s_mov_b64 exec, vcc")
            e(f"{lbl}_nopub:")
        e("s_bcnt1_i32_b64 s99, exec"); e(f"s_lshr_b32 s99, s99, {bk}")
        e(f"{lbl}_slp:")
        e("s_sub_u32 s99, s99, 1"); e(f"s_cbranch_scc1 {lbl}")
        e("s_sleep 1"); e(f"s_branch {lbl}_slp")
        e(f"{lbl}_done:")
        e("s_mov_b64 exec, -1")
    def poll_piped(lbl, nset, nld, issue_set, check_set, take_set, bk):
        for j in range(nset):
            issue_set(j)
            if j+1<nset and p.stg: e(f"s_sleep {p.stg}")
        e(f"{lbl}:")
        for j in range(nset):
            e(f"s_waitcnt vmcnt({(nset-1)*nld})")
            check_set(j)
            e("s_andn2_b64 s[64:65], exec, vcc")
            e("s_mov_b64 exec, vcc"); take_set(j); e("s_mov_b64 exec, s[64:65]")
            e(f"s_cbranch_scc0 {lbl}_done")
            e("s_sub_u32 s62, s62, 1"); e(f"s_cbranch_scc1 {lbl}_done")
            e("s_bcnt1_i32_b64 s99, exec"); e(f"s_lshr_b32 s99, s99, {bk}")
            e(f"{lbl}_slp{j}:")
            e("s_sub_u32 s99, s99, 1"); e(f"s_cbranch_scc1 {lbl}_go{j}")
            e("s_sleep 1"); e(f"s_branch {lbl}_slp{j}")
            e(f"{lbl}_go{j}:")
            issue_set(j)
        e(f"s_branch {lbl}")
        e(f"{lbl}_done:")
        e("s_mov_b64 exec, -1")
    def allred_rows(op, x, t):
        e(f"v_mov_b32 v{t}, v{x}"); nop(2); e(f"v_permlane16_swap_b32 v{x}, v{t}"); nop(1); e(f"{op} v{x}, v{x}, v{t}")
        e(f"v_mov_b32 v{t}, v{x}"); nop(2); e(f"v_permlane32_swap_b32 v{x}, v{t}"); nop(1); e(f"{op} v{x}, v{x}, v{t}")

    VK,VV,VW=4,5,6; VTAG=7; MK=10
    Q=14
    Q=16
    S=32
    DT=52
    AO=68
    ACC=76
    MX=92
    LS=94
    TM=96
    RING=100
    R=p.R; assert RING+4*R<=256
    e("s_sub_u32 s3, s3, 1")
    e("v_lshrrev_b32 v8, 2, v2"); e(f"v_lshlrev_b32 v{VK}, 11, v8"); e(f"v_lshl_add_u32 v{VK}, v3, 6, v{VK}")
    e("v_and_b32 v8, 3, v0"); e(f"v_lshl_add_u32 v{VK}, v8, 4, v{VK}")
    e(f"v_lshlrev_b32 v{VV}, 11, v3"); e(f"v_lshl_add_u32 v{VV}, v2, 4, v{VV}")
    e("s_lshl_b32 s35, s32, 3"); e("s_add_u32 s35, s35, s31"); e("s_lshl_b32 s35, s35, 22")
    if p.wrot:
        e(f"s_lshr_b32 s54, s2, {p.wrot-1}"); e("s_add_u32 s54, s54, s3"); e("s_and_b32 s54, s54, 3"); e("s_lshl_b32 s54, s54, 13")
    else: e("s_lshl_b32 s54, s3, 13")
    e("s_add_u32 s35, s35, s54")
    if p.trot: e(f"s_lshr_b32 s87, s2, {p.trot-1}"); e("s_lshl_b32 s87, s87, 15")
    e("s_lshl_b32 s52, s33, 18"); e("s_add_u32 s52, s52, s35")
    e(f"s_lshl_b32 s53, s33, {15 if (p.dyn and p.bst) else 16}"); e("s_add_u32 s53, s53, s35"); e(f"s_add_u32 s53, s53, {6144*512:#x}")
    e("s_waitcnt lgkmcnt(0)")
    SRD={"AK":40,"AV":44,"BK":48,"BV":36}
    SRD={"AK":40,"AV":44,"BK":48,"BV":88}
    order=("AK,AV" if (p.dyn and not p.bst) else p.order).split(",")
    ptr={"AK":6,"AV":8,"BK":16,"BV":18}
    srd(SRD[order[0]], ptr[order[0]], ptr[order[0]]+1, 0x4000000)
    loads=[]
    for ph in order:
        br=0 if ph[0]=="A" else 1
        nt=8 if br==0 else (1 if (p.dyn and p.bst) else 2)
        for t in range(nt):
            for r in range(4):
                for hf in range(2): loads.append((ph,br,t,r,hf))
    if p.ilv:
        u=8 if p.ilv==1 else 4
        nl=[]
        for kv in "KV":
            a=[x for x in loads if x[0]=="A"+kv]; b=[x for x in loads if x[0]=="B"+kv]
            nb=len(b)//u; per=len(a)//u//nb
            for j in range(nb):
                seg=a[j*per*u:(j+1)*per*u]; k=min(p.ipos,per)*u
                nl+=seg[:k]+b[j*u:(j+1)*u]+seg[k:]
        loads=nl
    NKV=len(loads)
    if not(p.dyn and p.wol):
        for t in range(8): loads.append(("WO",0,t,0,0))
    VK2,VV2,TK=50,51,56
    if p.dyn:
        for un in range(2):
            for k in range(4): loads.append(("DU",1,un,k,0))
            if not p.sat: loads.append(("TK",1,un+2,0,0))
    N=len(loads)
    st={"issued":0,"cur":None}
    def slot(i): return RING+4*(i%R)
    def ubuf(j): return slot(NKV+8+4*(j%3))
    if p.dyn: assert all((NKV+8+4*j)%R+4<=R for j in range(3))
    def unit_load(j,k,so):
        d=ubuf(j)+4*k; ph="BK" if k<2 else "BV"
        e(f"buffer_load_dwordx4 v[{d}:{d+3}], v{VK2 if k<2 else VV2}, s[{SRD[ph]}:{SRD[ph]+3}], s{so} offen offset:{(k&1)*256} {POL(p.pol)}")
    def unit_addr(src):
        sh=11 if p.cont else 13
        if p.rot==0: e(f"s_lshl_b32 s54, s{src}, {sh}")
        else:
            if p.rot==1: e(f"s_add_u32 s54, s{src}, s35")
            elif p.rot==2: e(f"s_mul_i32 s54, s{src}, 37")
            else: e(f"s_mul_i32 s54, s{src}, 37"); e("s_add_u32 s54, s54, s35")
            e(f"s_and_b32 s54, s54, {p.NU-1}"); e(f"s_lshl_b32 s54, s54, {sh}")
        e("s_add_u32 s55, s54, s4")
    def ticket(j):
        e("s_mov_b64 exec, 1"); e(f"v_mov_b32 v{TK+j%3}, 1")
        if p.fake==1: e(f"buffer_load_dword v{TK+j%3}, off, s[36:39], s69 sc1")
        elif p.fake==2: e(f"buffer_load_dword v{TK+j%3}, off, s[36:39], s69")
        else: e(f"buffer_atomic_add v{TK+j%3}, off, s[36:39], s69 sc0 sc1")
        e("s_mov_b64 exec, -1")
    def issue(throttle=None):
        i=st["issued"]
        if i>=N: return
        ph,br,t,r,hf=loads[i]
        if throttle is not None and i>=throttle: e(f"s_waitcnt vmcnt({throttle-1})")
        if p.prof==2 and i%4==0 and i<=NKV:
            if i==0: e("v_mov_b32 v1, 0")
            else: e("s_waitcnt lgkmcnt(0)"); e(f"v_writelane_b32 v1, s84, {i//4-1}")
            e("s_memrealtime s[84:85]")
        if p.dyn and p.nos and i==N-8-p.tl:
            e("s_add_u32 s64, s28, s69"); e("s_addc_u32 s65, s29, 0"); e("s_mov_b32 s66, 1"); e("s_atomic_add s66, s[64:65], 0 glc")
        d=slot(i)
        if ph=="WO":
            key=("WO",t//4)
            if st["cur"]!=key:
                e(f"s_add_u32 s55, s63, {(t//4)*4*896}"); st["cur"]=key
            e(f"buffer_load_dwordx4 v[{d}:{d+3}], v{VW}, s[92:95], s55 offen offset:{(t%4)*896} {POL(p.polw)}")
        elif ph=="DU":
            key=("DU",t)
            if st["cur"]!=key:
                if p.nos:
                    e("s_waitcnt lgkmcnt(0)")
                    e(f"s_cmp_ge_u32 s66, {p.NU}"); e(f"s_cselect_b32 s{67+t}, 1, 0")
                    e(f"s_cselect_b32 s{SRD['BK']+2}, 0, 0x4000000"); e(f"s_cselect_b32 s{SRD['BV']+2}, 0, 0x4000000")
                    e("s_cselect_b32 s55, 0, s66"); e(f"s_cbranch_scc1 L_nodraw{t}")
                    e("s_mov_b32 s66, 1"); e("s_atomic_add s66, s[64:65], 0 glc")
                    e(f"L_nodraw{t}:")
                    unit_addr(55)
                else:
                    e(f"s_add_u32 s55, s33, {16*t}"); unit_addr(55)
                st["cur"]=key
            if p.skew:
                if r==2 and t==0: e(f"s_mov_b32 s{SRD['BV']+2}, 0")
                unit_load(t,r,55 if (r<2 or t==0) else 87)
                if r==3:
                    e("s_mov_b32 s87, s55")
                    if t==0: e(f"s_mov_b32 s{SRD['BV']+2}, 0x4000000")
            else: unit_load(t,r,55)
        elif ph=="TK":
            ticket(t)
        else:
            key=(br,t)
            if st["cur"]!=key:
                if p.trot and br==0:
                    e(f"s_add_u32 s55, s87, {t*32768}"); e(f"s_and_b32 s55, s55, {7*32768:#x}"); e("s_add_u32 s55, s55, s52")
                else: e(f"s_add_u32 s55, s{52+br}, {t*32768}")
                st["cur"]=key
            vo=VK if (ph[1]=="K" and p.kpat) else VV
            e(f"buffer_load_dwordx4 v[{d}:{d+3}], v{vo}, s[{SRD[ph]}:{SRD[ph]+3}], s55 offen offset:{r*512+hf*256} {POL(p.pol)}")
        st["issued"]+=1
    if p.bar0: e("s_barrier")
    for i in range(p.T0): issue()
    e("s_load_dword s30, s[28:29], 0")
    for ph in ("AK","AV","BK","BV"):
        if ph!=order[0]: srd(SRD[ph], ptr[ph], ptr[ph]+1, 0x4000000)
    srd(36,28,29,WS_SIZE)
    if p.dyn:
        e("s_lshl_b32 s54, s32, 3"); e("s_add_u32 s54, s54, s31"); e("s_lshl_b32 s4, s54, 22"); e(f"s_lshl_b32 s35, s54, {2 if p.bst else 3}")
        e(f"s_lshl_b32 s69, s3, {18 if p.cont else 11}"); e("s_add_u32 s4, s4, s69"); e(f"s_add_u32 s4, s4, {(6144+(1024 if p.bst else 0))*512:#x}")
        e("s_lshl_b32 s54, s54, 2"); e("s_add_u32 s54, s54, s3"); e(f"s_mul_i32 s69, s54, {p.cst}"); e(f"s_add_u32 s69, s69, {CNT_OFF:#x}")
        e("v_lshrrev_b32 v8, 2, v2"); e(f"v_lshlrev_b32 v{VK2}, 9, v8"); e(f"v_lshl_add_u32 v{VK2}, v3, 6, v{VK2}")
        e("v_and_b32 v8, 3, v0"); e(f"v_lshl_add_u32 v{VK2}, v8, 4, v{VK2}")
        e(f"v_lshlrev_b32 v{VV2}, 9, v3"); e(f"v_lshl_add_u32 v{VV2}, v2, 4, v{VV2}")
        for c in range(8): e(f"v_mov_b32 v{ACC+8+c}, 0")
        e("s_mov_b32 s100, 0xff00ff00"); e("s_mov_b32 s101, 0x00ff00ff")
    e("s_cmp_ge_u32 s34, 16"); e("s_cselect_b32 s92, s22, s12"); e("s_cselect_b32 s93, s23, s13")
    e(f"s_mov_b32 s94, {4096*896:#x}"); e("s_mov_b32 s95, 0x20000")
    e("s_and_b32 s54, s34, 15"); e("s_lshl_b32 s54, s54, 5"); e("s_lshl_b32 s63, s31, 9"); e("s_add_u32 s63, s63, s54"); e("s_mul_i32 s63, s63, 896")
    e(f"v_mul_u32_u24 v{VW}, {8*896}, v3"); e(f"v_lshl_add_u32 v{VW}, v2, 4, v{VW}")
    e("s_lshl_b32 s54, s3, 8"); e(f"v_add_u32 v{VW}, s54, v{VW}")
    e("s_lshl_b32 s54, s3, 4"); e("v_add_u32 v8, s54, v2")
    e("v_mov_b32 v14, v8")
    e("v_cmp_gt_u32 vcc, 56, v8"); e("v_mov_b32 v9, 0x40000000"); nop(1); e(f"v_cndmask_b32 v{VW}, v9, v{VW}, vcc")
    emit_masks(MK)
    e("v_bfe_u32 v8, v0, 3, 1"); e("v_lshlrev_b32 v15, 9, v8"); e("v_lshl_add_u32 v15, v3, 6, v15")
    e("v_and_b32 v8, 3, v0"); e("v_lshl_add_u32 v15, v8, 4, v15")
    for br in range(2):
        e(f"v_mov_b32 v{MX+br}, {0xf149f2ca if (br==1 and p.dyn and not p.bst) else 0xff800000:#x}"); e(f"v_mov_b32 v{LS+br}, 0")
    e(f"s_mov_b32 s96, {f2u(CEXP):#x}"); e("s_mov_b32 s97, 0xffff0000")
    while st["issued"]<R: issue(p.TI)
    e("s_waitcnt lgkmcnt(0)")
    emit_tagconsts()
    e(f"v_mov_b32 v{VTAG}, s30")
    if not p.dyn: stamp(1)
    e("v_mov_b32 v8, 0"); e(f"s_mov_b32 s62, {p.spin*16}")
    e("L_qw:")
    e(f"ds_read_b32 v9, v8 offset:{LDS_FL}"); e("s_waitcnt lgkmcnt(0)")
    e("v_cmp_ne_u32 vcc, 0, v9"); e("s_cbranch_vccnz L_qw_done")
    e("s_sub_u32 s62, s62, 1"); e("s_cbranch_scc1 L_qw_done")
    e("s_sleep 1"); e("s_branch L_qw")
    e("L_qw_done:")
    if p.loc&4: e("v_readfirstlane_b32 s69, v9")
    if not p.dyn: stamp(2)
    for br in range(2):
        for hf in range(2):
            q=Q+br*8+hf*4
            e(f"ds_read_b128 v[{q}:{q+3}], v15 offset:{LDS_Q+br*1024+hf*256}")
    e("s_waitcnt lgkmcnt(0)")
    if p.prof==1: e("v_mov_b32 v1, 0"); e("s_memrealtime s[84:85]")
    groups=[loads[i] for i in range(0,NKV,2)]
    NG=len(groups)
    def sreg(br,t,r): return S+(0 if br==0 else 16)+t*2+(r>>1)
    lastm={}
    def need(dist, idx):
        n=dist-(len(L)-idx-1)
        if n>0: nop(n)
    def k_post(gi):
        ph,br,t,r,_=groups[gi]; d0=DT+4*((gi-1)%4); d1=DT+4*(gi%4)
        def qp(c): return f"quad_perm:[{c},{c},{c},{c}] row_mask:0xf bank_mask:0xf"
        need(8,lastm[gi-1])
        e(f"v_mov_b32_dpp v{TM}, v{d0} {qp(0)}"); e(f"v_mov_b32_dpp v{TM+1}, v{d0+2} {qp(2)}")
        need(8,lastm[gi])
        e(f"v_mov_b32_dpp v{TM+2}, v{d1} {qp(0)}"); e(f"v_mov_b32_dpp v{TM+3}, v{d1+2} {qp(2)}")
        e(f"v_add_f32_dpp v{TM}, v{d0+1}, v{TM} {qp(1)}"); e(f"v_add_f32_dpp v{TM+1}, v{d0+3}, v{TM+1} {qp(3)}")
        e(f"v_add_f32_dpp v{TM+2}, v{d1+1}, v{TM+2} {qp(1)}"); e(f"v_add_f32_dpp v{TM+3}, v{d1+3}, v{TM+3} {qp(3)}")
        e(f"v_add_f32 v{TM}, v{TM}, v{TM+1}"); e(f"v_add_f32 v{TM+2}, v{TM+2}, v{TM+3}")
        s=sreg(br,t,r)
        e(f"v_cvt_pk_bf16_f32 v{s}, v{TM}, v{TM+2}")
        e(f"v_lshlrev_b32 v{TM}, 16, v{s}"); e(f"v_and_b32 v{TM+1}, s97, v{s}")
        e(f"v_max3_f32 v{MX+br}, v{TM}, v{TM+1}, v{MX+br}")
    def v_pre(gi):
        ph,br,t,r,_=groups[gi]; s=sreg(br,t,r); a=AO+4*(gi%2)
        if r&1: e(f"v_and_b32 v{TM}, s97, v{s}")
        else: e(f"v_lshlrev_b32 v{TM}, 16, v{s}")
        e(f"v_fma_f32 v{TM}, v{TM}, s96, -v{MX+br}")
        e(f"v_exp_f32 v{TM}, v{TM}"); nop(1)
        e(f"v_cvt_pk_bf16_f32 v{TM+1}, v{TM}, v{TM}")
        for c in range(4): e(f"v_and_b32 v{a+c}, v{MK+c}, v{TM+1}")
        e(f"v_add_f32 v{LS+br}, v{LS+br}, v{TM}")
    def fin_max(br):
        allred_rows("v_max_f32", MX+br, TM)
        e(f"v_mul_f32 v{MX+br}, s96, v{MX+br}")
    def fin_branch(br):
        allred_rows("v_add_f32", LS+br, TM)
        e(f"v_lshrrev_b32 v{TM}, 5, v0"); e(f"v_lshlrev_b32 v{TM}, 10, v{TM}"); e(f"v_lshl_add_u32 v{TM}, v2, 5, v{TM}")
        e(f"v_and_b32 v{TM+1}, 1, v3"); e(f"v_lshl_add_u32 v{TM}, v{TM+1}, 4, v{TM}")
        e("s_lshl_b32 s54, s3, 12"); e(f"v_add_u32 v{TM}, s54, v{TM}")
        for hf in range(2):
            a=ACC+br*8+hf*4
            e(f"ds_write_b128 v{TM}, v[{a}:{a+3}] offset:{LDS_O+br*2048+hf*512}")
        e(f"v_bfe_u32 v{TM}, v0, 3, 1"); e(f"v_lshlrev_b32 v{TM}, 5, v{TM}"); e("s_lshl_b32 s54, s3, 3"); e(f"v_add_u32 v{TM}, s54, v{TM}")
        e(f"v_mov_b32 v{TM+2}, v{MX+br}"); e(f"v_mov_b32 v{TM+3}, v{LS+br}")
        e(f"ds_write_b64 v{TM}, v[{TM+2}:{TM+3}] offset:{LDS_ST+br*64}")
    PA=59
    def precompute_tail():
        e(f"v_lshrrev_b32 v8, 5, v0"); e(f"v_lshlrev_b32 v{PA}, 10, v8"); e(f"v_lshl_add_u32 v{PA}, v2, 5, v{PA}")
        e(f"v_and_b32 v9, 1, v3"); e(f"v_lshl_add_u32 v{PA}, v9, 4, v{PA}"); e("s_lshl_b32 s54, s3, 12"); e(f"v_add_u32 v{PA}, s54, v{PA}")
        e(f"v_mul_u32_u24 v{PA+8}, 14, v8"); e(f"v_lshrrev_b32 v{PA+1}, 2, v14"); e(f"v_add_u32 v{PA+8}, v{PA+8}, v{PA+1}"); e(f"v_lshlrev_b32 v{PA+8}, 14, v{PA+8}")
        e(f"v_lshl_add_u32 v{PA+8}, v9, 4, v{PA+8}"); e("v_and_b32 v9, 3, v14"); e(f"v_lshl_add_u32 v{PA+8}, v9, 5, v{PA+8}")
        e("v_cmp_gt_u32 vcc, 56, v14"); e("v_mov_b32 v9, 0x40000000")
        e("s_lshr_b32 s11, s34, 4"); e(f"s_mul_i32 s11, s11, {112*4096}"); e(f"v_cndmask_b32 v{PA+8}, v9, v{PA+8}, vcc")
        e("s_and_b32 s54, s34, 15"); e("s_lshl_b32 s5, s31, 4"); e("s_add_u32 s54, s54, s5"); e("s_lshl_b32 s54, s54, 7")
        e("s_add_u32 s11, s11, s54"); e(f"s_add_u32 s11, s11, {H2_OFF:#x}")
        e("s_lshl_b32 s54, s3, 5")
        e(f"v_lshlrev_b32 v{PA+6}, 7, v8"); e("v_and_b32 v9, 1, v0"); e(f"v_lshl_add_u32 v{PA+6}, v9, 4, v{PA+6}"); e(f"v_add_u32 v{PA+6}, s54, v{PA+6}")
        e(f"v_mov_b32 v{PA+3}, s54")
        e("v_lshrrev_b32 v8, 1, v0"); e(f"v_lshlrev_b32 v{PA+5}, 7, v8"); e(f"v_lshl_add_u32 v{PA+5}, v9, 4, v{PA+5}")
        e("s_lshl_b32 s10, s31, 5"); e("s_add_u32 s10, s10, s34"); e("s_lshl_b32 s10, s10, 12"); e(f"s_add_u32 s10, s10, {H1_OFF:#x}"); e("s_add_u32 s10, s10, s54")
        e("v_bfe_u32 v8, v0, 3, 1"); e(f"v_lshlrev_b32 v{PA+7}, 7, v8"); e(f"v_lshl_add_u32 v{PA+7}, v3, 5, v{PA+7}")
        e(f"v_lshlrev_b32 v{PA+1}, 5, v8"); e("s_lshl_b32 s54, s3, 3"); e(f"v_add_u32 v{PA+1}, s54, v{PA+1}")
        e(f"v_lshlrev_b32 v{PA+2}, 4, v0"); e("s_lshl_b32 s54, s3, 10"); e(f"v_add_u32 v{PA+2}, s54, v{PA+2}")
        e("v_lshrrev_b32 v8, 3, v0"); e(f"v_lshlrev_b32 v{PA+4}, 12, v8"); e("v_and_b32 v9, 7, v0"); e(f"v_lshl_add_u32 v{PA+4}, v9, 4, v{PA+4}")
        e("s_lshl_b32 s54, s31, 2"); e("s_add_u32 s54, s54, s3"); e("s_lshl_b32 s5, s54, 15"); e("s_lshl_b32 s54, s34, 7"); e("s_add_u32 s5, s5, s54"); e(f"s_add_u32 s5, s5, {H1_OFF:#x}")
    def fin_stats(br):
        allred_rows("v_add_f32", LS+br, TM)
        e(f"v_mov_b32 v{TM+2}, v{MX+br}"); e(f"v_mov_b32 v{TM+3}, v{LS+br}")
        e(f"ds_write_b64 v{PA+1}, v[{TM+2}:{TM+3}] offset:{LDS_ST+br*64}")
    def fin_acc(br):
        for hf in range(2):
            a=ACC+br*8+hf*4
            e(f"ds_write_b128 v{PA}, v[{a}:{a+3}] offset:{LDS_O+br*2048+hf*512}")
    statdone=set()
    if p.ntl:
        assert p.h2lay==1 and (p.sat or not p.dyn)
        def fin_branch(br):
            if br not in statdone: fin_stats(br)
            else: nop(7)
            fin_acc(br)
    lastK=max(i for i in range(NG) if groups[i][0][1]=="K")
    pend_k=[]
    maxdone=set(); predone=set(); pend_fin=[]
    def flush_k(keep):
        while len(pend_k)>keep: k_post(pend_k.pop(0))
    for gi in range(NG):
        ph,br,t,r,_=groups[gi]
        i0=2*gi
        if ph[1]=="V" and gi not in predone:
            if br not in maxdone:
                if any(groups[x][1]==br for x in pend_k):
                    flush_k(0)
                fin_max(br); maxdone.add(br)
            v_pre(gi); predone.add(gi); nop(2)
        for hf in range(2):
            i=i0+hf
            e(f"s_waitcnt vmcnt({st['issued']-i-1})")
            d=slot(i)
            if ph[1]=="K":
                D=DT+4*(gi%4); q=Q+br*8+hf*4
                c="0" if hf==0 else f"v[{D}:{D+3}]"
                e(f"v_mfma_f32_16x16x32_bf16 v[{D}:{D+3}], v[{d}:{d+3}], v[{q}:{q+3}], {c}")
            else:
                a=AO+4*(gi%2); D=ACC+br*8+hf*4
                c="0" if (t==0 and r==0) else f"v[{D}:{D+3}]"
                e(f"v_mfma_f32_16x16x32_bf16 v[{D}:{D+3}], v[{a}:{a+3}], v[{d}:{d+3}], {c}")
            lastm[gi]=len(L)-1
            Tc = p.TE if (p.TE and i>=NKV-p.NE) else p.T
            if p.fine and hf==0:
                while st["issued"]-(i+1)<Tc and st["issued"]<N: issue()
        consumed=i0+2
        if p.prof==1 and (gi+1)%2==0:
            k=(gi+1)//2
            e("s_waitcnt lgkmcnt(0)"); e(f"v_writelane_b32 v1, s84, {k-1}"); e("s_memrealtime s[84:85]")
        lag=st["issued"]-consumed
        if lag>=Tc: issue(Tc)
        else:
            while st["issued"]-consumed<Tc and st["issued"]<N: issue()
        flush_k(0)
        if ph[1]=="K" and (r&1): pend_k.append(gi)
        if pend_fin and pend_fin[0][1]<gi:
            fin_branch(pend_fin.pop(0)[0])
        if ph[1]=="V" and not any(g[0]==ph for g in groups[gi+1:]) and not (p.dyn and br==1): pend_fin.append((br,gi))
        if gi+1<NG:
            nph,nbr,_,_,_=groups[gi+1]
            if nph[1]=="V" and (nbr in maxdone or not any(groups[x][1]==nbr for x in pend_k)):
                if nbr not in maxdone: fin_max(nbr); maxdone.add(nbr)
                v_pre(gi+1); predone.add(gi+1)
                if p.ntl and gi+2==NG and not (p.dyn and nbr==1): fin_stats(nbr); statdone.add(nbr)
        if p.ntl and gi==lastK+2: precompute_tail()
    while st["issued"]<N: issue()
    if p.dyn:
        stamp(1)
        if p.sat and not p.nos:
            e("s_add_u32 s64, s28, s69"); e("s_addc_u32 s65, s29, 0"); e("s_mov_b32 s66, 1"); e("s_atomic_add s66, s[64:65], 0 glc")
        nop(4)
        while pend_fin: fin_branch(pend_fin.pop(0)[0])
        def process(j,lbl):
            b0=ubuf(j); D=DT; q=Q+8; a=AO
            def qp(c): return f"quad_perm:[{c},{c},{c},{c}] row_mask:0xf bank_mask:0xf"
            def pv():
                for hf in range(2):
                    A=ACC+8+4*hf
                    e(f"v_mfma_f32_16x16x32_bf16 v[{A}:{A+3}], v[{a}:{a+3}], v[{b0+8+4*hf}:{b0+11+4*hf}], v[{A}:{A+3}]")
            if p.skew:
                pv(); e("s_cmp_eq_u32 s68, 3"); e("s_cbranch_scc1 L_dyn_done")
            e(f"v_mfma_f32_16x16x32_bf16 v[{D}:{D+3}], v[{b0}:{b0+3}], v[{q}:{q+3}], 0")
            e(f"v_mfma_f32_16x16x32_bf16 v[{D}:{D+3}], v[{b0+4}:{b0+7}], v[{q+4}:{q+7}], v[{D}:{D+3}]")
            nop(8)
            e(f"v_mov_b32_dpp v{TM}, v{D} {qp(0)}"); e(f"v_mov_b32_dpp v{TM+1}, v{D+2} {qp(2)}")
            e(f"v_add_f32_dpp v{TM}, v{D+1}, v{TM} {qp(1)}"); e(f"v_add_f32_dpp v{TM+1}, v{D+3}, v{TM+1} {qp(3)}")
            e(f"v_add_f32 v{TM}, v{TM}, v{TM+1}")
            e(f"v_cvt_pk_bf16_f32 v{TM}, v{TM}, v{TM}"); e(f"v_and_b32 v{TM}, s97, v{TM}")
            e(f"v_mul_f32 v{TM+1}, s96, v{TM}")
            allred_rows("v_max_f32", TM+1, TM+2)
            e(f"v_cmp_gt_f32 vcc, v{TM+1}, v{MX+1}"); e(f"s_cbranch_vccz {lbl}_keep")
            e(f"v_max_f32 v{TM+1}, v{TM+1}, v{MX+1}"); e(f"v_sub_f32 v{TM+2}, v{MX+1}, v{TM+1}"); e(f"v_exp_f32 v{TM+2}, v{TM+2}")
            e(f"v_mov_b32 v{MX+1}, v{TM+1}"); nop(1)
            e(f"v_mul_f32 v{LS+1}, v{LS+1}, v{TM+2}")
            e(f"v_mov_b32_dpp v{TM+3}, v{TM+2} row_ror:8 row_mask:0xf bank_mask:0xf")
            e(f"v_cndmask_b32 v{TM+2}, v{TM+2}, v{TM+3}, s[100:101]")
            for c in range(8): e(f"v_mul_f32 v{ACC+8+c}, v{ACC+8+c}, v{TM+2}")
            e(f"{lbl}_keep:")
            e(f"v_fma_f32 v{TM}, v{TM}, s96, -v{MX+1}")
            e(f"v_exp_f32 v{TM}, v{TM}"); nop(1)
            e(f"v_cvt_pk_bf16_f32 v{TM+1}, v{TM}, v{TM}")
            for c in range(4): e(f"v_and_b32 v{a+c}, v{MK+c}, v{TM+1}")
            e(f"v_add_f32 v{LS+1}, v{LS+1}, v{TM}"); nop(1)
            if not p.skew: pv()
        if p.nos: e("s_cmp_lg_u32 s67, 0"); e("s_cbranch_scc1 L_dyn_done")
        else: e("s_mov_b32 s68, 0")
        if p.fake: e("s_add_u32 s67, s33, 16")
        if p.TH: e("s_mov_b32 s67, 0"); e("s_mov_b32 s98, 1")
        if p.prof==1: e(f"s_mov_b32 s86, {NG//2}"); e("s_waitcnt lgkmcnt(0)")
        e("L_dyn:")
        for i in ((1,2,3) if not p.sat else ()):
            e("s_cmp_eq_u32 s68, 0"); e(f"s_cbranch_scc1 L_dy{i}_draw")
            stamp(2)
            e("s_mov_b32 s68, 2"); e(f"s_waitcnt vmcnt({9 if p.wol==1 else 1})"); e(f"s_branch L_dy{i}_proc")
            if p.wol==1:
                e(f"L_dy{i}_empty:")
                for t in range(8):
                    if t%4==0: e(f"s_add_u32 s55, s63, {(t//4)*4*896}")
                    d=slot(NKV+t)
                    e(f"buffer_load_dwordx4 v[{d}:{d+3}], v{VW}, s[92:95], s55 offen offset:{(t%4)*896} {POL(p.polw)}")
                e(f"s_branch L_dy{i}_proc")
            e(f"L_dy{i}_draw:")
            e("s_waitcnt vmcnt(5)")
            e(f"v_readfirstlane_b32 s54, v{TK+(i+1)%3}")
            if p.fake: e("s_add_u32 s67, s67, 16"); e("s_mov_b32 s54, s67")
            e(f"s_cmp_ge_u32 s54, {p.NU}"); e("s_cselect_b32 s68, 1, 0"); e(f"s_cbranch_scc1 L_dy{i}_{'empty' if p.wol==1 else 'proc'}")
            unit_addr(54)
            for k in range(4): unit_load(i+1,k,55)
            ticket(i+3)
            e(f"L_dy{i}_proc:")
            process(i-1,f"L_dy{i}")
            e("s_cmp_eq_u32 s68, 2")
            e("s_cbranch_scc1 L_dyn_done" if i<3 else "s_cbranch_scc0 L_dyn")
        if p.sat:
            for i in (1,2,3):
                e("s_cmp_eq_u32 s68, 0"); e(f"s_cbranch_scc1 L_dy{i}_draw")
                if p.skew:
                    e("s_add_u32 s68, s68, 1"); e("s_waitcnt vmcnt(2) lgkmcnt(0)")
                    e("s_cmp_eq_u32 s68, 2"); e(f"s_cbranch_scc1 L_dy{i}_proc")
                    e("s_waitcnt vmcnt(0)"); e(f"s_branch L_dy{i}_proc")
                    e(f"L_dy{i}_empty:")
                    stamp(2)
                    for k in (2,3): unit_load(i+1,k,87)
                    e("s_waitcnt vmcnt(6)"); e(f"s_branch L_dy{i}_proc")
                else:
                    stamp(2)
                    e("s_mov_b32 s68, 2"); e("s_waitcnt vmcnt(0) lgkmcnt(0)"); e(f"s_branch L_dy{i}_proc")
                    e(f"L_dy{i}_empty:"); e("s_waitcnt vmcnt(4)"); e(f"s_branch L_dy{i}_proc")
                e(f"L_dy{i}_draw:")
                if not p.TH:
                    e(f"s_waitcnt vmcnt({p.dw+2 if p.sm else p.dw}) lgkmcnt(0)")
                    e(f"s_cmp_ge_u32 s66, {p.NU}"); e("s_cselect_b32 s68, 1, 0"); e(f"s_cbranch_scc1 L_dy{i}_empty")
                    unit_addr(66)
                    e("s_mov_b32 s66, 1"); e("s_atomic_add s66, s[64:65], 0 glc")
                else:
                    e(f"s_waitcnt vmcnt({p.dw+2 if p.sm else p.dw})")
                    e("s_add_u32 s99, s99, 1")
                    e("s_sub_u32 s67, s67, 1"); e(f"s_cbranch_scc0 L_dy{i}_have")
                    e("s_waitcnt lgkmcnt(0)")
                    e("s_mov_b32 s99, s66"); e("s_sub_u32 s67, s98, 1")
                    e(f"s_cmp_ge_u32 s99, {p.NU}"); e(f"s_cbranch_scc1 L_dy{i}_have")
                    e(f"s_cmp_lt_u32 s99, {p.TH}"); e("s_cselect_b32 s98, 2, 1")
                    e("s_mov_b32 s66, s98"); e("s_atomic_add s66, s[64:65], 0 glc")
                    e(f"L_dy{i}_have:")
                    e(f"s_cmp_ge_u32 s99, {p.NU}"); e("s_cselect_b32 s68, 1, 0"); e(f"s_cbranch_scc1 L_dy{i}_empty")
                    unit_addr(99)
                for k in range(4):
                    if p.sm and k==2: e(f"s_waitcnt vmcnt({p.dw+2})")
                    unit_load(i+1,k,87 if (p.skew and k>=2) else 55)
                if p.skew: e("s_mov_b32 s87, s55")
                if p.dw>4: e("s_waitcnt vmcnt(8)")
                e(f"L_dy{i}_proc:")
                process(i-1,f"L_dy{i}")
                if p.prof==1: e("s_mov_b32 m0, s86"); e("v_writelane_b32 v1, s84, m0"); e("s_add_u32 s86, s86, 1"); e("s_memrealtime s[84:85]")
                if p.skew:
                    if i==3: e("s_branch L_dyn")
                else:
                    e("s_cmp_eq_u32 s68, 2")
                    e("s_cbranch_scc1 L_dyn_done" if i<3 else "s_cbranch_scc0 L_dyn")
        e("L_dyn_done:")
        stamp(3)
        def wo_loads():
            for t in range(8):
                if t%4==0: e(f"s_add_u32 s55, s63, {(t//4)*4*896}")
                d=slot(NKV+t)
                e(f"buffer_load_dwordx4 v[{d}:{d+3}], v{VW}, s[92:95], s55 offen offset:{(t%4)*896} {POL(p.polw)}")
        if p.wol==2: wo_loads()
        fin_branch(1)
    else:
        stamp(3)
        while pend_fin: fin_branch(pend_fin.pop(0)[0])
    e("s_waitcnt lgkmcnt(0)")
    e("s_barrier")
    stamp(4)
    if p.dyn and p.wol==3: wo_loads()
    def new_tail():
        G=16
        e(f"ds_read_b128 v[{G}:{G+3}], v{PA+3} offset:{LDS_ST}"); e(f"ds_read_b128 v[{G+4}:{G+7}], v{PA+3} offset:{LDS_ST+16}")
        for w in range(4): e(f"ds_read_b128 v[{G+8+4*w}:{G+11+4*w}], v{PA+2} offset:{LDS_O+w*4096}")
        M=G+24; PB=M+4; O=M+8
        e(f"v_mov_b32 v{PB+3}, v{VTAG}"); e(f"s_mov_b32 s62, {p.spin}")
        e("s_waitcnt lgkmcnt(0)" if (p.stamps or p.diag>=0) else "s_waitcnt lgkmcnt(4)")
        e(f"v_max3_f32 v{M}, v{G}, v{G+2}, v{G+4}"); e(f"v_max_f32 v{M}, v{M}, v{G+6}")
        for w in range(4): e(f"v_sub_f32 v{G+2*w}, v{G+2*w}, v{M}")
        for w in range(4): e(f"v_exp_f32 v{G+2*w}, v{G+2*w}")
        e(f"v_mul_f32 v{M+1}, v{G}, v{G+1}")
        for w in range(1,4): e(f"v_fmac_f32 v{M+1}, v{G+2*w}, v{G+2*w+1}")
        if p.dyn and not p.bst: e(f"v_max_f32 v{M+1}, 0x0da24260, v{M+1}")
        e(f"v_rcp_f32 v{M+2}, v{M+1}"); e(f"v_log_f32 v{M+3}, v{M+1}")
        e("s_waitcnt lgkmcnt(0)")
        for c in range(4): e(f"v_mul_f32 v{O+c}, v{G}, v{G+8+c}")
        for w in range(1,4):
            for c in range(4): e(f"v_fmac_f32 v{O+c}, v{G+2*w}, v{G+8+4*w+c}")
        e(f"v_add_f32 v{PB+2}, v{M}, v{M+3}")
        for c in range(4): e(f"v_mul_f32 v{O+c}, v{O+c}, v{M+2}")
        e(f"v_cvt_pk_bf16_f32 v{PB}, v{O}, v{O+1}"); e(f"v_cvt_pk_bf16_f32 v{PB+1}, v{O+2}, v{O+3}")
        if p.loc&4:
            e("s_cmp_eq_u32 s69, 2"); e("s_cbranch_scc1 L_h1_near")
            e(f"buffer_store_dwordx4 v[{PB}:{PB+3}], v{PA+4}, s[36:39], s5 offen sc1")
            e("s_branch L_h1_sent"); e("L_h1_near:")
        e(f"buffer_store_dwordx4 v[{PB}:{PB+3}], v{PA+4}, s[36:39], s5 offen {POL('none' if p.loc&5 else p.h1s)}".rstrip())
        if p.loc&4: e("L_h1_sent:")
        H1C=52
        if p.loc&1:
            for c in range(4): e(f"v_mov_b32 v{H1C+c}, v{PB+c}")
        stamp(5)
        if p.dyn and p.wol==4: wo_loads()
        if p.d1==99: e("s_barrier")
        elif p.d1: e(f"s_sleep {p.d1}")
        GA=16
        e("L_h1:")
        if p.alt1:
            e(f"s_and_b32 s99, s62, {p.alt1-1}"); e("s_cbranch_scc0 L_h1_far")
            e(f"buffer_load_dwordx4 v[{GA}:{GA+3}], v{PA+5}, s[36:39], s10 offen sc0")
            e("s_branch L_h1_chk")
            e("L_h1_far:")
        e(f"buffer_load_dwordx4 v[{GA}:{GA+3}], v{PA+5}, s[36:39], s10 offen {POL(p.h1l)}".rstrip())
        if p.alt1: e("L_h1_chk:")
        e("s_waitcnt vmcnt(0)")
        e(f"v_cmp_ne_u32 vcc, v{GA+3}, v{VTAG}")
        pub1=f"buffer_store_dwordx4 v[{H1C}:{H1C+3}], v{PA+4}, s[36:39], s5 offen sc1"
        poll_tail_masked("L_h1",p.bk1,(p.K1,pub1) if p.loc&1 else None)
        stamp(6)
        def ror(op,x,n,src=None): return f"{op}_dpp v{x}, v{x if src is None else src}, v{x if src is None else src} row_ror:{n} row_mask:0xf bank_mask:0xf"
        MXX=22; A0=24; W=28; TT=32
        e(ror("v_max_f32",MXX,2,GA+2))
        e(f"v_lshlrev_b32 v{A0}, 16, v{GA}"); e(f"v_and_b32 v{A0+1}, s97, v{GA}")
        e(ror("v_max_f32",MXX,4))
        e(f"v_lshlrev_b32 v{A0+2}, 16, v{GA+1}"); e(f"v_and_b32 v{A0+3}, s97, v{GA+1}")
        e(ror("v_max_f32",MXX,8))
        e(f"v_mov_b32 v{TT}, v{MXX}"); nop(2); e(f"v_permlane16_swap_b32 v{MXX}, v{TT}"); nop(1); e(f"v_max_f32 v{MXX}, v{MXX}, v{TT}")
        e(f"v_sub_f32 v{W}, v{GA+2}, v{MXX}"); e(f"v_exp_f32 v{W}, v{W}"); nop(1)
        for c in range(4): e(f"v_mul_f32 v{A0+c}, v{W}, v{A0+c}")
        regs=[W]+[A0+c for c in range(4)]
        for n in (2,4,8):
            for x in regs: e(ror("v_add_f32",x,n))
        for i,x in enumerate(regs): e(f"v_mov_b32 v{TT+i}, v{x}")
        for i,x in enumerate(regs): e(f"v_permlane16_swap_b32 v{x}, v{TT+i}")
        for i,x in enumerate(regs):
            e(f"v_add_f32 v{x}, v{x}, v{TT+i}")
            if i==0: e(f"v_rcp_f32 v{W}, v{W}")
        e("s_mov_b32 exec_lo, 3"); e("s_mov_b32 exec_hi, 3")
        for c in range(4): e(f"v_mul_f32 v{A0+c}, v{W}, v{A0+c}")
        for c in range(4): e(f"v_cvt_pk_bf16_f32 v{A0+c}, v{A0+c}, v{A0+c}")
        e(f"ds_write_b128 v{PA+6}, v[{A0}:{A0+3}] offset:{LDS_OX}")
        e("s_mov_b64 exec, -1")
        if p.loc&1 and p.pubp==0: e(pub1)
        e("s_waitcnt lgkmcnt(0)")
        e("s_barrier")
        e(f"ds_read_b128 v[{A0}:{A0+3}], v{PA+7} offset:{LDS_OX}"); e(f"ds_read_b128 v[{A0+4}:{A0+7}], v{PA+7} offset:{LDS_OX+16}")
        DO=44; AB=68
        def ands(t):
            for c in range(4): e(f"v_and_b32 v{AB+4*(t%6)+c}, v{MK+c}, v{A0+t}")
        e("s_waitcnt lgkmcnt(0)" if (p.stamps or p.diag>=0) else "s_waitcnt lgkmcnt(1)")
        ands(0)
        for t in range(8):
            if t==3: e("s_waitcnt lgkmcnt(0)")
            if t<7: ands(t+1)
            else: nop(2)
            d=slot(NKV+t); c="0" if t==0 else f"v[{DO}:{DO+3}]"; a=AB+4*(t%6)
            e(f"v_mfma_f32_16x16x32_bf16 v[{DO}:{DO+3}], v[{a}:{a+3}], v[{d}:{d+3}], {c}")
        nop(8)
        tag_insert(DO,VTAG)
        e(f"buffer_store_dwordx4 v[{DO}:{DO+3}], v{PA+8}, s[36:39], s11 offen sc1")
        if p.loc&1 and p.pubp==1: e(pub1)
        stamp(7)
        if p.ntl>=2:
            e("s_cmp_ge_u32 s2, 56"); e("s_cbranch_scc1 L_send")
            GQ=16; BAD=32; T0=33; T1=34
            e("v_lshrrev_b32 v8, 3, v0"); e("v_lshlrev_b32 v4, 9, v8"); e("v_and_b32 v9, 7, v0"); e("v_lshl_add_u32 v4, v9, 4, v4")
            e("s_lshl_b32 s14, s2, 14"); e("s_lshl_b32 s54, s3, 12"); e("s_add_u32 s14, s14, s54"); e(f"s_add_u32 s14, s14, {H2_OFF:#x}")
            e("v_lshlrev_b32 v5, 4, v9"); e("s_lshl_b32 s54, s3, 7"); e("v_add_u32 v6, s54, v5"); e("v_lshlrev_b32 v15, 3, v9")
            e("s_mul_i32 s52, s2, 4682"); e("s_lshr_b32 s52, s52, 16")
            e("s_mul_i32 s53, s52, 14"); e("s_sub_u32 s53, s2, s53"); e("s_lshl_b32 s53, s53, 6")
            e("s_and_b32 s54, s52, 1"); e("s_mul_i32 s54, s54, 1792"); e("s_add_u32 s53, s53, s54")
            e("s_lshr_b32 s54, s52, 1"); e("s_mul_i32 s54, s54, 896"); e("s_add_u32 s53, s53, s54")
            srd(40,24,25,3584)
            e(f"s_mov_b32 s62, {p.spin}")
            if p.d2: e(f"s_sleep {p.d2}")
            e("L_h2:")
            for i in range(4): e(f"buffer_load_dwordx4 v[{GQ+4*i}:{GQ+4*i+3}], v4, s[36:39], s14 offen offset:{i*128} sc1")
            e("s_waitcnt vmcnt(0)")
            for k in range(4): tag_check(GQ+4*k,VTAG,BAD,T0,T1,k==0)
            e(f"v_cmp_ne_u32 vcc, 0, v{BAD}")
            poll_tail_masked("L_h2",p.bk2)
            for c in range(4):
                e(f"v_add_f32 v{GQ+c}, v{GQ+c}, v{GQ+4+c}"); e(f"v_add_f32 v{GQ+8+c}, v{GQ+8+c}, v{GQ+12+c}")
            for c in range(4): e(f"v_add_f32 v{GQ+c}, v{GQ+c}, v{GQ+8+c}")
            for c in range(4): e(f"v_add_f32_dpp v{GQ+c}, v{GQ+c}, v{GQ+c} row_ror:8 row_mask:0xf bank_mask:0xf")
            for sw in ("v_permlane16_swap_b32","v_permlane32_swap_b32"):
                for c in range(4): e(f"v_mov_b32 v{GQ+4+c}, v{GQ+c}")
                for c in range(4): e(f"{sw} v{GQ+c}, v{GQ+4+c}")
                for c in range(4): e(f"v_add_f32 v{GQ+c}, v{GQ+c}, v{GQ+4+c}")
            e("s_mov_b64 exec, 0xff")
            e(f"ds_write_b128 v6, v[{GQ}:{GQ+3}] offset:{LDS_Q}")
            e("s_waitcnt lgkmcnt(0)")
            e("s_barrier")
            e("s_cmp_lg_u32 s3, 0"); e("s_cbranch_scc1 L_end")
            if p.stamps or p.diag>=0: e("s_memrealtime s[88:89]")
            for w in range(1,4): e(f"ds_read_b128 v[{GQ+4*w}:{GQ+4*w+3}], v5 offset:{LDS_Q+w*128}")
            e("s_waitcnt lgkmcnt(0)")
            for c in range(4):
                e(f"v_add_f32 v{GQ+c}, v{GQ+c}, v{GQ+4+c}"); e(f"v_add_f32 v{GQ+8+c}, v{GQ+8+c}, v{GQ+12+c}")
            for c in range(4): e(f"v_add_f32 v{GQ+c}, v{GQ+c}, v{GQ+8+c}")
            e(f"v_cvt_pk_bf16_f32 v{GQ}, v{GQ}, v{GQ+1}"); e(f"v_cvt_pk_bf16_f32 v{GQ+1}, v{GQ+2}, v{GQ+3}")
            e(f"buffer_store_dwordx2 v[{GQ}:{GQ+1}], v15, s[40:43], s53 offen {POL(p.ost)}".rstrip())
            e("s_cmp_lg_u32 s2, 0"); e("s_cbranch_scc1 L_send2")
            e("s_mov_b64 exec, 1")
            e(f"buffer_store_dword v{VTAG}, v15, s[36:39], 0 offen sc1")
            e("L_send2:")
            if p.stamps:
                e("s_memrealtime s[90:91]"); e("s_waitcnt lgkmcnt(0)")
                e(f"s_add_u32 s64, s28, {STAMP_OFF:#x}"); e("s_addc_u32 s65, s29, 0"); e("s_lshl_b32 s68, s2, 7")
                e("s_mov_b64 exec, 1"); e("v_mov_b32 v1, s68")
                for i in range(4): e(f"v_mov_b32 v{4+i}, s{88+i}")
                e("global_store_dwordx4 v1, v[4:7], s[64:65] offset:112")
            e("L_send:")
        if p.stamps:
            e("s_cmp_lg_u32 s3, 0"); e("s_cbranch_scc1 L_end")
            write_stamps(8,0)
        e("s_endpgm")
    def old_tail():
        G=16
        e(f"v_lshlrev_b32 v8, 4, v0"); e("s_lshl_b32 s54, s3, 10"); e("v_add_u32 v8, s54, v8")
        e("s_lshl_b32 s54, s3, 5"); e("v_mov_b32 v9, s54")
        e(f"ds_read_b128 v[{G}:{G+3}], v9 offset:{LDS_ST}"); e(f"ds_read_b128 v[{G+4}:{G+7}], v9 offset:{LDS_ST+16}")
        for w in range(4): e(f"ds_read_b128 v[{G+8+4*w}:{G+11+4*w}], v8 offset:{LDS_O+w*4096}")
        e("v_lshrrev_b32 v8, 3, v0"); e("v_lshlrev_b32 v8, 12, v8"); e("v_and_b32 v9, 7, v0"); e("v_lshl_add_u32 v8, v9, 4, v8")
        e("s_lshl_b32 s54, s31, 2"); e("s_add_u32 s54, s54, s3")
        e("s_lshl_b32 s55, s54, 15"); e("s_lshl_b32 s98, s34, 7"); e("s_add_u32 s55, s55, s98"); e(f"s_add_u32 s55, s55, {H1_OFF:#x}")
        e("s_waitcnt lgkmcnt(0)" if (p.stamps or p.diag>=0) else "s_waitcnt lgkmcnt(4)")
        M=G+24
        e(f"v_max3_f32 v{M}, v{G}, v{G+2}, v{G+4}"); e(f"v_max_f32 v{M}, v{M}, v{G+6}")
        for w in range(4): e(f"v_sub_f32 v{G+2*w}, v{G+2*w}, v{M}")
        for w in range(4): e(f"v_exp_f32 v{G+2*w}, v{G+2*w}")
        nop(1)
        e(f"v_mul_f32 v{M+1}, v{G}, v{G+1}")
        for w in range(1,4): e(f"v_fmac_f32 v{M+1}, v{G+2*w}, v{G+2*w+1}")
        if p.dyn and not p.bst: e(f"v_max_f32 v{M+1}, 0x0da24260, v{M+1}")
        e(f"v_rcp_f32 v{M+2}, v{M+1}"); e(f"v_log_f32 v{M+3}, v{M+1}"); nop(1)
        for w in range(4): e(f"v_mul_f32 v{G+2*w}, v{G+2*w}, v{M+2}")
        PB=M+4
        e(f"v_add_f32 v{PB+2}, v{M}, v{M+3}"); e(f"v_mov_b32 v{PB+3}, v{VTAG}")
        e("s_waitcnt lgkmcnt(0)")
        O=M+8
        for c in range(4): e(f"v_mul_f32 v{O+c}, v{G}, v{G+8+c}")
        for w in range(1,4):
            for c in range(4): e(f"v_fmac_f32 v{O+c}, v{G+2*w}, v{G+8+4*w+c}")
        e(f"v_cvt_pk_bf16_f32 v{PB}, v{O}, v{O+1}"); e(f"v_cvt_pk_bf16_f32 v{PB+1}, v{O+2}, v{O+3}")
        e(f"buffer_store_dwordx4 v[{PB}:{PB+3}], v8, s[36:39], s55 offen sc1")
        stamp(5)
        e("v_lshrrev_b32 v9, 1, v0"); e("v_lshlrev_b32 v8, 7, v9"); e("v_and_b32 v9, 1, v0"); e("v_lshl_add_u32 v8, v9, 4, v8")
        e("s_lshl_b32 s55, s31, 5"); e("s_add_u32 s55, s55, s34"); e("s_lshl_b32 s55, s55, 12"); e(f"s_add_u32 s55, s55, {H1_OFF:#x}")
        e("s_lshl_b32 s98, s3, 5"); e("s_add_u32 s55, s55, s98")
        e("v_lshrrev_b32 v20, 5, v0"); e("v_lshlrev_b32 v20, 7, v20"); e("v_lshl_add_u32 v20, v9, 4, v20"); e("v_add_u32 v20, s98, v20")
        e("v_bfe_u32 v21, v0, 3, 1"); e("v_lshlrev_b32 v21, 7, v21"); e("v_lshl_add_u32 v21, v3, 5, v21")
        e(f"s_mov_b32 s62, {p.spin}")
        GA=16
        if p.pp1:
            PS=80
            poll_piped("L_h1",p.pp1,1,
                lambda j: e(f"buffer_load_dwordx4 v[{PS+4*j}:{PS+4*j+3}], v8, s[36:39], s55 offen sc1"),
                lambda j: e(f"v_cmp_eq_u32 vcc, v{PS+4*j+3}, v{VTAG}"),
                lambda j: [e(f"v_mov_b32 v{GA+c}, v{PS+4*j+c}") for c in range(3)], p.bk1)
        else:
            e("L_h1:")
            e(f"buffer_load_dwordx4 v[{GA}:{GA+3}], v8, s[36:39], s55 offen sc1")
            e("s_waitcnt vmcnt(0)")
            e(f"v_cmp_ne_u32 vcc, v{GA+3}, v{VTAG}")
            pub1=f"buffer_store_dwordx4 v[{H1C}:{H1C+3}], v{PA+4}, s[36:39], s5 offen sc1"
        poll_tail_masked("L_h1",p.bk1,(p.K1,pub1) if p.loc&1 else None)
        stamp(6)
        def ror(op,x,n): return f"{op}_dpp v{x}, v{x}, v{x} row_ror:{n} row_mask:0xf bank_mask:0xf"
        MXX=22; A0=24; W=28; TT=32
        e(f"v_mov_b32 v{MXX}, v{GA+2}")
        e(f"v_lshlrev_b32 v{A0}, 16, v{GA}"); e(f"v_and_b32 v{A0+1}, s97, v{GA}")
        e(ror("v_max_f32",MXX,2))
        e(f"v_lshlrev_b32 v{A0+2}, 16, v{GA+1}"); e(f"v_and_b32 v{A0+3}, s97, v{GA+1}")
        e(ror("v_max_f32",MXX,4)); nop(2)
        e(ror("v_max_f32",MXX,8))
        e(f"v_mov_b32 v{TT}, v{MXX}"); nop(2); e(f"v_permlane16_swap_b32 v{MXX}, v{TT}"); nop(1); e(f"v_max_f32 v{MXX}, v{MXX}, v{TT}")
        e(f"v_sub_f32 v{W}, v{GA+2}, v{MXX}"); e(f"v_exp_f32 v{W}, v{W}"); nop(1)
        for c in range(4): e(f"v_mul_f32 v{A0+c}, v{W}, v{A0+c}")
        regs=[W]+[A0+c for c in range(4)]
        for n in (2,4,8):
            for x in regs: e(ror("v_add_f32",x,n))
        for i,x in enumerate(regs): e(f"v_mov_b32 v{TT+i}, v{x}")
        for i,x in enumerate(regs): e(f"v_permlane16_swap_b32 v{x}, v{TT+i}")
        for i,x in enumerate(regs): e(f"v_add_f32 v{x}, v{x}, v{TT+i}")
        e(f"v_rcp_f32 v{W}, v{W}"); nop(1)
        for c in range(4): e(f"v_mul_f32 v{A0+c}, v{W}, v{A0+c}")
        for c in range(4): e(f"v_cvt_pk_bf16_f32 v{A0+c}, v{A0+c}, v{A0+c}")
        e("s_mov_b32 exec_lo, 3"); e("s_mov_b32 exec_hi, 3")
        e(f"ds_write_b128 v20, v[{A0}:{A0+3}] offset:{LDS_OX}")
        e("s_mov_b64 exec, -1")
        e("s_waitcnt lgkmcnt(0)")
        e("s_barrier")
        A0=24
        e(f"ds_read_b128 v[{A0}:{A0+3}], v21 offset:{LDS_OX}"); e(f"ds_read_b128 v[{A0+4}:{A0+7}], v21 offset:{LDS_OX+16}")
        e("s_waitcnt lgkmcnt(0)")
        DO=44
        AB=48
        for t in range(8):
            for c in range(4): e(f"v_and_b32 v{AB+4*t+c}, v{MK+c}, v{A0+t}")
        if p.h2lay==0:
            e("v_lshrrev_b32 v8, 5, v0"); e("v_mul_u32_u24 v8, 56, v8"); e("v_add_u32 v8, v8, v14"); e("v_lshlrev_b32 v8, 12, v8")
        else:
            e("v_lshrrev_b32 v8, 5, v0"); e("v_mul_u32_u24 v8, 14, v8"); e("v_lshrrev_b32 v9, 2, v14"); e("v_add_u32 v8, v8, v9"); e("v_lshlrev_b32 v8, 14, v8")
            e("v_and_b32 v9, 3, v14"); e("v_lshl_add_u32 v8, v9, 5, v8")
        for t in range(8):
            d=slot(NKV+t); c="0" if t==0 else f"v[{DO}:{DO+3}]"
            e(f"v_mfma_f32_16x16x32_bf16 v[{DO}:{DO+3}], v[{AB+4*t}:{AB+4*t+3}], v[{d}:{d+3}], {c}")
        e("v_and_b32 v9, 1, v3"); e("v_lshl_add_u32 v8, v9, 4, v8")
        e("v_cmp_gt_u32 vcc, 56, v14"); e("v_mov_b32 v9, 0x40000000")
        e("s_lshr_b32 s54, s34, 4"); e(f"s_mul_i32 s54, s54, {112*4096}"); e("v_cndmask_b32 v8, v9, v8, vcc")
        e("s_and_b32 s55, s34, 15"); e("s_lshl_b32 s98, s31, 4"); e("s_add_u32 s55, s55, s98"); e(f"s_lshl_b32 s55, s55, {5 if p.h2lay==0 else 7}")
        e("s_add_u32 s54, s54, s55"); e(f"s_add_u32 s54, s54, {H2_OFF:#x}")
        nop(2)
        tag_insert(DO,VTAG)
        e(f"buffer_store_dwordx4 v[{DO}:{DO+3}], v8, s[36:39], s54 offen sc1")
        if not p.prof: stamp(7)
        if p.prof:
            if p.dyn: e("s_mov_b32 m0, s86"); e("v_writelane_b32 v1, s84, m0")
            else: e(f"v_writelane_b32 v1, s84, {NG//2}")
            e("v_writelane_b32 v1, s70, 63")
            e(f"s_add_u32 s64, s28, 0x1800000"); e("s_addc_u32 s65, s29, 0"); e("s_lshl_b32 s54, s2, 2"); e("s_add_u32 s54, s54, s3"); e("s_lshl_b32 s54, s54, 8")
            e("v_lshlrev_b32 v8, 2, v0"); e("v_add_u32 v8, s54, v8"); e("global_store_dword v8, v1, s[64:65]")
        if p.stamps:
            e("s_cmp_lg_u32 s3, 0"); e("s_cbranch_scc1 L_end")
            write_stamps(8,0)
        e("s_endpgm")
    if p.ntl: new_tail()
    else: old_tail()

    e("L_helper:")
    e("s_setprio 3")
    e("v_mov_b32 v8, 0"); e(f"ds_write_b32 v8, v8 offset:{LDS_FL}")
    X=16
    WQ=64
    e("v_bfe_u32 v8, v0, 3, 1"); e("v_mul_u32_u24 v4, 896, v8"); e("v_mul_u32_u24 v8, 56, v3"); e("v_add_u32 v4, v4, v8")
    e(f"v_mul_u32_u24 v5, {28*8192}, v3"); e("v_lshl_add_u32 v5, v2, 4, v5")
    e("s_and_b32 s35, s34, 3"); e("s_mul_i32 s52, s35, 224")
    e(f"s_mul_i32 s53, s35, {112*8192}"); e("s_lshl_b32 s54, s31, 10"); e("s_add_u32 s53, s53, s54")
    e("s_bfe_u32 s54, s34, 0x20002"); e("s_lshl_b32 s54, s54, 8"); e("s_add_u32 s53, s53, s54")
    e("s_cmp_ge_u32 s34, 16")
    e("s_waitcnt lgkmcnt(0)")
    e("s_cselect_b32 s40, s14, s4"); e("s_cselect_b32 s41, s15, s5"); e("s_mov_b32 s42, 1792"); e("s_mov_b32 s43, 0x20000")
    e("s_cselect_b32 s44, s20, s10"); e("s_cselect_b32 s45, s21, s11"); e(f"s_mov_b32 s46, {0 if p.nowq else 448*8192:#x}"); e("s_mov_b32 s47, 0x20000")
    e(f"buffer_load_dwordx4 v[{X}:{X+3}], v4, s[40:43], s52 offen")
    e(f"buffer_load_dwordx4 v[{X+4}:{X+7}], v4, s[40:43], s52 offen offset:16")
    e(f"buffer_load_dwordx4 v[{X+8}:{X+11}], v4, s[40:43], s52 offen offset:32")
    e(f"buffer_load_dwordx2 v[{X+12}:{X+13}], v4, s[40:43], s52 offen offset:48")
    for t in range(28):
        e(f"buffer_load_dwordx4 v[{WQ+4*t}:{WQ+4*t+3}], v5, s[44:47], s53 offen {POL(p.polw)}")
        if t<27: e("s_add_u32 s53, s53, 8192")
    XT=0
    if p.dyn:
        XT=1
        srd(36,28,29,WS_SIZE)
        e("s_lshl_b32 s54, s32, 3"); e("s_add_u32 s54, s54, s31"); e(f"s_mul_i32 s54, s54, {4*p.cst}"); e(f"s_add_u32 s54, s54, {CNT_OFF:#x}")
        e(f"v_mul_u32_u24 v8, {p.cst}, v0"); e(f"v_mov_b32 v47, {0 if p.nos else 32}")
        e("s_cmp_eq_u32 s33, 0"); e("s_cselect_b32 s55, 0, 0x40000000"); e("v_add_u32 v8, s55, v8")
        e("s_mov_b64 exec, 15")
        e("buffer_atomic_swap v47, v8, s[36:39], s54 offen sc0 sc1")
        e("s_mov_b64 exec, -1")
    def pretouch():
        n=0
        e("v_and_b32 v9, 31, v0")
        e("s_mov_b32 exec_hi, 0")
        if p.ptm&1:
            e("v_lshlrev_b32 v8, 12, v9")
            e("s_lshl_b32 s54, s31, 17"); e("s_lshl_b32 s98, s34, 7"); e("s_add_u32 s54, s54, s98"); e(f"s_add_u32 s54, s54, {H1_OFF:#x}")
            e(f"buffer_load_dword v56, v8, s[36:39], s54 offen sc1"); n+=1
        if p.ptm&2:
            e("s_mov_b32 exec_lo, 0x0fffffff")
            e("v_lshlrev_b32 v57, 14, v9")
            e("s_lshr_b32 s54, s34, 4"); e(f"s_mul_i32 s54, s54, {112*4096}")
            e("s_and_b32 s55, s34, 15"); e("s_lshl_b32 s98, s31, 4"); e("s_add_u32 s55, s55, s98"); e("s_lshl_b32 s55, s55, 7")
            e("s_add_u32 s54, s54, s55"); e(f"s_add_u32 s54, s54, {H2_OFF:#x}")
            e(f"buffer_load_dword v57, v57, s[36:39], s54 offen sc1"); n+=1
        if p.ptm&4:
            e("s_mov_b32 exec_lo, 15")
            e("v_lshlrev_b32 v58, 12, v9")
            e("s_and_b32 s54, s2, 7"); e("s_lshr_b32 s98, s2, 5"); e("s_lshl_b32 s98, s98, 3"); e("s_add_u32 s54, s54, s98")
            e("s_lshl_b32 s54, s54, 14"); e(f"s_add_u32 s54, s54, {H2_OFF:#x}")
            e(f"buffer_load_dword v58, v58, s[36:39], s54 offen sc1"); n+=1
        if p.ptm&8:
            e("s_mov_b32 exec_lo, 1")
            e("global_load_dword v59, v0, s[24:25] sc1"); n+=1
        if p.ptm&16:
            e("s_mov_b32 exec_lo, 0xff")
            e("s_cmp_ge_u32 s34, 16"); e("s_cselect_b32 s92, s22, s12"); e("s_cselect_b32 s93, s23, s13")
            e("s_and_b32 s54, s34, 15"); e("s_lshl_b32 s54, s54, 5"); e("s_lshl_b32 s63, s31, 9"); e("s_add_u32 s63, s63, s54"); e("s_mul_i32 s63, s63, 896")
            e("v_mul_u32_u24 v60, 4092, v9"); e("v_add_u32 v60, s63, v60")
            e("global_load_dword v60, v60, s[92:93] nt"); n+=1
        e("s_mov_b64 exec, -1")
        return n
    NPT=0
    if p.pt and p.pte:
        srd(36,28,29,WS_SIZE); NPT+=pretouch()
    if p.ept:
        e("s_lshl_b32 s54, s32, 3"); e("s_add_u32 s54, s54, s31"); e("s_lshl_b32 s54, s54, 22")
        e("s_lshl_b32 s55, s33, 18"); e("s_add_u32 s55, s55, s54")
        e("v_and_b32 v8, 3, v0"); e("v_lshlrev_b32 v8, 16, v8"); e("v_add_u32 v8, s55, v8")
        e(f"s_add_u32 s54, s54, {6144*512:#x}")
        if p.dyn: e("v_lshlrev_b32 v9, 16, v2")
        else: e("s_lshl_b32 s55, s33, 16"); e("v_mov_b32 v9, s55")
        e("v_add_u32 v9, s54, v9")
        e(f"s_mov_b64 exec, {0xffff if p.ept>=2 else 1:#x}")
        e("global_load_dword v48, v8, s[8:9] nt"); e("global_load_dword v49, v9, s[16:17] nt"); e("global_load_dword v50, v9, s[18:19] nt")
        NPT+=3
        if p.ept>=2: e("global_load_dword v51, v8, s[6:7] nt"); NPT+=1
        e("s_mov_b64 exec, -1")
    if p.ep2:
        e("v_lshlrev_b32 v8, 20, v0"); e("s_lshl_b32 s54, s2, 7"); e("s_add_u32 s54, s54, 0x58000"); e("v_add_u32 v8, s54, v8")
        e("s_mov_b64 exec, 7"); e("global_load_dword v52, v8, s[28:29] sc1"); NPT+=1
        e("s_mov_b64 exec, 1")
        if p.ep2>=2: e("global_load_dword v53, v0, s[24:25] sc1"); NPT+=1
        if p.ep2>=3:
            e("s_cmp_ge_u32 s34, 16"); e("s_cselect_b32 s92, s22, s12"); e("s_cselect_b32 s93, s23, s13")
            e("s_and_b32 s54, s34, 15"); e("s_lshl_b32 s54, s54, 5"); e("s_lshl_b32 s63, s31, 9"); e("s_add_u32 s63, s63, s54"); e("s_mul_i32 s63, s63, 896")
            e("v_mov_b32 v9, s63"); e("global_load_dword v54, v9, s[92:93] nt"); NPT+=1
        e("s_mov_b64 exec, -1")
    XT+=NPT
    if p.bar0: e("s_barrier")
    e("s_load_dword s30, s[28:29], 0")
    srd(36,28,29,WS_SIZE)
    emit_masks(MK)
    e("s_mov_b32 s48, 0x01000100"); e("s_mov_b32 s49, 0x03020302")
    e("v_lshrrev_b32 v8, 5, v0"); e("v_lshlrev_b32 v6, 14, v8"); e("v_lshl_add_u32 v6, v2, 5, v6"); e("v_and_b32 v9, 1, v3"); e("v_lshl_add_u32 v6, v9, 4, v6")
    e("s_lshl_b32 s50, s31, 15"); e("s_lshl_b32 s54, s34, 9"); e("s_add_u32 s50, s50, s54"); e(f"s_add_u32 s50, s50, {H0_OFF:#x}")
    e("v_lshlrev_b32 v14, 11, v8"); e("v_and_b32 v9, 31, v0"); e("v_lshl_add_u32 v14, v9, 4, v14")
    e("s_lshl_b32 s51, s31, 1"); e("s_add_u32 s51, s51, s32"); e("s_lshl_b32 s51, s51, 14"); e(f"s_add_u32 s51, s51, {H0_OFF:#x}")
    e("v_lshlrev_b32 v15, 3, v0")
    e("s_waitcnt lgkmcnt(0)")
    emit_tagconsts()
    e(f"v_mov_b32 v{VTAG}, s30")
    e(f"s_waitcnt vmcnt({28+XT})")
    stamp(1)
    DQ=32; AQ=36
    def aq(t):
        a=AQ+4*(t%2)
        e(f"v_perm_b32 v8, v{X+t//2}, v{X+t//2}, s{48+(t&1)}")
        for c in range(4): e(f"v_and_b32 v{a+c}, v{MK+c}, v8")
    aq(0)
    for t in range(28):
        if t+1<28: aq(t+1)
        else: nop(2)
        e(f"s_waitcnt vmcnt({27-t+XT})")
        a=AQ+4*(t%2); c="0" if t==0 else f"v[{DQ}:{DQ+3}]"
        e(f"v_mfma_f32_16x16x32_bf16 v[{DQ}:{DQ+3}], v[{a}:{a+3}], v[{WQ+4*t}:{WQ+4*t+3}], {c}")
    if p.loc&4:
        e("s_getreg_b32 s63, hwreg(HW_REG_XCC_ID, 0, 4)"); e(f"v_xor_b32 v{VTAG}, s63, v{VTAG}")
    nop(8)
    if p.dyn: e(f"s_waitcnt vmcnt({NPT})")
    tag_insert(DQ,VTAG)
    e(f"buffer_store_dwordx4 v[{DQ}:{DQ+3}], v6, s[36:39], s50 offen {POL('none' if p.loc&2 else p.h0s)}".rstrip())
    pub0=f"buffer_store_dwordx4 v[{DQ}:{DQ+3}], v6, s[36:39], s50 offen sc1"
    stamp(2)
    e(f"s_mov_b32 s62, {p.spin}")
    if p.first_delay: e(f"s_sleep {p.first_delay}")
    for i in range(p.fd2): e("s_sleep 127")
    GQ=64; BAD=44; T0=45; T1=46
    e("s_mov_b32 s35, 0xffff")
    if p.h0p!='sc1':
        for pi in range(4):
            e(f"s_add_u32 s54, s51, {pi*4096}")
            for kq in range(4):
                r=GQ+4*(pi*4+kq)
                e(f"buffer_load_dwordx4 v[{r}:{r+3}], v14, s[36:39], s54 offen offset:{kq*512} {POL(p.h0p)}")
        e("s_branch L_h0s15")
    e("L_h0:")
    for pi in range(4):
        e(f"s_add_u32 s54, s51, {pi*4096}")
        for kq in range(4):
            k=pi*4+kq; r=GQ+4*k
            e(f"s_bitcmp0_b32 s35, {k}"); e(f"s_cbranch_scc1 L_h0s{k}")
            e(f"buffer_load_dwordx4 v[{r}:{r+3}], v14, s[36:39], s54 offen offset:{kq*512} sc1")
            e(f"L_h0s{k}:")
    e("s_waitcnt vmcnt(0)")
    e("s_mov_b32 s35, 0")
    for k in range(16):
        if p.loc&4:
            tag_check(GQ+4*k,VTAG,128+k,T0,T1,True); e(f"v_cmp_lt_u32 vcc, 15, v{128+k}")
        else:
            tag_check(GQ+4*k,VTAG,BAD,T0,T1,True); e(f"v_cmp_ne_u32 vcc, 0, v{BAD}")
        e("s_cmp_lg_u64 vcc, 0"); e(f"s_cselect_b32 s54, {1<<k}, 0"); e("s_or_b32 s35, s35, s54")
    e("s_cbranch_scc0 L_h0_done")
    e("s_sub_u32 s62, s62, 1"); e("s_cbranch_scc1 L_h0_done")
    if p.loc&2:
        e(f"s_cmp_lg_u32 s62, {p.spin-p.K0}"); e("s_cbranch_scc1 L_h0_nopub"); e(pub0); e("L_h0_nopub:")
    if p.sleep0: e(f"s_sleep {p.sleep0}")
    e("s_branch L_h0")
    e("L_h0_done:")
    stamp(3)
    for pi in range(4):
        r=GQ+16*pi
        for c in range(4):
            e(f"v_add_f32 v{r+c}, v{r+c}, v{r+4+c}"); e(f"v_add_f32 v{r+8+c}, v{r+8+c}, v{r+12+c}")
        for c in range(4): e(f"v_add_f32 v{r+c}, v{r+c}, v{r+8+c}")
        e(f"v_cvt_pk_bf16_f32 v{r}, v{r}, v{r+1}"); e(f"v_cvt_pk_bf16_f32 v{r+1}, v{r+2}, v{r+3}")
        e(f"ds_write_b64 v15, v[{r}:{r+1}] offset:{LDS_Q+pi*512}")
    e("v_mov_b32 v8, 0")
    if p.loc&4:
        for j in range(5): e(f"v_or3_b32 v{128+3*j}, v{128+3*j}, v{129+3*j}, v{130+3*j}")
        e("v_or3_b32 v128, v128, v131, v134"); e("v_or3_b32 v137, v137, v140, v143"); e("v_or_b32 v128, v128, v137")
        e("v_cmp_ne_u32 vcc, 0, v128"); e("s_cmp_lg_u64 vcc, 0"); e("s_cselect_b32 s63, 1, 2"); e("v_mov_b32 v9, s63")
    else: e("v_mov_b32 v9, 1")
    e("s_waitcnt lgkmcnt(0)")
    e(f"ds_write_b32 v8, v9 offset:{LDS_FL}")
    if p.loc&6==6:
        e("s_cmp_eq_u32 s63, 2"); e("s_cbranch_scc1 L_h0_near"); e(pub0); e("L_h0_near:")
    stamp(4)
    if p.pt and not p.pte:
        for i in range(p.ptd): e("s_sleep 127")
        pretouch(); e("s_waitcnt vmcnt(0)")
    if p.loc&6==2: e(pub0)
    if p.ntl>=2:
        write_stamps(5,8); e("s_endpgm"); Lkeep=len(L)
    e("s_cmp_ge_u32 s2, 224"); e("s_cbranch_scc1 L_hend2")
    if p.cmap:
        e("s_and_b32 s35, s2, 7"); e("s_lshr_b32 s52, s2, 5"); e("s_lshl_b32 s52, s52, 3"); e("s_add_u32 s35, s35, s52"); e("s_lshl_b32 s35, s35, 2")
        e("s_bfe_u32 s52, s2, 0x20003"); e("s_add_u32 s35, s35, s52")
    else: e("s_mov_b32 s35, s2")
    if p.h2lay==0:
        e("v_lshlrev_b32 v4, 4, v0")
        e("s_lshl_b32 s51, s35, 12"); e(f"s_add_u32 s51, s51, {H2_OFF:#x}")
    else:
        e("v_lshrrev_b32 v4, 1, v0"); e(f"v_lshlrev_b32 v4, {9 if p.lmap else 7}, v4"); e("v_and_b32 v9, 1, v0"); e("v_lshl_add_u32 v4, v9, 4, v4")
        e("s_lshr_b32 s51, s35, 2"); e("s_lshl_b32 s51, s51, 14"); e("s_and_b32 s52, s35, 3"); e("s_lshl_b32 s52, s52, 5"); e("s_add_u32 s51, s51, s52"); e(f"s_add_u32 s51, s51, {H2_OFF:#x}")
        for i in range(1,4): e(f"s_add_u32 s{44+i}, s51, {i*(128 if p.lmap else 4096)}")
    e("s_mul_i32 s52, s35, 1171"); e("s_lshr_b32 s52, s52, 16")
    e("s_mul_i32 s53, s52, 56"); e("s_sub_u32 s53, s35, s53")
    e("s_lshl_b32 s53, s53, 4")
    e("s_and_b32 s54, s52, 1"); e("s_mul_i32 s54, s54, 1792"); e("s_add_u32 s53, s53, s54")
    e("s_lshr_b32 s54, s52, 1"); e("s_mul_i32 s54, s54, 896"); e("s_add_u32 s53, s53, s54")
    srd(40,24,25,3584)
    e(f"s_mov_b32 s62, {p.spin}")
    e("s_barrier")
    stamp(9)
    if p.h2e:
        for i in range(4): e(f"buffer_load_dword v{GQ+4*i}, v4, s[36:39], s{51 if i==0 else 44+i} offen sc1")
    e("s_barrier")
    stamp(5)
    if p.d2: e(f"s_sleep {p.d2}")
    if p.pp2:
        PS=80
        def iss(j):
            for i in range(4): e(f"buffer_load_dwordx4 v[{PS+16*j+4*i}:{PS+16*j+4*i+3}], v4, s[36:39], s{51 if i==0 else 44+i} offen sc1")
        def chk(j):
            for k in range(4): tag_check(PS+16*j+4*k,VTAG,BAD,T0,T1,k==0)
            e(f"v_cmp_eq_u32 vcc, 0, v{BAD}")
        def tak(j):
            b=PS+16*j
            for c in range(4):
                e(f"v_add_f32 v{GQ+c}, v{b+c}, v{b+4+c}"); e(f"v_add_f32 v{GQ+8+c}, v{b+8+c}, v{b+12+c}")
            for c in range(4): e(f"v_add_f32 v{GQ+c}, v{GQ+c}, v{GQ+8+c}")
        poll_piped("L_h2",p.pp2,4,iss,chk,tak,p.bk2)
        stamp(6)
    else:
        e("L_h2:")
        for i in range(4):
            if p.h2lay==0: e(f"buffer_load_dwordx4 v[{GQ+4*i}:{GQ+4*i+3}], v4, s[36:39], s51 offen offset:{i*1024} sc1")
            else: e(f"buffer_load_dwordx4 v[{GQ+4*i}:{GQ+4*i+3}], v4, s[36:39], s{51 if i==0 else 44+i} offen sc1")
        e("s_waitcnt vmcnt(0)")
        for k in range(4): tag_check(GQ+4*k,VTAG,BAD,T0,T1,k==0)
        e(f"v_cmp_ne_u32 vcc, 0, v{BAD}")
        poll_tail_masked("L_h2",p.bk2)
        stamp(6)
        for c in range(4):
            e(f"v_add_f32 v{GQ+c}, v{GQ+c}, v{GQ+4+c}"); e(f"v_add_f32 v{GQ+8+c}, v{GQ+8+c}, v{GQ+12+c}")
        for c in range(4): e(f"v_add_f32 v{GQ+c}, v{GQ+c}, v{GQ+8+c}")
    for rr in (2,4,8):
        if rr==2: nop(1)
        for c in range(4): e(f"v_add_f32_dpp v{GQ+c}, v{GQ+c}, v{GQ+c} row_ror:{rr} row_mask:0xf bank_mask:0xf")
    for sw in ("v_permlane16_swap_b32","v_permlane32_swap_b32"):
        for c in range(4): e(f"v_mov_b32 v{GQ+4+c}, v{GQ+c}")
        nop(1)
        for c in range(4): e(f"{sw} v{GQ+c}, v{GQ+4+c}")
        nop(1)
        for c in range(4): e(f"v_add_f32 v{GQ+c}, v{GQ+c}, v{GQ+4+c}")
    e(f"v_cvt_pk_bf16_f32 v{GQ}, v{GQ}, v{GQ+1}"); e(f"v_cvt_pk_bf16_f32 v{GQ+1}, v{GQ+2}, v{GQ+3}")
    e("s_mov_b64 exec, 3")
    e(f"buffer_store_dwordx2 v[{GQ}:{GQ+1}], v15, s[40:43], s53 offen {POL(p.ost)}".rstrip())
    e("s_cmp_lg_u32 s2, 0"); e("s_cbranch_scc1 L_hend")
    e("s_mov_b64 exec, 1")
    e(f"buffer_store_dword v{VTAG}, v15, s[36:39], 0 offen sc1")
    e("L_hend:")
    if p.diag>=0:
        e("s_waitcnt lgkmcnt(0)")
        e(f"s_sub_u32 s90, s{70+2*p.diag}, s70"); e(f"s_mul_i32 s90, s90, {p.fac}"); e("s_add_u32 s90, s90, 4000")
        e("L_pad:"); e("s_memrealtime s[84:85]"); e("s_waitcnt lgkmcnt(0)"); e("s_sub_u32 s84, s84, s70")
        e(f"s_cmp_lt_u32 s84, s90"); e("s_cbranch_scc1 L_pad")
    if p.padto:
        e("L_pad:"); e("s_memrealtime s[84:85]"); e("s_waitcnt lgkmcnt(0)"); e("s_sub_u32 s84, s84, s86")
        e(f"s_cmp_lt_u32 s84, {p.padto}"); e("s_cbranch_scc1 L_pad")
    e("L_hend2:")
    stamp(7)
    write_stamps(8,8)
    if p.ntl>=2: del L[Lkeep:]
    e("L_end:")
    e("s_endpgm")
    for i,x in enumerate(L):
        if x.endswith(" sc1") and "sc0" not in x:
            if (p.hs and x.startswith("buffer_store_dwordx4")) or (p.hl and x.startswith("buffer_load_dwordx4")): L[i]=x[:-4]+" sc0 sc1"
    body="\n".join("    "+x if not x.endswith(":") else x for x in L)
    txt = HDR + f"""; Generated by gen/gen.py (hand-designed schedule). One workgroup per CU: wave 0 = helper, waves 1-4 = streamers.
; @launch grid=(256,1,1) block=(320,1,1) lds={LDS_SIZE}
.amdgcn_target "amdgcn-amd-amdhsa--gfx950"
.text
.globl {NAME}
.p2align 8
.type {NAME},@function
{NAME}:
{body}
.section .rodata,"a"
.p2align 6
.amdhsa_kernel {NAME}
  .amdhsa_next_free_vgpr 256
  .amdhsa_next_free_sgpr 102
  .amdhsa_accum_offset 256
  .amdhsa_group_segment_fixed_size 0
  .amdhsa_kernarg_size 104
  .amdhsa_user_sgpr_count 2
  .amdhsa_user_sgpr_kernarg_segment_ptr 1
  .amdhsa_system_sgpr_workgroup_id_x 1
.end_amdhsa_kernel
"""
    return txt

if __name__=="__main__":
    p=P()
    out=sys.argv[1]
    for kv in sys.argv[2:]:
        k,v=kv.split("=")
        setattr(p,k, v if k in ("order","pol","polw","h0p","ost","h1s","h1l","h0s") else int(v))
    open(out,"w").write(gen(p))
```
